```python
import torch

def _softmax(x, axis=-1):
    return torch.softmax(x, dim=axis)

def _gelu(x):
    return torch.nn.functional.gelu(x, approximate='tanh')

def _silu(x):
    return torch.nn.functional.silu(x)

def _sigmoid(x):
    return torch.sigmoid(x)

def _layernorm(x, axis=-1, eps=1e-05):
    m = x.mean(dim=axis, keepdim=True)
    v = x.var(dim=axis, keepdim=True, unbiased=False)
    return (x - m) / torch.sqrt(v + eps)

def _scatter_add(tgt, idx, src, axis=0):
    return tgt.clone().index_add_(axis, idx, src)

def _segment_sum(src, seg, n):
    out = torch.zeros((n,) + src.shape[1:], dtype=src.dtype)
    return out.index_add_(0, seg, src)

def _pad(x, pw):
    flat = tuple((v for pair in reversed(pw) for v in pair))
    return torch.nn.functional.pad(x, flat)
kernel_name = 'concat_heads__memory_aug_recurrent_mem_tr__memory_aug_recurrent_mem_tr__prompt'

def setup_inputs():

    _w = lambda a: (lambda t: t.to(torch.bfloat16) if t.is_floating_point() else t)(torch.as_tensor(a))

    def _A_setup():
        B, S, Dm = (1, 2048, 640)
        H, Dh = (32, 128)
        M, seg = (8, 32)
        seg = min(seg, S)
        S = S // seg * seg
        return {'x': _w((lambda *s: torch.randn(*s, dtype=torch.bfloat16) * 0.05)(B, S, Dm)), 'mem0': _w((lambda *s: torch.randn(*s, dtype=torch.bfloat16) * 0.4)(B, M, Dm)), 'Wq': _w((lambda *s: torch.randn(*s, dtype=torch.bfloat16) * 6.4)(Dm, H, Dh) * Dm ** (-0.5)), 'Wk': _w((lambda *s: torch.randn(*s, dtype=torch.bfloat16) * 6.4)(Dm, H, Dh) * Dm ** (-0.5)), 'Wv': _w((lambda *s: torch.randn(*s, dtype=torch.bfloat16) * 0.4)(Dm, H, Dh) * Dm ** (-0.5)), 'Wo': _w((lambda *s: torch.randn(*s, dtype=torch.bfloat16) * 0.4)(H, Dh, Dm) * (H * Dh) ** (-0.5)), 'seg_len': seg}
    _A_in = _A_setup()

    def _B_setup():
        B, S, Dm = (1, 2048, 640)
        H, Dh = (32, 128)
        M, seg = (8, 32)
        seg = min(seg, S)
        S = S // seg * seg
        return {'x': _w((lambda *s: torch.randn(*s, dtype=torch.bfloat16) * 0.05)(B, S, Dm)), 'mem0': _w((lambda *s: torch.randn(*s, dtype=torch.bfloat16) * 0.4)(B, M, Dm)), 'Wq': _w((lambda *s: torch.randn(*s, dtype=torch.bfloat16) * 6.4)(Dm, H, Dh) * Dm ** (-0.5)), 'Wk': _w((lambda *s: torch.randn(*s, dtype=torch.bfloat16) * 6.4)(Dm, H, Dh) * Dm ** (-0.5)), 'Wv': _w((lambda *s: torch.randn(*s, dtype=torch.bfloat16) * 0.4)(Dm, H, Dh) * Dm ** (-0.5)), 'Wo': _w((lambda *s: torch.randn(*s, dtype=torch.bfloat16) * 0.4)(H, Dh, Dm) * (H * Dh) ** (-0.5)), 'seg_len': seg}
    _B_in = _B_setup()
    return {'A_x': _A_in['x'], 'A_mem0': _A_in['mem0'], 'A_Wq': _A_in['Wq'], 'A_Wk': _A_in['Wk'], 'A_Wv': _A_in['Wv'], 'A_Wo': _A_in['Wo'], 'A_seg_len': _A_in['seg_len'], 'B_x': _B_in['x'], 'B_mem0': _B_in['mem0'], 'B_Wq': _B_in['Wq'], 'B_Wk': _B_in['Wk'], 'B_Wv': _B_in['Wv'], 'B_Wo': _B_in['Wo'], 'B_seg_len': _B_in['seg_len']}

def reference(A_x, A_mem0, A_Wq, A_Wk, A_Wv, A_Wo, A_seg_len, B_x, B_mem0, B_Wq, B_Wk, B_Wv, B_Wo, B_seg_len):

    def _A_ref(x, mem0, Wq, Wk, Wv, Wo, seg_len):
        B, S, Dm = x.shape
        H, Dh = (Wq.shape[1], Wq.shape[2])
        M = mem0.shape[1]
        scale = Dh ** (-0.5)
        n_seg = S // seg_len
        L = M + seg_len
        idx = torch.arange(L)
        mask = (idx[:, None] < M) | (idx[:, None] >= idx[None, :])
        mem = mem0
        outs = []
        for s in range(n_seg):
            xs = x[:, s * seg_len:(s + 1) * seg_len, :].clone()
            h = torch.concatenate([mem, xs], axis=1)
            q = torch.einsum('btd,dhe->bhte', h, Wq)
            k = torch.einsum('btd,dhe->bhte', h, Wk)
            v = torch.einsum('btd,dhe->bhte', h, Wv)
            scores = torch.einsum('bhqe,bhke->bhqk', q, k) * scale
            scores = torch.where(mask[None, None], scores, -1000000000.0)
            p = _softmax(scores, axis=-1)
            o = torch.einsum('bhqk,bhke->bhqe', p, v)
            o = torch.einsum('bhte,hed->btd', o, Wo)
            mem = o[:, :M, :].clone()
            outs.append(o[:, M:, :])
        return torch.concatenate(outs, axis=1)

    def _B_ref(x, mem0, Wq, Wk, Wv, Wo, seg_len):
        B, S, Dm = x.shape
        H, Dh = (Wq.shape[1], Wq.shape[2])
        M = mem0.shape[1]
        scale = Dh ** (-0.5)
        n_seg = S // seg_len
        L = M + seg_len
        idx = torch.arange(L)
        mask = (idx[:, None] < M) | (idx[:, None] >= idx[None, :])
        mem = mem0
        outs = []
        for s in range(n_seg):
            xs = x[:, s * seg_len:(s + 1) * seg_len, :].clone()
            h = torch.concatenate([mem, xs], axis=1)
            q = torch.einsum('btd,dhe->bhte', h, Wq)
            k = torch.einsum('btd,dhe->bhte', h, Wk)
            v = torch.einsum('btd,dhe->bhte', h, Wv)
            scores = torch.einsum('bhqe,bhke->bhqk', q, k) * scale
            scores = torch.where(mask[None, None], scores, -1000000000.0)
            p = _softmax(scores, axis=-1)
            o = torch.einsum('bhqk,bhke->bhqe', p, v)
            o = torch.einsum('bhte,hed->btd', o, Wo)
            mem = o[:, :M, :].clone()
            outs.append(o[:, M:, :])
        return torch.concatenate(outs, axis=1)
    a = _A_ref(A_x, A_mem0, A_Wq, A_Wk, A_Wv, A_Wo, A_seg_len)
    b = _B_ref(B_x, B_mem0, B_Wq, B_Wk, B_Wv, B_Wo, B_seg_len)
    return torch.concatenate([a, b], axis=-1)
```

```python
import re

REG_RE = re.compile(r'^(-?|\|?)([vas])(\d+)$')
RANGE_RE = re.compile(r'^([vas])\[(\d+):(\d+)\]$')

def parse_reg(tok):
    t = tok.strip()
    neg = t.startswith('-')
    if neg: t = t[1:]
    if t.startswith('abs(') and t.endswith(')'): t = t[4:-1]
    if t.startswith('|') and t.endswith('|'): t = t[1:-1]
    m = re.match(r'^([vas])(\d+)$', t)
    if m: return [(m.group(1), int(m.group(2)))]
    m = RANGE_RE.match(t)
    if m: return [(m.group(1), i) for i in range(int(m.group(2)), int(m.group(3)) + 1)]
    if t == 'vcc': return [('x', 'vcc')]
    if t in ('vcc_lo', 'vcc_hi'): return [('x', 'vcc')]
    if t in ('exec', 'exec_lo', 'exec_hi'): return [('x', 'exec')]
    if t == 'm0': return [('x', 'm0')]
    if t == 'scc': return [('x', 'scc')]
    return []

def split_ops(s):
    out, depth, cur = [], 0, ''
    for ch in s:
        if ch in '[(': depth += 1
        if ch in '])': depth -= 1
        if ch == ',' and depth == 0:
            out.append(cur.strip()); cur = ''
        else:
            cur += ch
    if cur.strip(): out.append(cur.strip())
    return out

TRANS = ('v_exp_f32', 'v_log_f32', 'v_rcp_f32', 'v_rsq_f32', 'v_sqrt_f32', 'v_sin_f32', 'v_cos_f32', 'v_rcp_iflag_f32')

class Inst:
    __slots__ = ('text', 'op', 'defs', 'uses', 'kind', 'passes', 'tag', 'dpp', 'srcC', 'ab', 'mods', 'wide', 'note', 'nwait')
    def __init__(self, text, tag=None):
        self.text = text; self.tag = tag
        self.defs = []; self.uses = []; self.kind = 'other'; self.passes = 0
        self.dpp = False; self.srcC = []; self.ab = []; self.mods = ''; self.wide = False; self.note = None
        self.nwait = 1
        t = text.split(';')[0].strip()
        if t.endswith(':') or t.startswith('.') or not t:
            self.op = t; self.kind = 'label' if t.endswith(':') else 'dir'; self.nwait = 0
            return
        parts = t.split(None, 1)
        op = parts[0]; self.op = op
        rest = parts[1] if len(parts) > 1 else ''
        ops = split_ops(rest)
        if ops:
            last = ops[-1].split()
            if len(last) > 1:
                ops[-1] = last[0]; self.mods = ' '.join(last[1:])
        base = re.sub(r'_(e32|e64|dpp|sdwa)$', '', op)
        R = [parse_reg(o) for o in ops]
        flat = lambda L: [r for x in L for r in x]
        if op.endswith('_dpp') or 'quad_perm' in self.mods or 'row_' in self.mods:
            self.dpp = True
        if base.startswith('v_mfma') or base.startswith('v_smfmac'):
            self.kind = 'mfma'
            self.passes = 8 if '32x32' in base else 4
            self.defs = R[0]
            if base.startswith('v_smfmac'):
                self.srcC = R[0]; self.ab = R[1] + R[2] + R[3]
            else:
                self.srcC = R[3] if len(R) > 3 else []; self.ab = R[1] + R[2]
            self.uses = self.ab + self.srcC
        elif base.startswith('v_cmpx'):
            raise ValueError('v_cmpx unsupported')
        elif base.startswith('v_cmp'):
            self.kind = 'valu'; self.defs = R[0]; self.uses = flat(R[1:])
        elif base in ('v_readfirstlane_b32', 'v_readlane_b32'):
            self.kind = 'valu'; self.defs = R[0]; self.uses = flat(R[1:])
        elif base.startswith('v_permlane') and 'swap' in base:
            self.kind = 'valu'; self.defs = R[0] + R[1]; self.uses = R[0] + R[1]
        elif base in ('v_fmac_f32', 'v_mac_f32', 'v_writelane_b32', 'v_pk_fmac_f16', 'v_dot2c_f32_bf16'):
            self.kind = 'valu'; self.defs = R[0]; self.uses = flat(R)
        elif base in ('v_add_co_u32', 'v_sub_co_u32', 'v_subrev_co_u32'):
            self.kind = 'valu'; self.defs = R[0] + R[1]; self.uses = flat(R[2:])
        elif base in ('v_addc_co_u32', 'v_subb_co_u32'):
            self.kind = 'valu'; self.defs = R[0] + R[1]; self.uses = flat(R[2:])
        elif base == 'v_nop':
            self.kind = 'valu'
        elif base.startswith('v_'):
            self.kind = 'valu'; self.defs = R[0]; self.uses = flat(R[1:])
            if self.dpp: self.uses = self.uses + R[0]
            if base == 'v_cndmask_b32' and len(ops) == 3: self.uses.append(('x', 'vcc'))
        elif base.startswith('ds_read') or base.startswith('ds_bpermute') or base.startswith('ds_swizzle'):
            self.kind = 'dsr'; self.defs = R[0]; self.uses = flat(R[1:])
        elif base.startswith('ds_'):
            self.kind = 'dsw'; self.uses = flat(R)
        elif base.startswith('global_load_lds') :
            self.kind = 'vmdma'; self.uses = flat(R) + [('x', 'm0')]
        elif base.startswith('buffer_load') and re.search(r'\blds\b', self.mods):
            self.kind = 'vmdma'; self.uses = flat(R) + [('x', 'm0')]
        elif base.startswith('global_load') or base.startswith('buffer_load'):
            self.kind = 'vmld'; self.defs = R[0]; self.uses = flat(R[1:])
        elif base.startswith('global_store') or base.startswith('buffer_store'):
            self.kind = 'vmst'; self.uses = flat(R)
            self.wide = base.endswith('x4') or base.endswith('x3')
            if base.startswith('global_store'):
                self.ab = R[1]
            else:
                self.ab = R[0]
        elif base.startswith('global_atomic') :
            ret = 'sc0' in self.mods
            self.kind = 'vmld' if ret else 'vmst'
            if ret: self.defs = R[0]; self.uses = flat(R[1:])
            else: self.uses = flat(R)
        elif base.startswith('buffer_atomic'):
            ret = 'sc0' in self.mods
            self.kind = 'vmld' if ret else 'vmst'
            self.uses = flat(R)
            if ret: self.defs = R[0]
        elif base in ('buffer_inv', 'buffer_wbl2'):
            self.kind = 'vmst'
        elif base.startswith('s_load') or base in ('s_memtime', 's_memrealtime'):
            self.kind = 'smem'; self.defs = R[0]; self.uses = flat(R[1:])
        elif base == 's_waitcnt':
            self.kind = 'wait'
        elif base == 's_nop':
            self.kind = 'nop'; self.nwait = int(ops[0], 0) + 1
        elif base == 's_barrier':
            self.kind = 'barrier'
        elif base.startswith('s_cbranch') or base == 's_branch':
            self.kind = 'branch'
            if 'scc' in base: self.uses = [('x', 'scc')]
            if 'vcc' in base: self.uses = [('x', 'vcc')]
            if 'exec' in base: self.uses = [('x', 'exec')]
            self.note = ops[0]
        elif base in ('s_endpgm', 's_sleep', 's_setprio'):
            self.kind = 'salu'
        elif base.startswith('s_cmp') or base.startswith('s_bitcmp'):
            self.kind = 'salu'; self.uses = flat(R); self.defs = [('x', 'scc')]
        elif base.startswith('s_'):
            self.kind = 'salu'; self.defs = R[0] + [('x', 'scc')]; self.uses = flat(R[1:])
            if 'saveexec' in base: self.defs = self.defs + [('x', 'exec')]; self.uses = self.uses + [('x', 'exec')]
            if base.startswith('s_cselect') or base in ('s_addc_u32', 's_subb_u32'): self.uses = self.uses + [('x', 'scc')]
            if base in ('s_mov_b32', 's_mov_b64', 's_movk_i32', 's_getreg_b32', 's_cselect_b32', 's_cselect_b64', 's_mul_i32', 's_mul_hi_u32'):
                self.defs = R[0]
            if base.startswith('s_add') and len(R) == 2: self.uses = self.uses + R[0]
        else:
            raise ValueError('unknown instruction: ' + text)

def isv(r): return r[0] in ('v', 'a')

def hazard_need(p, c):
    need = 0
    pd = set(p.defs)
    if p.kind == 'valu':
        vd = {r for r in pd if isv(r)}
        sd = {r for r in pd if not isv(r) and r != ('x', 'scc')}
        if vd:
            cu = set(c.uses)
            if c.kind == 'mfma' and vd & cu: need = max(need, 2)
            if c.kind == 'valu':
                cb = c.op
                if c.dpp and vd & cu: need = max(need, 2)
                if 'permlane' in cb and vd & cu: need = max(need, 2)
                if ('readlane' in cb or 'readfirstlane' in cb) and vd & cu: need = max(need, 1)
                if re.sub(r'_(e32|e64)$', '', p.op) in TRANS and vd & cu: need = max(need, 1)
        if sd:
            cu = set(c.uses)
            if c.kind == 'valu' and sd & cu:
                need = max(need, 4 if ('readlane' in c.op or 'writelane' in c.op) else 2)
            if c.kind in ('vmld', 'vmst', 'vmdma') and sd & cu: need = max(need, 5)
            if c.kind == 'mfma' and ('x', 'exec') in sd: need = max(need, 4)
            if c.kind in ('salu', 'branch') and sd & cu: need = max(need, 1 if c.kind == 'salu' else 0)
    if p.kind == 'salu':
        if ('x', 'm0') in pd and c.kind == 'vmdma': need = max(need, 1)
    if p.kind == 'mfma':
        D = set(p.defs)
        big = {4: 8, 8: 12}[p.passes]
        if c.kind == 'valu' and (D & set(c.uses) or D & set(c.defs)): need = max(need, big)
        if c.kind in ('vmst', 'dsw', 'vmdma') and D & set(c.uses): need = max(need, big)
        if c.kind in ('vmld', 'dsr') and (D & set(c.uses) or D & set(c.defs)): need = max(need, big)
        if c.kind == 'mfma':
            if D & set(c.ab): need = max(need, big)
            cc = set(c.srcC)
            if D & cc:
                if not (cc == D and c.passes == p.passes): need = max(need, {4: 6, 8: 10}[p.passes])
            elif D & set(c.defs):
                need = max(need, {4: 6, 8: 10}[p.passes])
        if c.kind == 'valu' and set(p.srcC) & set(c.defs): need = max(need, {4: 3, 8: 7}[p.passes])
    if p.kind == 'vmst' and p.wide:
        if c.kind == 'valu' and set(p.ab) & set(c.defs): need = max(need, 2)
        elif c.kind in ('dsr', 'vmld', 'mfma') and set(p.ab) & set(c.defs): need = max(need, 1)
    return need

def nop_text(n):
    out = []
    while n > 0:
        k = min(n, 16); out.append('s_nop %d' % (k - 1)); n -= k
    return out

class Marker:
    def __init__(self, kind, **kw): self.kind = kind; self.kw = kw; self.nwait = 0; self.text = None; self.defs = []; self.uses = []

class Pool:
    def __init__(self, name, cls, regs):
        self.name = name; self.cls = cls; self.free = sorted(regs); self.all = set(regs); self.max_used = 0; self.names = {}
    def alloc(self, n=1, align=None, name=None):
        if align is None: align = 1 if n == 1 else 2
        fs = set(self.free)
        for r in self.free:
            if r % align: continue
            if all((r + i) in fs for i in range(n)):
                for i in range(n): self.free.remove(r + i); self.names[r + i] = name
                self.max_used = max(self.max_used, len(self.all) - len(self.free))
                return Reg(self.cls, r, n, self)
        raise RuntimeError('pool %s exhausted allocating %d (%s); live: %s' % (self.name, n, name, sorted(set(self.names[r] for r in self.all - fs if self.names.get(r)))))
    def alloc_at(self, i, n, name=None):
        for j in range(n):
            assert (i + j) in self.free, 'alloc_at busy %d (%s)' % (i + j, self.names.get(i + j))
            self.free.remove(i + j); self.names[i + j] = name
        self.max_used = max(self.max_used, len(self.all) - len(self.free))
        return Reg(self.cls, i, n, self)
    def release(self, reg):
        for i in range(reg.n):
            assert (reg.i + i) not in self.free, 'double free %s' % reg
            self.free.append(reg.i + i)
        self.free.sort()

class Reg:
    def __init__(self, cls, i, n=1, pool=None): self.cls = cls; self.i = i; self.n = n; self.pool = pool
    def __str__(self):
        return '%s%d' % (self.cls, self.i) if self.n == 1 else '%s[%d:%d]' % (self.cls, self.i, self.i + self.n - 1)
    __repr__ = __str__
    def __getitem__(self, k):
        if isinstance(k, slice):
            a = k.start or 0; b = self.n if k.stop is None else k.stop
            return Reg(self.cls, self.i + a, b - a)
        assert 0 <= k < self.n
        return Reg(self.cls, self.i + k, 1)
    def free(self): self.pool.release(self)

class Builder:
    def __init__(self):
        self.items = []; self.uid = 0
    def I(self, text, tag=None):
        for line in text.strip('\n').split('\n'):
            line = line.strip()
            if not line or line.startswith(';'): continue
            self.items.append(Inst(line, tag))
    __call__ = I
    def label(self, name): self.items.append(Inst(name + ':'))
    def newlabel(self, base='L'):
        self.uid += 1; return '%s_%d' % (base, self.uid)
    def wait_vm(self, tag): self.items.append(Marker('wait_vm', tag=tag))
    def wait_lgkm_all(self): self.items.append(Inst('s_waitcnt lgkmcnt(0)'))
    def loop_begin(self): self.items.append(Marker('loop_begin'))
    def loop_end(self): self.items.append(Marker('loop_end'))
    def drained(self, vm=True, lgkm=True): self.items.append(Marker('drained', vm=vm, lgkm=lgkm))
    def manual(self, on): self.items.append(Marker('manual', on=on))
    def comment(self, s): self.items.append(Marker('comment', s=s))
    def save(self): self.items.append(Marker('save'))
    def restore(self): self.items.append(Marker('restore'))
    def cond(self, on): self.items.append(Marker('cond', on=on))

    def _sim(self, items, st, waits):
        vm, lg, manual = st['vm'], st['lg'], st['manual']
        cond = False
        def after(q, j): return sum(1 for e in q[j + 1:] if not e[2])
        def trim(q, k):
            p = len(q); n = 0
            while p > 0:
                if not q[p - 1][2]:
                    if n == k: break
                    n += 1
                p -= 1
            if k == 0: p = len(q)
            del q[:p]
        i = 0
        n = len(items)
        while i < n:
            it = items[i]
            if isinstance(it, Marker):
                if it.kind == 'loop_begin':
                    depth = 1; j = i + 1
                    while True:
                        if isinstance(items[j], Marker):
                            if items[j].kind == 'loop_begin': depth += 1
                            if items[j].kind == 'loop_end':
                                depth -= 1
                                if depth == 0: break
                        j += 1
                    body = items[i + 1:j]
                    st2 = {'vm': vm, 'lg': lg, 'manual': manual}
                    for _ in range(3):
                        self._sim(body, st2, waits)
                    vm, lg, manual = st2['vm'], st2['lg'], st2['manual']
                    i = j + 1; continue
                if it.kind == 'wait_vm':
                    idx = [k for k, e in enumerate(vm) if e[1] == it.kw['tag']]
                    if idx:
                        cnt = after(vm, idx[-1])
                        self._req(waits, it, cnt, None); del vm[:idx[-1] + 1]
                    else:
                        self._req(waits, it, None, None)
                if it.kind == 'drained':
                    if it.kw['vm']: del vm[:]
                    if it.kw['lgkm']: del lg[:]
                if it.kind == 'manual': manual = it.kw['on']
                if it.kind == 'cond': cond = it.kw['on']
                if it.kind == 'save': st.setdefault('stack', []).append((list(vm), list(lg), manual))
                if it.kind == 'restore':
                    a_, b_, manual = st['stack'].pop(); vm[:] = a_; lg[:] = b_
                i += 1; continue
            if it.kind == 'wait':
                m = re.search(r'vmcnt\((\d+)\)', it.text)
                if m:
                    k = int(m.group(1))
                    trim(vm, k)
                m = re.search(r'lgkmcnt\((\d+)\)', it.text)
                if m:
                    k = int(m.group(1))
                    if any(e[1] == 'smem' for e in lg):
                        if k == 0: del lg[:]
                    else: trim(lg, k)
                i += 1; continue
            if it.kind in ('label', 'dir'):
                i += 1; continue
            touched = set(it.uses) | set(it.defs)
            if not manual:
                idx = [k for k, e in enumerate(vm) if e[0] & touched]
                if idx:
                    cnt = after(vm, idx[-1])
                    self._req(waits, it, cnt, None); del vm[:idx[-1] + 1]
                idx = [k for k, e in enumerate(lg) if e[0] & touched]
                if idx:
                    if any(e[1] == 'smem' for e in lg):
                        cnt = 0; self._req(waits, it, None, 0); del lg[:]
                    else:
                        cnt = after(lg, idx[-1])
                        self._req(waits, it, None, cnt); del lg[:idx[-1] + 1]
            if it.kind == 'vmld': vm.append((set(it.defs), it.tag, cond))
            elif it.kind in ('vmst', 'vmdma'): vm.append((set(), it.tag, cond))
            elif it.kind == 'dsr': lg.append((set(it.defs), 'ds', cond))
            elif it.kind == 'dsw': lg.append((set(), 'ds', cond))
            elif it.kind == 'smem':
                lg.append((set(it.defs), 'smem', cond))
            assert manual or len(vm) <= 63 + 64, 'vm queue overflow'
            i += 1
        st['vm'], st['lg'], st['manual'] = vm, lg, manual

    def _req(self, waits, it, vm, lg):
        a, b = waits.get(id(it), (None, None))
        if vm is not None: a = vm if a is None else min(a, vm)
        if lg is not None: b = lg if b is None else min(b, lg)
        waits[id(it)] = (a, b)

    def finalize(self):
        waits = {}
        self._sim(self.items, {'vm': [], 'lg': [], 'manual': False}, waits)
        seq = []
        for it in self.items:
            w = waits.get(id(it))
            if w and (w[0] is not None or w[1] is not None):
                parts = []
                if w[0] is not None: parts.append('vmcnt(%d)' % min(w[0], 63))
                if w[1] is not None: parts.append('lgkmcnt(%d)' % min(w[1], 15))
                seq.append(Inst('s_waitcnt ' + ' '.join(parts)))
            if isinstance(it, Marker):
                if it.kind == 'comment': seq.append(Inst('; ' + it.kw['s']))
                continue
            seq.append(it)
        labels = {it.op[:-1]: k for k, it in enumerate(seq) if it.kind == 'label'}
        extra = [0] * len(seq)
        WINDOW = 14
        def check(prev_list, k):
            changed = False
            return changed
        def need_at(k, path_before):
            c = seq[k]; dist = extra[k]; need = 0
            for p_idx in reversed(path_before):
                p = seq[p_idx]
                h = hazard_need(p, c) if p.kind in ('valu', 'salu', 'mfma', 'vmst') else 0
                if h > dist: need = max(need, h - dist)
                dist += p.nwait + extra[p_idx]
                if dist > WINDOW + 8: break
            return need
        real = [k for k, it in enumerate(seq) if it.kind not in ('label', 'dir') and it.text and not it.text.startswith(';')]
        pos = {k: n for n, k in enumerate(real)}
        for _ in range(4):
            changed = False
            for n, k in enumerate(real):
                nd = need_at(k, real[max(0, n - 30):n])
                if nd: extra[k] += nd; changed = True
            for n, k in enumerate(real):
                it = seq[k]
                if it.kind == 'branch' and it.note in labels:
                    tgt = labels[it.note]
                    after = [x for x in real if x > tgt][:30]
                    before = real[max(0, n - 30):n + 1]
                    for m_, x in enumerate(after):
                        nd = need_at(x, before + after[:m_])
                        if nd: extra[x] += nd; changed = True
            if not changed: break
        out = []
        for k, it in enumerate(seq):
            if extra[k]:
                for t in nop_text(extra[k]): out.append('  ' + t)
            if it.kind == 'label': out.append(it.text)
            else: out.append('  ' + it.text)
        self.stats = {'insts': len(real), 'nops': sum(1 for e in extra if e), 'nop_states': sum(extra)}
        return '\n'.join(out) + '\n'
```

```python
from asmgen import *
from layout import *

S_INST = 's26'
S_IDX  = 's27'
S_WAVE = 's28'
S_KA   = 's[30:31]'
SRD_WS = 's[8:11]'

def srd(k, base, lo, hi, nbytes):
    k(f's_mov_b32 s{base}, s{lo}')
    k(f's_and_b32 s{base+1}, s{hi}, 0xffff')
    k(f's_mov_b32 s{base+2}, {hex(nbytes)}')
    k(f's_mov_b32 s{base+3}, 0x20000')

def load_srd(k, base, ka_reg, ka_off, nbytes, tmp=4):
    k(f's_load_dwordx2 s[{tmp}:{tmp+1}], {ka_reg}, {ka_off}')
    k('s_waitcnt lgkmcnt(0)')
    srd(k, base, tmp, tmp + 1, nbytes)

def prologue_common(k, vlane):
    load_srd(k, 8, 's[0:1]', KA_WS, WS_BYTES)
    k(f'v_lshrrev_b32 v1, 6, v0')
    k(f'v_readfirstlane_b32 {S_WAVE}, v1')
    k(f'v_and_b32 {vlane}, 63, v0')

def inst_kernarg(k):
    k(f's_mul_i32 s4, {S_INST}, 56')
    k(f's_add_u32 s30, s0, s4')
    k(f's_addc_u32 s31, s1, 0')

KD = """
.section .rodata,"a"
.p2align 6
.amdhsa_kernel {name}
  .amdhsa_next_free_vgpr 512
  .amdhsa_next_free_sgpr 102
  .amdhsa_accum_offset 256
  .amdhsa_group_segment_fixed_size 0
  .amdhsa_kernarg_size 136
  .amdhsa_user_sgpr_count 2
  .amdhsa_user_sgpr_kernarg_segment_ptr 1
  .amdhsa_system_sgpr_workgroup_id_x 1
.end_amdhsa_kernel
.text
"""
def kernel_head(name):
    return f".globl {name}\n.p2align 8\n.type {name},@function\n{name}:\n"


DBG_PTR = 's[24:25]'

def init_arrive(k, vt):
    L = k.newlabel('IA')
    k('s_waitcnt vmcnt(0)'); k('s_barrier')
    k(f's_cmp_lg_u32 {S_WAVE}, 0'); k(f's_cbranch_scc1 {L}')
    k(f'v_mov_b32 {vt[0]}, 32'); k(f'v_mov_b32 {vt[1]}, 1')
    k('s_mov_b64 exec, 1')
    k(f'global_atomic_add {vt[0]}, {vt[1]}, {DBG_PTR}')
    k('s_mov_b64 exec, -1')
    k('s_waitcnt vmcnt(0)')
    k.label(L)

def init_wait(k, vt, spin=0x400000):
    L, LX = k.newlabel('IW'), k.newlabel('IWX')
    k(f'v_mov_b32 {vt[1]}, 32')
    k('s_mov_b32 s7, 0')
    k.label(L)
    k(f'global_load_dword {vt[0]}, {vt[1]}, {DBG_PTR} sc1')
    k('s_add_u32 s7, s7, 1'); k(f's_cmp_gt_u32 s7, {hex(spin)}'); k(f's_cbranch_scc1 {LX}')
    k('s_waitcnt vmcnt(0)')
    k(f'v_readfirstlane_b32 s6, {vt[0]}')
    k('s_cmp_ge_u32 s6, 256'); k(f's_cbranch_scc1 {LX}')
    k('s_sleep 2'); k(f's_branch {L}')
    k.label(LX)
    k('s_waitcnt vmcnt(0)')

def zero_flag(k, s_off, vt):
    k(f'v_mov_b32 {vt[0]}, 0'); k(f'v_mov_b32 {vt[1]}, 0')
    k('s_mov_b64 exec, 1')
    k(f'buffer_store_dword {vt[0]}, {vt[1]}, {SRD_WS}, {s_off} offen sc1')
    k('s_mov_b64 exec, -1')

WFL = {'chain': ' nt', 'chainkv': '', 'kv': '', 'qatt': ' nt', 'wo': ' nt'}
```

```python
MB = 1 << 20
KVX  = 0
KVM  = 64 * MB
OF   = 80 * MB
WOP  = 112 * MB
WSTR = 152 * MB
PART = 156 * MB
PART_BUF = 393216
MEMR = 158 * MB
FLAGS = 159 * MB
WS_BYTES = 256 * MB
F_KVD = FLAGS
F_KVM = FLAGS + 64 * 128
F_OD  = FLAGS + 128 * 128
F_WOP = FLAGS + 192 * 128
X_BYTES = 2048 * 640 * 2
W_BYTES = 640 * 4096 * 2
MEM0_BYTES = 8 * 640 * 2
OUT_BYTES = 2048 * 1280 * 2
def ka_x(i): return 0 + 56 * i
def ka_mem0(i): return 8 + 56 * i
def ka_wq(i): return 16 + 56 * i
def ka_wk(i): return 24 + 56 * i
def ka_wv(i): return 32 + 56 * i
def ka_wo(i): return 40 + 56 * i
KA_OUT = 112; KA_DBG = 120; KA_WS = 128
```

```python
from common import *
from role_qatt import poll_flag
import math
TIMING = False
DBG_STEPS = 0
NOPOISON = False
SPIN = 0x40000
SAFE_FLAG = 's25'

XQK = 0; OX = 0; TC = 4096; MEM = 6144; WL = 16384

def ops_list():
    ops = []
    for M in 'QKV':
        for c in range(10):
            for t in range(2): ops.append((M, t, c))
    for i in range(10):
        for c2 in range(2): ops.append(('O', i, c2))
    return ops
G_UNITS = [('Q', 0), ('K', 9), ('Q', 9), ('O', 4, 1)]
L_UNITS = [('V', 2), ('V', 3), ('V', 4), ('V', 5), ('V', 6), ('O', 1, 0), ('O', 1, 1), ('O', 2, 0), ('O', 2, 1)]
G01 = 64
def unit_of(op):
    if op[0] == 'O': return ('O', op[1] >> 1, op[2]), op[1] & 1
    return (op[0], op[2]), op[1]
def all_units():
    u = []
    for M in 'QKV':
        for c in range(10): u.append((M, c))
    for ip in range(5):
        for c2 in range(2): u.append(('O', ip, c2))
    return u
def classify():
    src = {}; nR = 0
    for op in ops_list():
        u, o = unit_of(op)
        if u in G_UNITS: src[op] = ('G', G_UNITS.index(u) * 2 + o)
        elif u in L_UNITS: src[op] = ('L', L_UNITS.index(u), o)
        else:
            reg = Reg('a', 8 * nR, 8) if nR < 32 else Reg('v', 80 + 8 * (nR - 32), 8)
            src[op] = ('R', reg); nR += 1
    assert nR == 54
    return src
SRC = classify()
def unit_ops(u):
    if u[0] == 'O': return [('O', 2 * u[1], u[2]), ('O', 2 * u[1] + 1, u[2])]
    return [(u[0], 0, u[1]), (u[0], 1, u[1])]

v16l, vBL, vIDX, vXW, vXR, vOW, vPS, vLN = 'v0', 'v1', 'v2', 'v3', 'v4', 'v5', 'v6', 'v7'
S_SEG, S_KX, S_KVM, S_PCUR, S_POTH, S_MNEXT, S_MPOI, S_WSTR = 's32', 's33', 's34', 's35', 's36', 's37', 's38', 's39'
M_N2, M_N8, M_N4 = 's[44:45]', 's[46:47]', 's[48:49]'
S_C = 's50'
S_RED = 's51'
S_RLD, S_RPUB = 's52', 's53'
S_PST = 's54'
S_PST2 = 's55'
S_PB, S_MB = 's56', 's57'
S_FKVM, S_FKVD = 's58', 's59'

def startup_weights(k, pool):
    units = [u for u in all_units() if u not in L_UNITS]
    assert len(units) == 31
    for n in range(31, 40): units.append(L_UNITS[n % 9])
    load_srd(k, 12, S_KA, 16, W_BYTES); load_srd(k, 16, S_KA, 24, W_BYTES)
    load_srd(k, 20, S_KA, 32, W_BYTES); load_srd(k, 60, S_KA, 40, W_BYTES)
    SR = {'Q': 's[12:15]', 'K': 's[16:19]', 'V': 's[20:23]', 'O': 's[60:63]'}
    t = pool.alloc(8, name='st')
    vWq, vWo, vTq0, vTq1, vTo0, vTo1 = [t[i] for i in range(6)]
    a, b = t[6], t[7]
    k(f's_and_b32 s4, {S_WAVE}, 1'); k('s_lshl_b32 s4, s4, 1')
    k(f's_lshr_b32 s5, {S_WAVE}, 1'); k('s_lshl_b32 s5, s5, 2'); k('s_or_b32 s4, s4, s5')
    k(f'v_bfe_u32 {a}, {vLN}, 4, 1'); k(f'v_or_b32 {a}, s4, {a}'); k(f'v_lshlrev_b32 {a}, 1, {a}')
    k(f'v_and_b32 {b}, 15, {vLN}'); k(f'v_xor_b32 {a}, {a}, {b}'); k(f'v_lshlrev_b32 {a}, 4, {a}')
    k(f's_lshl_b32 s4, {S_WAVE}, 2')
    k(f'v_lshrrev_b32 {b}, 4, {vLN}'); k(f'v_add_u32 {b}, s4, {b}')
    k(f'v_lshl_add_u32 {vWq}, {b}, 13, {a}')
    k(f'v_mul_u32_u24 {b}, 1280, {b}'); k(f'v_add_u32 {vWo}, {b}, {a}')
    x = pool.alloc(4, name='st2')
    k(f'v_bfe_u32 {x[0]}, {vLN}, 2, 1')
    k(f'v_bfe_u32 {x[1]}, {vLN}, 3, 1')
    k(f'v_bfe_u32 {x[2]}, {vLN}, 4, 1')
    k(f'v_lshrrev_b32 {x[3]}, 5, {vLN}')
    k(f'v_lshl_or_b32 {a}, {x[2]}, 1, {x[0]}'); k(f'v_lshl_or_b32 {a}, {x[1]}, 2, {a}')
    k(f'v_lshl_or_b32 {b}, {x[1]}, 3, {x[0]}'); k(f'v_lshl_or_b32 {b}, {x[2]}, 2, {b}'); k(f'v_lshl_or_b32 {b}, {x[3]}, 4, {b}')
    k(f'v_lshlrev_b32 {b}, 8, {b}')
    k(f'v_and_b32 {x[0]}, 3, {vLN}'); k(f'v_lshl_add_u32 {b}, {x[0]}, 3, {b}')
    k(f's_lshl_b32 s4, {S_WAVE}, 1')
    k(f'v_xor_b32 {x[0]}, s4, {a}'); k(f'v_lshl_add_u32 {vTq0}, {x[0]}, 5, {b}')
    k(f'v_xor_b32 {vTq1}, 32, {vTq0}')
    k(f'v_xor_b32 {x[0]}, {S_WAVE}, {a}'); k(f'v_lshl_add_u32 {vTo0}, {x[0]}, 5, {b}')
    k(f'v_xor_b32 {vTo1}, 128, {vTo0}')
    x.free()
    k(f's_lshl_b32 s40, {S_IDX}, 8'); k(f's_mul_i32 s41, {S_IDX}, {128*1280}'); k(f's_lshl_b32 s42, {S_WAVE}, 10')
    def dma(n):
        u = units[n]; slot = n % 9
        for mm in range(4):
            k(f's_add_u32 m0, s42, {WL + slot * 16384 + mm * 4096}')
            if u[0] == 'O':
                k(f's_add_u32 s5, s41, {(64 * u[2] + 16 * mm) * 1280 + u[1] * 256}')
                k(f'buffer_load_dwordx4 {vWo}, {SR["O"]}, s5 offen lds')
            else:
                k(f's_add_u32 s5, s40, {(64 * u[1] + 16 * mm) * 8192}')
                k(f'buffer_load_dwordx4 {vWq}, {SR[u[0]]}, s5 offen lds')
    tmp = pool.alloc(16, align=2, name='wtmp')
    ad = pool.alloc(2, name='wad')
    k.manual(True)
    DEPTH = 8
    q = []
    def issue(n):
        dma(n); q.extend([n] * 4)
    for n in range(DEPTH): issue(n)
    for n in range(40):
        u = units[n]; slot = n % 9
        last = max(i for i, e in enumerate(q) if e == n)
        k(f's_waitcnt vmcnt({min(63, len(q) - 1 - last)}) lgkmcnt(0)'); del q[:last + 1]
        k('s_barrier')
        if n + DEPTH < 40 and n >= 0:
            issue(n + DEPTH)
        a0, a1 = (vTo0, vTo1) if u[0] == 'O' else (vTq0, vTq1)
        k(f'v_add_u32 {ad[0]}, {WL + slot * 16384}, {a0}')
        k(f'v_add_u32 {ad[1]}, {WL + slot * 16384}, {a1}')
        dsts = []
        for o, op in enumerate(unit_ops(u)):
            s = SRC[op]
            dst = s[1] if s[0] == 'R' else tmp[8 * o:8 * o + 8]
            dsts.append((s, dst))
            for p in range(4):
                off = (32 * (p >> 1) + 2 * (p & 1)) * 256
                k(f'ds_read_b64_tr_b16 {dst[2*p:2*p+2]}, {ad[o]} offset:{off}')
        kind = dsts[0][0][0]
        if kind == 'G':
            k('s_waitcnt lgkmcnt(0)')
            for s, dst in dsts:
                for hh in range(2):
                    k(f's_add_u32 s5, {S_WSTR}, {s[1] * 2048 + hh * 1024}')
                    k(f'buffer_store_dwordx4 {dst[4*hh:4*hh+4]}, {v16l}, {SRD_WS}, s5 offen'); q.append('st')
            k('s_waitcnt vmcnt(%d)' % 0 if False else 's_nop 1')
        if kind == 'L':
            k('s_waitcnt lgkmcnt(0)')
            k('s_barrier')
            k(f's_lshl_b32 s4, {S_WAVE}, 12')
            k(f'v_add_u32 {ad[0]}, s4, {v16l}')
            k(f'v_add_u32 {ad[0]}, {WL + slot * 16384}, {ad[0]}')
            for o, (s, dst) in enumerate(dsts):
                for hh in range(2):
                    k(f'ds_write_b128 {ad[0]}, {dst[4*hh:4*hh+4]} offset:{o*2048 + hh*1024}')
    k('s_waitcnt vmcnt(0) lgkmcnt(0)')
    k('s_barrier')
    k.manual(False); k.drained()
    t.free(); tmp.free(); ad.free()

def smf(k, acc, A, B): k(f'v_smfmac_f32_16x16x64_bf16 {acc}, {A}, {B}, {vIDX}')

INTEGRATED = False
SAFE = [False]
def stf(): return ' sc1' if SAFE[0] else ''

def role_chain(k):
    pool = Pool('chain', 'v', range(8, 80))
    k(f'v_mov_b32 {vLN}, v2')
    inst_kernarg(k)
    k(f'v_lshlrev_b32 {v16l}, 4, {vLN}')
    k(f's_lshl_b32 s4, {S_INST}, 5'); k(f's_add_u32 s4, s4, {S_IDX}'); k('s_lshl_b32 s4, s4, 2'); k(f's_add_u32 s4, s4, {S_WAVE}')
    k(f's_lshl_b32 s4, s4, 14'); k(f's_add_u32 {S_WSTR}, s4, {WSTR}')
    startup_weights(k, pool)
    t = pool.alloc(6, name='init')
    a, b, c_, d = t[0], t[1], t[2], t[3]
    k(f'v_and_b32 {a}, 15, {vLN}'); k(f'v_lshrrev_b32 {b}, 4, {vLN}')
    k(f'v_and_b32 {c_}, 2, {vLN}'); k(f'v_cmp_ne_u32 {M_N2}, 0, {c_}')
    k(f'v_cmp_gt_u32 {M_N8}, 8, {a}'); k(f'v_cmp_gt_u32 {M_N4}, 4, {a}')
    k(f'v_and_b32 {c_}, 1, {vLN}'); k(f'v_cmp_ne_u32 vcc, 0, {c_}')
    k(f'v_mov_b32 {d}, 0x44444444'); k(f'v_mov_b32 {vIDX}, 0xeeeeeeee'); k(f'v_cndmask_b32 {vIDX}, {d}, {vIDX}, vcc')
    k(f's_lshl_b32 s4, {S_WAVE}, 12'); k(f's_add_u32 s4, s4, {WL}'); k(f'v_add_u32 {vBL}, s4, {v16l}')
    k(f's_lshl_b32 s4, {S_WAVE}, 10'); k(f'v_lshlrev_b32 {c_}, 5, {a}'); k(f'v_lshl_add_u32 {c_}, {b}, 3, {c_}'); k(f'v_add_u32 {vXW}, s4, {c_}')
    k(f'v_bfe_u32 {c_}, {vLN}, 2, 2'); k(f'v_lshl_add_u32 {c_}, {b}, 3, {c_}'); k(f'v_lshlrev_b32 {c_}, 5, {c_}')
    k(f'v_and_b32 {d}, 3, {vLN}'); k(f'v_lshl_add_u32 {c_}, {d}, 3, {c_}'); k(f'v_add_u32 {vXR}, s4, {c_}')
    k(f'v_lshrrev_b32 {c_}, 2, {a}'); k(f'v_lshlrev_b32 {c_}, 1, {c_}'); k(f'v_and_b32 {d}, 1, {a}'); k(f'v_or_b32 {c_}, {c_}, {d}')
    k(f'v_lshlrev_b32 {c_}, 1, {c_}'); k(f'v_lshrrev_b32 {d}, 1, {b}'); k(f'v_or_b32 {c_}, {c_}, {d}')
    k(f'v_lshlrev_b32 {c_}, 4, {c_}'); k(f'v_and_b32 {d}, 1, {b}'); k(f'v_lshl_add_u32 {c_}, {d}, 3, {c_}')
    k(f's_lshr_b32 s4, {S_WAVE}, 1'); k('s_lshl_b32 s4, s4, 10'); k(f's_and_b32 s5, {S_WAVE}, 1'); k('s_lshl_b32 s5, s5, 9'); k('s_add_u32 s4, s4, s5')
    k(f'v_add_u32 {vOW}, s4, {c_}')
    k(f'v_lshrrev_b32 {c_}, 2, {a}'); k(f'v_lshlrev_b32 {c_}, 13, {c_}'); k(f'v_and_b32 {d}, 3, {a}'); k(f'v_lshl_add_u32 {d}, {b}, 2, {d}')
    k(f'v_lshl_add_u32 {vPS}, {d}, 4, {c_}')
    k(f's_mov_b32 {S_C}, {hex(f32bits(128 ** -0.5 * math.log2(math.e)))}')
    k(f's_mul_i32 {S_PB}, {S_INST}, {2*PART_BUF}'); k(f's_add_u32 {S_PB}, {S_PB}, {PART}')
    k(f's_mul_i32 {S_MB}, {S_INST}, {3*16384}'); k(f's_add_u32 {S_MB}, {S_MB}, {MEMR}')
    k(f's_lshl_b32 s4, {S_WAVE}, 15'); k(f's_lshl_b32 s5, {S_IDX}, 8'); k(f's_add_u32 {S_PST}, s4, s5')
    k(f's_lshl_b32 s4, {S_WAVE}, 14'); k(f's_lshl_b32 s5, {S_IDX}, 7'); k(f's_add_u32 {S_PST2}, s4, s5'); k(f's_add_u32 {S_PST2}, {S_PST2}, 262144')
    k(f's_mov_b32 {S_RED}, 0')
    k(f's_cmp_eq_u32 {S_WAVE}, 0'); k(f's_cselect_b32 {S_RED}, 1, 0')
    k(f's_cmp_lt_u32 {S_IDX}, 16'); k('s_cselect_b32 s4, 2, 0'); k(f's_cmp_eq_u32 {S_WAVE}, 1'); k(f's_cselect_b32 {S_RED}, s4, {S_RED}')
    k(f's_bfe_u32 s4, {S_IDX}, 0x20002'); k('s_lshl_b32 s4, s4, 8')
    k(f's_bfe_u32 s5, {S_IDX}, 0x10001'); k('s_lshl_b32 s5, s5, 4'); k('s_add_u32 s4, s4, s5')
    k(f's_and_b32 s5, {S_IDX}, 1'); k('s_lshl_b32 s5, s5, 3'); k('s_add_u32 s4, s4, s5')
    k(f's_lshr_b32 s5, {S_IDX}, 4'); k('s_lshl_b32 s5, s5, 12'); k('s_add_u32 s5, s5, s4')
    k('s_add_u32 s4, s4, 8192')
    k(f's_cmp_eq_u32 {S_RED}, 2'); k(f's_cselect_b32 {S_RPUB}, s4, s5')
    k(f's_lshl_b32 s4, {S_IDX}, 12'); k('s_add_u32 s4, s4, 262144'); k(f's_lshl_b32 s5, {S_IDX}, 13')
    k(f's_cmp_eq_u32 {S_RED}, 2'); k(f's_cselect_b32 {S_RLD}, s4, s5')
    k(f's_lshl_b32 s4, {S_INST}, 11'); k(f's_add_u32 s4, s4, {S_IDX}')
    k(f's_lshl_b32 {S_KX}, s4, 14'); k(f's_lshl_b32 s5, {S_WAVE}, 11'); k(f's_add_u32 {S_KX}, {S_KX}, s5')
    if KVX: k(f's_add_u32 {S_KX}, {S_KX}, {KVX}')
    k(f's_lshl_b32 {S_KVM}, s4, 12'); k(f's_lshl_b32 s5, {S_WAVE}, 10'); k(f's_add_u32 {S_KVM}, {S_KVM}, s5'); k(f's_add_u32 {S_KVM}, {S_KVM}, {KVM}')
    k(f's_lshl_b32 s4, {S_INST}, 5'); k(f's_add_u32 s4, s4, {S_IDX}'); k('s_lshl_b32 s4, s4, 7')
    k(f's_add_u32 {S_FKVM}, s4, {F_KVM}'); k(f's_add_u32 {S_FKVD}, s4, {F_KVD}')
    k(f's_mov_b32 {S_SEG}, 0')
    k(f's_mov_b32 {S_PCUR}, {S_PB}'); k(f's_add_u32 {S_POTH}, {S_PB}, {PART_BUF}')
    k(f's_add_u32 {S_MNEXT}, {S_MB}, 16384'); k(f's_mov_b32 {S_MPOI}, {S_MB}')
    if INTEGRATED:
        chain_init(k, pool)
    load_srd(k, 12, S_KA, 8, MEM0_BYTES)
    k(f'v_bfe_u32 {c_}, {vLN}, 1, 3'); k(f'v_mul_u32_u24 {c_}, 1280, {c_}')
    k(f'v_lshl_add_u32 {c_}, {b}, 5, {c_}'); k(f'v_and_b32 {d}, 1, {vLN}'); k(f'v_lshl_add_u32 {c_}, {d}, 4, {c_}')
    m0r = pool.alloc(12, align=2, name='m0')
    k(f's_lshl_b32 s4, {S_WAVE}, 7')
    for j in range(3):
        k(f's_add_u32 s5, s4, {j * 512}')
        k(f'buffer_load_dwordx4 {m0r[4*j:4*j+4]}, {c_}, s[12:15], s5 offen')
    k(f's_lshl_b32 s4, {S_WAVE}, 10'); k(f'v_add_u32 {d}, s4, {v16l}')
    k(f'ds_write_b128 {d}, {m0r[0:4]} offset:{MEM}')
    k(f'ds_write_b128 {d}, {m0r[4:8]} offset:{MEM + 4096}')
    L1 = k.newlabel('CH_M0')
    k(f's_cmp_ge_u32 {S_WAVE}, 2'); k(f's_cbranch_scc1 {L1}')
    k(f'ds_write_b128 {d}, {m0r[8:12]} offset:{MEM + 8192}')
    k.label(L1)
    z = m0r
    k('s_waitcnt vmcnt(0) lgkmcnt(0)')
    for i in range(4): k(f'v_mov_b32 {z[i]}, 0')
    k(f'ds_write_b128 {v16l}, {z[0:4]} offset:{TC}')
    k('s_waitcnt lgkmcnt(0)')
    k('s_barrier')
    k.drained()
    m0r.free(); t.free()
    g0, g1 = pool.alloc_at(G01, 8), pool.alloc_at(G01 + 8, 8)
    gload(k, g0, 0); gload(k, g1, 1)
    k('s_waitcnt vmcnt(0)'); k.drained()
    g0.free(); g1.free()
    if TIMING:
        k('s_memtime s[64:65]'); k('s_memrealtime s[66:67]'); k('s_waitcnt lgkmcnt(0)')
        for i in range(8): k(f's_mov_b32 s{80+i}, 0')
    LEND = k.newlabel('CH_END')
    if INTEGRATED:
        vt = pool.alloc(2, name='iw')
        init_wait(k, vt)
        k(f's_lshl_b32 s4, {S_INST}, 2'); k(f'v_mov_b32 {vt[1]}, s4')
        k(f'global_load_dword {vt[0]}, {vt[1]}, {DBG_PTR} sc1'); k('s_waitcnt vmcnt(0)')
        k(f'v_readfirstlane_b32 s6, {vt[0]}')
        k('s_mov_b32 s60, s6')
        k('s_mov_b32 s61, 1'); poll_flag(k, S_FKVD, 's61', vt, 'CH_KV0')
        vt.free()
        k.drained()
        LSAFE = k.newlabel('CH_SAFE')
        k('s_cmp_lt_u32 s60, 32'); k(f's_cbranch_scc1 {LSAFE}')
        for safe in (False, True):
            SAFE[0] = safe
            if safe: k.label(LSAFE); k.drained()
            LOOP = k.newlabel('CH_LOOP'); k.label(LOOP)
            step(k, pool, LOOP, LEND)
        SAFE[0] = False
    else:
        LOOP = k.newlabel('CH_LOOP')
        k.label(LOOP)
        step(k, pool, LOOP, LEND)
    k.label(LEND)
    if TIMING:
        k('s_memtime s[68:69]'); k('s_memrealtime s[70:71]'); k('s_waitcnt lgkmcnt(0)')
        k('s_sub_u32 s68, s68, s64'); k('s_sub_u32 s70, s70, s66')
        k('s_load_dwordx2 s[72:73], s[0:1], 120'); k('s_waitcnt lgkmcnt(0)')
        k(f's_lshl_b32 s74, {S_INST}, 5'); k(f's_add_u32 s74, s74, {S_IDX}'); k('s_lshl_b32 s74, s74, 2'); k(f's_add_u32 s74, s74, {S_WAVE}'); k('s_lshl_b32 s74, s74, 6')
        k('v_mov_b32 v8, s74'); k('v_add_u32 v8, 1024, v8')
        k('v_mov_b32 v12, s68'); k('v_mov_b32 v13, s70'); k('v_mov_b32 v14, s66'); k('v_mov_b32 v15, 0')
        k('global_store_dwordx4 v8, v[12:15], s[72:73]')
        for j in range(2):
            for i in range(4): k(f'v_mov_b32 v{16+4*j+i}, s{80+4*j+i}')
            k(f'global_store_dwordx4 v8, v[{16+4*j}:{19+4*j}], s[72:73] offset:{16+16*j}')
        k('s_waitcnt vmcnt(0)')

def chain_init(k, pool):
    p = pool.alloc(4, name='ip'); a = pool.alloc(2, name='ia')
    zero_flag(k, S_FKVM, a)
    L = k.newlabel('CI')
    k(f's_cmp_eq_u32 {S_RED}, 0'); k(f's_cbranch_scc1 {L}')
    for i in range(4): k(f'v_mov_b32 {p[i]}, -1')
    for b in range(2):
        k(f's_add_u32 s5, {S_PB}, {S_RLD}')
        if b: k(f's_add_u32 s5, s5, {PART_BUF}')
        for m in range(4): k(f'buffer_store_dwordx4 {p}, {v16l}, {SRD_WS}, s5 offen offset:{m * 1024} sc1')
        L2 = k.newlabel('CI2')
        k(f's_cmp_eq_u32 {S_RED}, 2'); k(f's_cbranch_scc1 {L2}')
        k('s_add_u32 s5, s5, 4096')
        for m in range(4): k(f'buffer_store_dwordx4 {p}, {v16l}, {SRD_WS}, s5 offen offset:{m * 1024} sc1')
        k.label(L2)
    pub_addr(k, a[0], a[1])
    k(f's_cmp_eq_u32 {S_RED}, 2'); k(f's_cselect_b64 exec, {M_N4}, {M_N8}')
    for b in range(3):
        k(f's_add_u32 s5, {S_MB}, {S_RPUB}')
        if b: k(f's_add_u32 s5, s5, {b * 16384}')
        k(f'buffer_store_dwordx2 {p[0:2]}, {a[0]}, {SRD_WS}, s5 offen sc1')
    k('s_mov_b64 exec, -1')
    k.label(L)
    init_arrive(k, a)
    k.drained()
    p.free(); a.free()

def f32bits(x):
    import struct
    return struct.unpack('<I', struct.pack('<f', x))[0]

STAMP = [0]
def stamp(k, i):
    if not TIMING: return
    k('s_memtime s[76:77]'); k('s_waitcnt lgkmcnt(0)')
    k('s_sub_u32 s78, s76, s79'); k(f's_add_u32 s{80+i}, s{80+i}, s78'); k('s_mov_b32 s79, s76')

def gload(k, dst, gi):
    k(f's_add_u32 s5, {S_WSTR}, {gi * 2048}')
    k(f'buffer_load_dwordx4 {dst[0:4]}, {v16l}, {SRD_WS}, s5 offen')
    k(f'buffer_load_dwordx4 {dst[4:8]}, {v16l}, {SRD_WS}, s5 offen offset:1024')

def zero(k, r):
    for i in range(0, r.n, 2): k(f'v_mov_b64 {r[i:i+2]}, 0')

def step(k, pool, LOOP, LEND):
    if TIMING:
        k('s_memtime s[76:77]'); k('s_waitcnt lgkmcnt(0)'); k('s_mov_b32 s79, s76')
    G0, G1 = pool.alloc_at(G01, 8, 'G0'), pool.alloc_at(G01 + 8, 8, 'G1')
    accq = [pool.alloc(4, name='q0'), pool.alloc(4, name='q1')]
    acck = [pool.alloc(4, name='k0'), pool.alloc(4, name='k1')]
    for r in accq + acck: zero(k, r)
    A = [pool.alloc(4, name=f'A{i}') for i in range(3)]
    G2, G3 = pool.alloc(8, name='G2'), pool.alloc(8, name='G3')
    def rdA(c): k(f'ds_read_b128 {A[c % len(A)]}, {v16l} offset:{MEM + c * 1024}')
    rdA(0); rdA(1)
    gload(k, G2, 2); gload(k, G3, 3)
    KX = pool.alloc(8, name='KX')
    gmap = {('Q', 0, 0): G0, ('Q', 1, 0): G1, ('K', 0, 9): G2, ('K', 1, 9): G3, ('Q', 0, 9): G0, ('Q', 1, 9): G1}
    def B(op):
        s = SRC[op]
        return s[1] if s[0] == 'R' else gmap[op]
    for c in range(10):
        if c + 2 < 10: rdA(c + 2)
        if c == 4:
            k(f'buffer_load_dwordx4 {KX[0:4]}, {v16l}, {SRD_WS}, {S_KX} offen nt')
            k(f'buffer_load_dwordx4 {KX[4:8]}, {v16l}, {SRD_WS}, {S_KX} offen offset:1024 nt')
        if c < 9:
            for t in range(2): smf(k, accq[t], A[c % 3], B(('Q', t, c)))
            for t in range(2): smf(k, acck[t], A[c % 3], B(('K', t, c)))
        else:
            for t in range(2): smf(k, acck[t], A[c % 3], B(('K', t, c)))
            for t in range(2): smf(k, accq[t], A[c % 3], B(('Q', t, c)))
        if c == 0:
            gload(k, G0, 4); gload(k, G1, 5)
    for g_ in (G0, G1, G2, G3): g_.free()
    stamp(k, 0)
    W = pool.alloc(4, name='W')
    KV4 = pool.alloc(4, name='KV4')
    for t in range(2):
        for acc in (acck[t], accq[t]):
            k(f'v_add_f32 {acc[0]}, {acc[0]}, {acc[1]}'); k(f'v_add_f32 {acc[2]}, {acc[2]}, {acc[3]}')
        k(f'v_cvt_pk_bf16_f32 {W[2*t]}, {acck[t][0]}, {acck[t][2]}')
        k(f'v_cvt_pk_bf16_f32 {W[2*t+1]}, {accq[t][0]}, {accq[t][2]}')
        k(f'v_mov_b32 {KV4[2*t]}, {W[2*t]}')
        k(f'ds_write_b64 {vXW}, {W[2*t:2*t+2]} offset:{XQK + t * 512}')
    for r in accq + acck: r.free()
    accv = [pool.alloc(4, name='v0'), pool.alloc(4, name='v1')]
    for r in accv: zero(k, r)
    k('s_waitcnt lgkmcnt(0)'); k('s_barrier'); k.drained(vm=False)
    W.free()
    rdA(0); rdA(1)
    LS = [pool.alloc(8, name='L0'), pool.alloc(8, name='L1')]
    bl = pool.alloc(1, name='bl')
    k(f'v_add_u32 {bl}, 65536, {vBL}')
    def lload(slot, U, o, vphase):
        base = U * 16384 + o * 2048
        if vphase:
            ad, off = (vBL, base) if U < 4 else (str(bl), base - 65536)
        else:
            ad, off = str(bl), base - 81920
        k(f'ds_read_b128 {LS[slot][0:4]}, {ad} offset:{off}')
        k(f'ds_read_b128 {LS[slot][4:8]}, {ad} offset:{off + 1024}')
    vops = [('V', t, c) for c in range(10) for t in range(2)]
    lops = [op for op in vops if SRC[op][0] == 'L']
    li = {op: i for i, op in enumerate(lops)}
    for i in range(2): lload(i, SRC[lops[i]][1], SRC[lops[i]][2], True)
    for c in range(10):
        if c + 2 < 10: rdA(c + 2)
        for t in range(2):
            op = ('V', t, c); s = SRC[op]
            Bv = s[1] if s[0] == 'R' else LS[li[op] % 2]
            smf(k, accv[t], A[c % 3], Bv)
            if s[0] == 'L' and li[op] + 2 < len(lops):
                nx = lops[li[op] + 2]; lload(li[op] % 2, SRC[nx][1], SRC[nx][2], True)
    for a_ in A: a_.free()
    for l_ in LS: l_.free()
    stamp(k, 1)
    for t in range(2):
        k(f'v_add_f32 {accv[t][0]}, {accv[t][0]}, {accv[t][1]}'); k(f'v_add_f32 {accv[t][2]}, {accv[t][2]}, {accv[t][3]}')
        k(f'v_cvt_pk_bf16_f32 {KV4[2*t+1]}, {accv[t][0]}, {accv[t][2]}')
    for r in accv: r.free()
    k(f'buffer_store_dwordx4 {KV4}, {v16l}, {SRD_WS}, {S_KVM} offen sc1', tag='kvm')
    LCONT = k.newlabel('CH_CONT')
    k(f's_cmp_lt_u32 {S_SEG}, 63'); k(f's_cbranch_scc1 {LCONT}')
    k.save()
    k('s_waitcnt vmcnt(0)'); k('s_barrier')
    flag_store(k, pool, S_FKVM, '64')
    k('s_waitcnt vmcnt(0)')
    k(f's_branch {LEND}')
    k.restore()
    k.label(LCONT)
    VX = pool.alloc(8, name='VX')
    k(f's_add_u32 s5, {S_KX}, 8192')
    k(f'buffer_load_dwordx4 {VX[0:4]}, {v16l}, {SRD_WS}, s5 offen nt')
    k(f'buffer_load_dwordx4 {VX[4:8]}, {v16l}, {SRD_WS}, s5 offen offset:1024 nt')
    X = [pool.alloc(4, name=f'X{m}') for m in range(4)]
    xa = pool.alloc(1, name='xa')
    for m in range(4):
        ad = vXR
        if m:
            k(f'v_xor_b32 {xa}, {m * 1024}, {vXR}'); ad = str(xa)
        k(f'ds_read_b64_tr_b16 {X[m][0:2]}, {ad} offset:{XQK}')
        k(f'ds_read_b64_tr_b16 {X[m][2:4]}, {ad} offset:{XQK + 128}')
    xa.free()
    TX = [pool.alloc(4, name='TX0'), pool.alloc(4, name='TX1')]
    TM = pool.alloc(4, name='TM')
    for t in range(2): k(f'v_mfma_f32_16x16x32_bf16 {TX[t]}, {KX[4*t:4*t+4]}, {X[0]}, 0')
    for m in range(4): k(f'v_mfma_f32_16x16x32_bf16 {TM}, {X[m]}, {X[m]}, ' + ('0' if m == 0 else str(TM)))
    KX.free()
    for x_ in X: x_.free()
    k(f's_mov_b64 vcc, {M_N2}')
    for r in range(4):
        k(f'v_cndmask_b32_dpp {TX[0][r]}, {TX[1][r]}, {TX[0][r]}, vcc quad_perm:[2,3,2,3] row_mask:0xf bank_mask:0xf')
        k(f'ds_add_f32 {v16l}, {TX[0][r]} offset:{TC + 4 * r}')
    TX[1].free()
    k('s_waitcnt lgkmcnt(0)'); k('s_barrier'); k.drained(vm=False)
    S = TX[0]
    k(f'ds_read_b128 {S}, {v16l} offset:{TC}')
    mx, t1 = TM[2], TM[3]
    k(f'v_mov_b32 {t1}, 0xff800000')
    k(f'v_cndmask_b32 {TM[0]}, {t1}, {TM[0]}, vcc')
    k(f'v_cndmask_b32 {TM[1]}, {t1}, {TM[1]}, vcc')
    k(f'v_max_f32 {mx}, {TM[0]}, {TM[1]}')
    k(f'v_max3_f32 {mx}, {mx}, {S[0]}, {S[1]}'); k(f'v_max3_f32 {mx}, {mx}, {S[2]}, {S[3]}')
    k(f'v_max_f32_dpp {mx}, {mx}, {mx} quad_perm:[2,3,0,1] row_mask:0xf bank_mask:0xf')
    k(f'v_mov_b32 {t1}, {mx}'); k(f'v_permlane16_swap_b32 {mx}, {t1}'); k(f'v_max_f32 {mx}, {mx}, {t1}')
    k(f'v_mov_b32 {t1}, {mx}'); k(f'v_permlane32_swap_b32 {mx}, {t1}'); k(f'v_max_f32 {mx}, {mx}, {t1}')
    k(f'v_mul_f32 {mx}, {S_C}, {mx}')
    for r in range(4): k(f'v_fma_f32 {S[r]}, {S[r]}, {S_C}, -{mx}')
    for r in range(2): k(f'v_fma_f32 {TM[r]}, {TM[r]}, {S_C}, -{mx}')
    for r in range(4): k(f'v_exp_f32 {S[r]}, {S[r]}')
    for r in range(2): k(f'v_exp_f32 {TM[r]}, {TM[r]}')
    P = pool.alloc(4, name='P'); BM = pool.alloc(2, name='BM')
    k(f'v_cvt_pk_bf16_f32 {P[0]}, {S[0]}, {S[1]}'); k(f'v_cvt_pk_bf16_f32 {P[1]}, {S[2]}, {S[3]}')
    k(f'v_mov_b32 {BM[0]}, 0'); k(f'v_cvt_pk_bf16_f32 {BM[1]}, {TM[0]}, {TM[1]}')
    k(f'v_mov_b32_dpp {P[2]}, {P[0]} quad_perm:[0,1,0,1] row_mask:0xf bank_mask:0xf')
    k(f'v_mov_b32_dpp {P[3]}, {P[1]} quad_perm:[0,1,0,1] row_mask:0xf bank_mask:0xf')
    O = [pool.alloc(4, name='O0'), pool.alloc(4, name='O1')]
    for t in range(2): k(f'v_mfma_f32_16x16x32_bf16 {O[t]}, {VX[4*t:4*t+4]}, {P}, 0')
    for t in range(2): k(f'v_mfma_f32_16x16x16_bf16 {O[t]}, {KV4[2*t:2*t+2]}, {BM}, {O[t]}')
    ls = S[0]
    k(f'v_add_f32 {S[0]}, {S[0]}, {S[1]}'); k(f'v_add_f32 {S[2]}, {S[2]}, {S[3]}'); k(f'v_add_f32 {TM[0]}, {TM[0]}, {TM[1]}')
    k(f'v_add_f32 {ls}, {S[0]}, {S[2]}'); k(f'v_add_f32 {ls}, {ls}, {TM[0]}')
    k(f'v_add_f32_dpp {ls}, {ls}, {ls} quad_perm:[2,3,0,1] row_mask:0xf bank_mask:0xf')
    k(f'v_mov_b32 {t1}, {ls}'); k(f'v_permlane16_swap_b32 {ls}, {t1}'); k(f'v_add_f32 {ls}, {ls}, {t1}')
    k(f'v_mov_b32 {t1}, {ls}'); k(f'v_permlane32_swap_b32 {ls}, {t1}'); k(f'v_add_f32 {ls}, {ls}, {t1}')
    k(f'v_rcp_f32 {ls}, {ls}')
    for t in range(2):
        for r in range(4): k(f'v_mul_f32 {O[t][r]}, {O[t][r]}, {ls}')
    for t in range(2):
        k(f'v_cvt_pk_bf16_f32 {P[2*t]}, {O[t][0]}, {O[t][1]}'); k(f'v_cvt_pk_bf16_f32 {P[2*t+1]}, {O[t][2]}, {O[t][3]}')
    k(f's_mov_b64 exec, {M_N2}')
    for t in range(2): k(f'ds_write_b64 {vOW}, {P[2*t:2*t+2]} offset:{OX + t * 256}')
    k('s_mov_b64 exec, -1')
    for r in (VX, S, TM, BM, O[0], O[1], KV4): r.free()
    GO = [pool.alloc(8, name='GO0'), pool.alloc(8, name='GO1')]
    gload(k, GO[0], 6); gload(k, GO[1], 7)
    LS = [pool.alloc(8, name='L0'), pool.alloc(8, name='L1')]
    k(f'v_add_u32 {bl}, 81920, {vBL}')
    oops = [('O', i, c2) for i in range(10) for c2 in range(2)]
    lops = [op for op in oops if SRC[op][0] == 'L']
    li = {op: i for i, op in enumerate(lops)}
    for i in range(2): lload(i, SRC[lops[i]][1], SRC[lops[i]][2], False)
    NPRE = 6
    acc = {}
    for i in range(NPRE):
        acc[i] = pool.alloc(4, name=f'o{i}'); zero(k, acc[i])
    P.free()
    k.wait_vm('kvm')
    k('s_waitcnt lgkmcnt(0)'); k('s_barrier'); k.drained(vm=False)
    AO = [pool.alloc(4, name='AO0'), pool.alloc(4, name='AO1')]
    for c2 in range(2): k(f'ds_read_b128 {AO[c2]}, {v16l} offset:{OX + c2 * 1024}')
    LNF = k.newlabel('CH_NF')
    k(f's_cmp_lg_u32 {S_WAVE}, 0'); k(f's_cbranch_scc1 {LNF}')
    k(f's_add_u32 s5, {S_SEG}, 1')
    k.cond(True)
    flag_store(k, pool, S_FKVM, 's5')
    k.cond(False)
    k.label(LNF)
    stamp(k, 2)
    def epi(i):
        a = acc[i]; q = acc[i & ~3]
        k(f'v_add_f32 {a[0]}, {a[0]}, {a[1]}'); k(f'v_add_f32 {a[2]}, {a[2]}, {a[3]}')
        k(f'v_cvt_pk_bf16_f32 {q[i & 3]}, {a[0]}, {a[2]}')
        if i & 3: a.free()
        if i in (3, 7):
            k(f's_add_u32 s5, {S_PCUR}, {S_PST}')
            if i == 7: k(f's_add_u32 s5, s5, {16 * 8192}')
            k(f'buffer_store_dwordx4 {q}, {vPS}, {SRD_WS}, s5 offen' + stf()); q.free()
        if i == 9:
            h2 = pool.alloc(1, name='ps2'); k(f'v_lshrrev_b32 {h2}, 1, {vPS}')
            k(f's_add_u32 s5, {S_PCUR}, {S_PST2}')
            k(f'buffer_store_dwordx2 {q[0:2]}, {h2}, {SRD_WS}, s5 offen' + stf()); h2.free(); q.free()
    gmap = {('O', 8, 1): GO[0], ('O', 9, 1): GO[1]}
    for i in range(10):
        if i not in acc:
            acc[i] = pool.alloc(4, name=f'o{i}'); zero(k, acc[i])
        for c2 in range(2):
            op = ('O', i, c2); s = SRC[op]
            Bv = s[1] if s[0] == 'R' else (gmap[op] if s[0] == 'G' else LS[li[op] % 2])
            smf(k, acc[i], AO[c2], Bv)
            if s[0] == 'L' and li[op] + 2 < len(lops):
                nx = lops[li[op] + 2]; lload(li[op] % 2, SRC[nx][1], SRC[nx][2], False)
        if i >= 2: epi(i - 2)
    epi(8); epi(9)
    for r in AO + LS + GO + [bl]: r.free()
    zt = pool.alloc(4, name='zt'); zero(k, zt)
    k(f'ds_write_b128 {v16l}, {zt} offset:{TC}')
    zt.free()
    G0, G1 = pool.alloc_at(G01, 8, 'G0'), pool.alloc_at(G01 + 8, 8, 'G1')
    gload(k, G0, 0); gload(k, G1, 1)
    stamp(k, 3)
    hop1(k, pool)
    stamp(k, 4)
    if INTEGRATED:
        LNK = k.newlabel('CH_NK')
        k(f's_cmp_lg_u32 {S_WAVE}, 3'); k(f's_cbranch_scc1 {LNK}')
        k.manual(True)
        vt = pool.alloc(2, name='kvp')
        k(f's_add_u32 s61, {S_SEG}, 2'); poll_flag(k, S_FKVD, 's61', vt, 'CH_KV')
        vt.free()
        k.manual(False)
        k.label(LNK)
    hop2(k, pool)
    G0.free(); G1.free()
    stamp(k, 5)
    k(f's_add_u32 {S_SEG}, {S_SEG}, 1')
    k(f's_add_u32 {S_KX}, {S_KX}, {32 * 16384}'); k(f's_add_u32 {S_KVM}, {S_KVM}, {32 * 4096}')
    k(f's_mov_b32 s5, {S_PCUR}'); k(f's_mov_b32 {S_PCUR}, {S_POTH}'); k(f's_mov_b32 {S_POTH}, s5')
    k(f's_mov_b32 {S_MPOI}, {S_MNEXT}')
    k(f's_add_u32 {S_MNEXT}, {S_MNEXT}, 16384'); k(f's_sub_u32 s5, {S_MNEXT}, {S_MB}'); k('s_cmp_eq_u32 s5, 49152')
    k(f's_cselect_b32 {S_MNEXT}, {S_MB}, {S_MNEXT}')
    if DBG_STEPS:
        k(f's_cmp_ge_u32 {S_SEG}, {DBG_STEPS}'); k(f's_cbranch_scc1 {LEND}')
    k(f's_branch {LOOP}')

def flag_store(k, pool, s_off, val):
    f = pool.alloc(2, name='flag')
    k(f'v_mov_b32 {f[0]}, {val}'); k(f'v_mov_b32 {f[1]}, 0')
    k('s_mov_b64 exec, 1')
    k(f'buffer_store_dword {f[0]}, {f[1]}, {SRD_WS}, {s_off} offen sc1')
    k('s_mov_b64 exec, -1')
    f.free()

def pub_addr(k, dst, tmp):
    k(f'v_bfe_u32 {dst}, {vLN}, 1, 3'); k(f'v_lshlrev_b32 {dst}, 10, {dst}')
    k(f'v_lshrrev_b32 {tmp}, 4, {vLN}'); k(f'v_lshl_add_u32 {dst}, {tmp}, 6, {dst}')
    k(f'v_and_b32 {tmp}, 1, {vLN}'); k(f'v_lshl_add_u32 {dst}, {tmp}, 5, {dst}')

def hop1(k, pool):
    LSKIP, LFULL, LHALF, LPUB = k.newlabel('H1_S'), k.newlabel('H1_F'), k.newlabel('H1_H'), k.newlabel('H1_P')
    k(f's_cmp_eq_u32 {S_RED}, 0'); k(f's_cbranch_scc1 {LSKIP}')
    k.manual(True)
    sel = pool.alloc(4, name='sel'); d = pool.alloc(32, align=2, name='land'); acc = pool.alloc(4, name='racc'); t = pool.alloc(2, name='h1t')
    k(f'v_and_b32 {t[0]}, 1, {vLN}'); k(f'v_lshlrev_b32 {t[0]}, 4, {t[0]}'); k(f'v_mov_b32 {t[1]}, 0x3f80'); k(f'v_lshlrev_b32 {t[0]}, {t[0]}, {t[1]}')
    k(f'v_bfe_u32 {t[1]}, {vLN}, 1, 3')
    for dd in range(4):
        k(f'v_cmp_eq_u32 vcc, {dd}, {t[1]}'); k('s_nop 1'); k(f'v_cndmask_b32 {sel[dd]}, 0, {t[0]}, vcc')
    k(f's_add_u32 s5, {S_PCUR}, {S_RLD}'); k('s_add_u32 s6, s5, 4096')
    k('s_mov_b32 s7, 0')
    k(f's_cmp_eq_u32 {S_RED}, 2'); k(f's_cbranch_scc1 {LHALF}')
    k.label(LFULL)
    for m in range(8):
        k(f'buffer_load_dwordx4 {d[4*m:4*m+4]}, {v16l}, {SRD_WS}, {"s5" if m < 4 else "s6"} offen offset:{(m % 4) * 1024} sc1')
    k('s_add_u32 s7, s7, 1'); k('s_cmp_gt_u32 s7, ' + hex(SPIN)); k(f's_cbranch_scc1 {LPUB}')
    for m in range(8):
        k(f's_waitcnt vmcnt({7 - m})')
        k(f'v_mfma_f32_16x16x32_bf16 {acc}, {d[4*m:4*m+4]}, {sel}, ' + ('0' if m == 0 else str(acc)))
    k('s_nop 7')
    k(f'v_cmp_u_f32 vcc, {acc[0]}, {acc[1]}'); k(f'v_cmp_u_f32 s[40:41], {acc[2]}, {acc[3]}'); k('s_nop 1'); k('s_or_b64 vcc, vcc, s[40:41]')
    k(f's_cbranch_vccnz {LFULL}')
    k(f's_branch {LPUB}')
    k.label(LHALF)
    k(f'v_lshrrev_b32 {t[0]}, 1, {v16l}')
    LH2 = k.newlabel('H1_H2'); k.label(LH2)
    for m in range(8):
        k(f'buffer_load_dwordx2 {d[2*m:2*m+2]}, {t[0]}, {SRD_WS}, s5 offen offset:{m * 512} sc1')
    k('s_add_u32 s7, s7, 1'); k('s_cmp_gt_u32 s7, ' + hex(SPIN)); k(f's_cbranch_scc1 {LPUB}')
    for m in range(8):
        k(f's_waitcnt vmcnt({7 - m})')
        k(f'v_mfma_f32_16x16x16_bf16 {acc}, {d[2*m:2*m+2]}, {sel[0:2]}, ' + ('0' if m == 0 else str(acc)))
    k('s_nop 7')
    k(f'v_cmp_u_f32 vcc, {acc[0]}, {acc[1]}'); k(f'v_cmp_u_f32 s[40:41], {acc[2]}, {acc[3]}'); k('s_nop 1'); k('s_or_b64 vcc, vcc, s[40:41]')
    k(f's_cbranch_vccnz {LH2}')
    k.label(LPUB)
    k('s_waitcnt vmcnt(0)')
    if DBG_STEPS:
        LND = k.newlabel('H1_ND')
        k(f's_cmp_le_u32 s7, {hex(SPIN)}'); k(f's_cbranch_scc1 {LND}')
        k(f's_lshl_b32 s4, {S_INST}, 5'); k(f's_add_u32 s4, s4, {S_IDX}'); k('s_lshl_b32 s4, s4, 1'); k(f's_add_u32 s4, s4, {S_WAVE}'); k('s_lshl_b32 s4, s4, 14')
        k(f's_add_u32 s4, s4, {200 << 20}')
        for m in range(8):
            k(f's_add_u32 s6, s4, {m * 1024}')
            k(f'buffer_store_dwordx4 {d[4*m:4*m+4]}, {v16l}, {SRD_WS}, s6 offen')
        k(f's_add_u32 s6, s4, {8 * 1024}')
        k(f'buffer_store_dwordx4 {acc}, {v16l}, {SRD_WS}, s6 offen')
        k(f's_add_u32 s6, s4, {9 * 1024}')
        k(f'buffer_store_dwordx4 {sel}, {v16l}, {SRD_WS}, s6 offen')
        k(f'v_mov_b32 {sel[0]}, {S_SEG}')
        k(f's_add_u32 s6, s4, {10 * 1024}')
        k(f'buffer_store_dwordx4 {sel}, {v16l}, {SRD_WS}, s6 offen')
        k('s_waitcnt vmcnt(0)')
        k.label(LND)
    k(f'v_cvt_pk_bf16_f32 {d[0]}, {acc[0]}, {acc[1]}'); k(f'v_cvt_pk_bf16_f32 {d[1]}, {acc[2]}, {acc[3]}')
    k(f'v_min_u32 {d[0]}, 0xfffffffe, {d[0]}'); k(f'v_min_u32 {d[1]}, 0xfffffffe, {d[1]}')
    pub_addr(k, t[0], t[1])
    for i in range(4): k(f'v_mov_b32 {d[4+i]}, -1')
    k(f's_add_u32 s5, {S_MNEXT}, {S_RPUB}')
    k(f's_cmp_eq_u32 {S_RED}, 2'); k(f's_cselect_b64 exec, {M_N4}, {M_N8}')
    k(f'buffer_store_dwordx2 {d[0:2]}, {t[0]}, {SRD_WS}, s5 offen' + stf())
    LNP = k.newlabel('H1_NP')
    if NOPOISON:
        k('s_mov_b64 exec, -1'); k(f's_branch {LNP}')
    k(f's_add_u32 s5, {S_MPOI}, {S_RPUB}')
    k(f'buffer_store_dwordx2 {d[4:6]}, {t[0]}, {SRD_WS}, s5 offen' + stf())
    k('s_mov_b64 exec, -1')
    k(f's_add_u32 s5, {S_PCUR}, {S_RLD}')
    for m in range(4): k(f'buffer_store_dwordx4 {d[4:8]}, {v16l}, {SRD_WS}, s5 offen offset:{m * 1024}' + stf())
    k(f's_cmp_eq_u32 {S_RED}, 2'); k(f's_cbranch_scc1 {LNP}')
    k('s_add_u32 s5, s5, 4096')
    for m in range(4): k(f'buffer_store_dwordx4 {d[4:8]}, {v16l}, {SRD_WS}, s5 offen offset:{m * 1024}' + stf())
    k.label(LNP)
    for r in (sel, d, acc, t): r.free()
    k.manual(False)
    k.label(LSKIP)

def hop2(k, pool):
    k.manual(True)
    d = pool.alloc(12, align=2, name='mland'); t = pool.alloc(2, name='h2t')
    k(f's_mul_i32 s4, {S_WAVE}, 3'); k(f's_cmp_eq_u32 {S_WAVE}, 3'); k('s_cselect_b32 s4, 8, s4'); k('s_lshl_b32 s4, s4, 10')
    k(f's_add_u32 s5, {S_MNEXT}, s4')
    k(f'v_add_u32 {t[1]}, s4, {v16l}')
    k('s_mov_b32 s7, 0')
    L3, L2, LD = k.newlabel('H2_3'), k.newlabel('H2_2'), k.newlabel('H2_D')
    k(f's_cmp_ge_u32 {S_WAVE}, 2'); k(f's_cbranch_scc1 {L2}')
    for n, L in ((3, L3), (2, L2)):
        k.label(L)
        for j in range(n): k(f'buffer_load_dwordx4 {d[4*j:4*j+4]}, {v16l}, {SRD_WS}, s5 offen offset:{j * 1024} sc1')
        LX = k.newlabel('H2_X')
        k('s_add_u32 s7, s7, 1'); k('s_cmp_gt_u32 s7, ' + hex(SPIN)); k(f's_cbranch_scc1 {LX}')
        k('s_waitcnt vmcnt(0)')
        k(f'v_max3_u32 {t[0]}, {d[0]}, {d[1]}, {d[2]}')
        rest = list(range(3, 4 * n))
        while rest:
            if len(rest) >= 2: k(f'v_max3_u32 {t[0]}, {t[0]}, {d[rest[0]]}, {d[rest[1]]}'); rest = rest[2:]
            else: k(f'v_max_u32 {t[0]}, {t[0]}, {d[rest[0]]}'); rest = rest[1:]
        k(f'v_cmp_eq_u32 vcc, -1, {t[0]}')
        k(f's_cbranch_vccnz {L}')
        k.label(LX)
        k('s_waitcnt vmcnt(0)')
        for j in range(n): k(f'ds_write_b128 {t[1]}, {d[4*j:4*j+4]} offset:{MEM + j * 1024}')
        if n == 3: k(f's_branch {LD}')
    k.label(LD)
    k('s_waitcnt lgkmcnt(0)'); k('s_barrier')
    d.free(); t.free()
    k.manual(False); k.drained()
```

```python
from common import *
TIMING = False

def wfrag(f):
    return Reg('a', 4 * f, 4) if f < 64 else Reg('v', 192 + 4 * (f - 64), 4)

def emit_x_dma_setup(k, vL, vXD, t0, t1):
    k(f's_lshl_b32 s4, {S_WAVE}, 3')
    k(f'v_lshrrev_b32 {t0}, 3, {vL}')
    k(f'v_add_u32 {t0}, s4, {t0}')
    k(f'v_bfe_u32 {t1}, {t0}, 1, 3')
    k(f'v_and_b32 {vXD}, 7, {vL}')
    k(f'v_xor_b32 {t1}, {t1}, {vXD}')
    k(f'v_lshlrev_b32 {t1}, 4, {t1}')
    k(f'v_mul_u32_u24 {t0}, 1280, {t0}')
    k(f'v_add_u32 {vXD}, {t0}, {t1}')

def emit_x_frag_addr(k, vL, vXA, t0, t1, t2, perm):
    k(f'v_and_b32 {t0}, 31, {vL}')
    if perm:
        k(f'v_and_b32 {t1}, 3, {t0}')
        k(f'v_bfe_u32 {t2}, {t0}, 2, 2')
        k(f'v_lshl_or_b32 {t1}, {t2}, 3, {t1}')
        k(f'v_bfe_u32 {t2}, {t0}, 4, 1')
        k(f'v_lshl_or_b32 {t0}, {t2}, 2, {t1}')
    k(f'v_lshrrev_b32 {t1}, 3, {t0}')
    k(f'v_mul_u32_u24 {t1}, 10240, {t1}')
    k(f'v_and_b32 {t2}, 7, {t0}')
    k(f'v_lshl_add_u32 {t1}, {t2}, 7, {t1}')
    k(f'v_bfe_u32 {t2}, {t0}, 1, 3')
    k(f'v_lshrrev_b32 {t0}, 5, {vL}')
    k(f'v_xor_b32 {t2}, {t2}, {t0}')
    for u in range(4):
        k(f'v_xor_b32 {t0}, {2*u}, {t2}')
        k(f'v_lshl_add_u32 {vXA[u]}, {t0}, 4, {t1}')

def x_dma(k, vXD, srd_x, s_soff, s_m0base, nlines=10, tag='xdma', interleave=None):
    out = []
    for l in range(nlines):
        out.append([f's_add_u32 m0, {s_m0base}, {l*1024}',
                    f's_add_u32 s5, {s_soff}, {l*128}',
                    (f'buffer_load_dwordx4 {vXD}, {srd_x}, s5 offen lds', tag)])
    return out

def emit_group(k, grp):
    for x in grp:
        if isinstance(x, tuple): k(x[0], x[1])
        else: k(x)

def emit_w32_loader(k, vL, nmat_units, srd_w, s_colbase, kperm, frag_of, lds_unit_off, nsteps=10, tmp=None, wave_rows=None):
    pass

def role_kv(k, integrated=False):
    vL, vXD, vST, vW = 'v2', 'v3', 'v8', 'v9'
    vXA = ['v4', 'v5', 'v6', 'v7']
    vT = ['v10', 'v11']
    t0, t1, t2 = 'v12', 'v13', 'v14'
    SRD_X, SRD_W = 's[12:15]', 's[16:19]'
    inst_kernarg(k)
    if integrated:
        k(f's_lshl_b32 s4, {S_INST}, 5'); k(f's_add_u32 s4, s4, {S_IDX}'); k('s_lshl_b32 s4, s4, 7'); k(f's_add_u32 s4, s4, {F_KVD}')
        zero_flag(k, 's4', ['v12', 'v13']); init_arrive(k, ['v12', 'v13'])
    load_srd(k, 12, S_KA, 0, X_BYTES)
    k(f's_lshr_b32 s6, {S_WAVE}, 1')
    k(f's_lshl_b32 s6, s6, 3')
    k(f's_add_u32 s6, s30, s6')
    k(f's_addc_u32 s7, s31, 0')
    k(f's_load_dwordx2 s[4:5], s[6:7], 24')
    k('s_waitcnt lgkmcnt(0)')
    srd(k, 16, 4, 5, W_BYTES)
    k(f'v_lshrrev_b32 {t0}, 4, {vL}')
    k(f'v_lshlrev_b32 {t1}, 2, {t0}')
    k(f'v_and_b32 {t2}, 15, {vL}')
    k(f'v_xor_b32 {t1}, {t1}, {t2}')
    k(f'v_lshlrev_b32 {t1}, 4, {t1}')
    k(f'v_lshl_add_u32 {vW}, {t0}, 13, {t1}')
    k(f's_and_b32 s42, {S_WAVE}, 1')
    k(f's_lshl_b32 s40, {S_IDX}, 8')
    k(f's_lshl_b32 s43, s42, 18')
    k(f's_add_u32 s40, s40, s43')
    k(f's_lshr_b32 s41, {S_WAVE}, 1')
    k(f's_lshl_b32 s41, s41, 14')
    k(f's_lshl_b32 s43, s42, 13')
    k(f's_add_u32 s41, s41, s43')
    def wdma(c):
        for m in range(8):
            k(f's_add_u32 m0, s41, {(c % 4) * 32768 + m * 1024}')
            k(f's_add_u32 s5, s40, {(64 * c + 4 * m) * 8192}')
            k(f'buffer_load_dwordx4 {vW}, {SRD_W}, s5 offen lds', tag=f'w{c}')
    for c in range(4): wdma(c)
    emit_x_dma_setup(k, vL, vXD, t0, t1)
    k(f'v_bfe_u32 {t0}, {vL}, 4, 1')
    k(f'v_lshlrev_b32 {t0}, 10, {t0}')
    k(f'v_lshrrev_b32 {t1}, 5, {vL}')
    k(f'v_lshl_add_u32 {t0}, {t1}, 9, {t0}')
    k(f'v_and_b32 {t1}, 15, {vL}')
    k(f'v_lshl_add_u32 {vST}, {t1}, 4, {t0}')
    LK, LV, LDONE = k.newlabel('KV_K'), k.newlabel('KV_V'), k.newlabel('KV_DONE')
    k(f's_cmp_ge_u32 {S_WAVE}, 2')
    k(f's_cbranch_scc1 {LV}')
    for isV in (False, True):
        if isV:
            k.label(LV)
            k.drained()
        path(k, isV, vL, vXD, vST, vW, vXA, vT, t0, t1, t2, SRD_X, SRD_W, wdma, LDONE)
    k.label(LDONE)

def path(k, isV, vL, vXD, vST, vW, vXA, vT, t0, t1, t2, SRD_X, SRD_W, wdma, LDONE):
    k(f'v_bfe_u32 {t0}, {vL}, 4, 1')
    k(f'v_and_b32 {t1}, 1, {vL}')
    k(f'v_bfe_u32 {t2}, {vL}, 1, 1')
    if isV:
        k(f'v_lshl_or_b32 {t0}, {t0}, 1, {t2}')
        k(f'v_lshlrev_b32 {t1}, 3, {t1}')
    else:
        k(f'v_lshl_or_b32 {t0}, {t1}, 1, {t0}')
        k(f'v_lshlrev_b32 {t1}, 3, {t2}')
    k(f's_and_b32 s42, {S_WAVE}, 1')
    k(f's_lshl_b32 s42, s42, 3')
    k(f'v_or_b32 {t0}, s42, {t0}')
    k(f'v_bfe_u32 {t2}, {vL}, 2, 2')
    k(f'v_lshlrev_b32 {vT[1]}, 2, {t2}')
    k(f'v_xor_b32 {t0}, {t0}, {vT[1]}')
    k(f'v_lshl_add_u32 {t1}, {t0}, 4, {t1}')
    k(f'v_lshl_add_u32 {t1}, {t2}, 8, {t1}')
    k(f'v_lshrrev_b32 {t2}, 5, {vL}')
    k(f'v_lshl_add_u32 {t1}, {t2}, 11, {t1}')
    k(f's_lshr_b32 s42, {S_WAVE}, 1')
    k(f's_lshl_b32 s42, s42, 14')
    k(f'v_add_u32 {vT[0]}, s42, {t1}')
    k(f'v_xor_b32 {vT[1]}, 64, {vT[0]}')
    k.manual(True)
    for c in range(10):
        outstanding_after = min(3, 9 - c) * 8 if c < 9 else 0
        n_after = (3 if c == 0 else min(c + 2, 9) - c) * 8
        k(f's_waitcnt vmcnt({n_after}) lgkmcnt(0)')
        k('s_barrier')
        if c >= 1 and c + 3 <= 9: wdma(c + 3)
        base = (c % 4) * 32768
        if c > 0:
            d = base - ((c - 1) % 4) * 32768
            for tl in range(2):
                k(f'v_add_u32 {vT[tl]}, {d}, {vT[tl]}' if d > 0 else f'v_subrev_u32 {vT[tl]}, {-d}, {vT[tl]}')
        for tt in range(4):
            for tl in range(2):
                fr = wfrag(tl * 40 + 4 * c + tt)
                k(f'ds_read_b64_tr_b16 {fr[0:2]}, {vT[tl]} offset:{tt*4096}')
                k(f'ds_read_b64_tr_b16 {fr[2:4]}, {vT[tl]} offset:{tt*4096+1024}')
    k('s_waitcnt vmcnt(0) lgkmcnt(0)')
    k('s_barrier')
    k.manual(False)
    k.drained()
    emit_x_frag_addr(k, vL, vXA, t0, t1, t2, isV)
    k(f's_mul_i32 s45, {S_WAVE}, 10240')
    k('s_mov_b32 s44, 0')
    for g in x_dma(k, vXD, SRD_X, 's44', 's45', tag='xa'): emit_group(k, g)
    k('s_add_u32 s44, s44, 40960'); k('s_add_u32 s45, s45, 40960')
    for g in x_dma(k, vXD, SRD_X, 's44', 's45', tag='xb'): emit_group(k, g)
    k('s_add_u32 s44, s44, 40960'); k('s_add_u32 s45, s45, 40960')
    k('s_mov_b32 s46, 0')
    k('s_mov_b32 s48, 2')
    k('s_mov_b32 s49, 0')
    k('s_mov_b32 s52, -81920')
    k('s_mov_b32 s53, 40960')
    k(f's_lshl_b32 s47, {S_INST}, 11')
    k(f's_add_u32 s47, s47, {S_IDX}')
    k(f's_lshl_b32 s47, s47, 14')
    k(f's_and_b32 s42, {S_WAVE}, 1')
    k(f's_lshl_b32 s42, s42, 12')
    k(f's_add_u32 s47, s47, s42')
    if isV: k('s_add_u32 s47, s47, 8192')
    if KVX: k(f's_add_u32 s47, s47, {KVX}')
    k(f's_lshl_b32 s50, {S_INST}, 5')
    k(f's_add_u32 s50, s50, {S_IDX}')
    k(f's_lshl_b32 s50, s50, 7')
    k(f's_add_u32 s50, s50, {F_KVD}')
    k('s_waitcnt vmcnt(10)')
    k('s_barrier')
    if TIMING:
        k('s_memtime s[60:61]'); k('s_memrealtime s[62:63]'); k('s_waitcnt lgkmcnt(0)')
    LOOP = k.newlabel('KV_LOOP')
    acc = [Reg('v', 128, 16), Reg('v', 144, 16)]
    xf = [Reg('v', 160 + 4 * i, 4) for i in range(4)]
    cv = Reg('v', 176, 16)
    k.manual(True)
    k.label(LOOP)
    dma = x_dma(k, vXD, SRD_X, 's44', 's45', tag='x')
    def rd(t):
        k(f'ds_read_b128 {xf[t % 4]}, {vXA[t % 4]} offset:{(t >> 2) * 1024}')
    for t in range(3): rd(t)
    for t in range(40):
        if t + 3 < 40: rd(t + 3)
        k(f's_waitcnt lgkmcnt({min(3, 39 - t)})')
        for tl in range(2):
            w = wfrag(tl * 40 + t)
            c = '0' if t == 0 else str(acc[tl])
            if isV: k(f'v_mfma_f32_32x32x16_bf16 {acc[tl]}, {xf[t % 4]}, {w}, {c}')
            else:   k(f'v_mfma_f32_32x32x16_bf16 {acc[tl]}, {w}, {xf[t % 4]}, {c}')
        if 2 <= t < 32 and (t - 2) % 3 == 0:
            emit_group(k, dma[(t - 2) // 3])
    k('s_add_u32 s49, s49, 1')
    k('s_cmp_eq_u32 s49, 3')
    k('s_cselect_b32 s51, s52, s53')
    k('s_cselect_b32 s49, 0, s49')
    for u in range(4): k(f'v_add_u32 {vXA[u]}, s51, {vXA[u]}')
    for tl in range(2):
        for d in range(8):
            k(f'v_cvt_pk_bf16_f32 {cv[8 * tl + d]}, {acc[tl][2 * d]}, {acc[tl][2 * d + 1]}')
    for tl in range(2):
        k(f'buffer_store_dwordx4 {cv[8*tl:8*tl+4]}, {vST}, {SRD_WS}, s47 offen offset:{tl*2048} sc1')
        k(f'buffer_store_dwordx4 {cv[8*tl+4:8*tl+8]}, {vST}, {SRD_WS}, s47 offen offset:{tl*2048+256} sc1')
    k('s_waitcnt vmcnt(14)')
    k('s_barrier')
    LNF = k.newlabel('KV_NF')
    k(f's_cmp_lg_u32 {S_WAVE}, 0')
    k(f's_cbranch_scc1 {LNF}')
    k('v_mov_b32 v15, s46')
    k('v_mov_b32 v16, 0')
    k('s_mov_b64 exec, 1')
    k(f'buffer_store_dword v15, v16, {SRD_WS}, s50 offen sc1')
    k('s_mov_b64 exec, -1')
    k.label(LNF)
    k('s_add_u32 s44, s44, 40960')
    k('s_add_u32 s45, s45, 40960')
    k('s_add_u32 s48, s48, 1')
    k('s_cmp_eq_u32 s48, 3')
    k('s_cselect_b32 s48, 0, s48')
    k('s_cselect_b32 s51, 122880, 0')
    k('s_sub_u32 s45, s45, s51')
    k('s_add_u32 s47, s47, 524288')
    k('s_add_u32 s46, s46, 1')
    k('s_cmp_lt_u32 s46, 64')
    k(f's_cbranch_scc1 {LOOP}')
    if TIMING:
        k('s_memtime s[64:65]'); k('s_memrealtime s[66:67]'); k('s_waitcnt lgkmcnt(0)')
        k('s_sub_u32 s64, s64, s60'); k('s_sub_u32 s66, s66, s62')
        k('s_load_dwordx2 s[68:69], s[0:1], 120'); k('s_waitcnt lgkmcnt(0)')
        k(f's_lshl_b32 s70, {S_INST}, 5'); k(f's_add_u32 s70, s70, {S_IDX}'); k('s_lshl_b32 s70, s70, 4'); k('s_add_u32 s70, s70, 40960')
        k('v_mov_b32 v15, s70'); k('v_mov_b32 v20, s64'); k('v_mov_b32 v21, s66'); k('v_mov_b32 v22, s62'); k('v_mov_b32 v23, 0')
        k('global_store_dwordx4 v15, v[20:23], s[68:69]')
    k('s_waitcnt vmcnt(0)')
    k('s_barrier')
    LNF2 = k.newlabel('KV_NF2')
    k(f's_cmp_lg_u32 {S_WAVE}, 0')
    k(f's_cbranch_scc1 {LDONE}')
    k('v_mov_b32 v15, 64')
    k('v_mov_b32 v16, 0')
    k('s_mov_b64 exec, 1')
    k(f'buffer_store_dword v15, v16, {SRD_WS}, s50 offen sc1')
    k('s_mov_b64 exec, -1')
    k('s_waitcnt vmcnt(0)')
    k(f's_branch {LDONE}')
    k.manual(False)
```

```python
from common import *
from role_kv import emit_x_dma_setup, emit_x_frag_addr, x_dma, emit_group
import math, struct
TIMING = False
SPIN = 0x40000
def f32bits(x): return struct.unpack('<I', struct.pack('<f', x))[0]

XB = 0
QF = 81920
KVXB = 98304
KVMB = 131072
WRING = 0

def poll_flag(k, s_off, s_need, vt, label_base, sleep=1):
    L, LX = k.newlabel(label_base), k.newlabel(label_base + 'X')
    k(f'v_mov_b32 {vt[1]}, 0')
    k('s_mov_b32 s7, 0')
    k.label(L)
    k(f'buffer_load_dword {vt[0]}, {vt[1]}, {SRD_WS}, {s_off} offen sc1')
    k('s_add_u32 s7, s7, 1'); k(f's_cmp_gt_u32 s7, {hex(SPIN)}'); k(f's_cbranch_scc1 {LX}')
    k('s_waitcnt vmcnt(0)')
    k(f'v_readfirstlane_b32 s6, {vt[0]}')
    k(f's_cmp_ge_u32 s6, {s_need}')
    k(f's_cbranch_scc1 {LX}')
    if sleep: k(f's_sleep {sleep}')
    k(f's_branch {L}')
    k.label(LX)
    k('s_waitcnt vmcnt(0)')

def role_qatt(k, use_flags=True, integrated=False):
    vL, vXD, vST, vW, v16 = 'v2', 'v3', 'v8', 'v9', 'v1'
    vXA = ['v4', 'v5', 'v6', 'v7']
    vT = 'v10'
    t0, t1, t2 = 'v12', 'v13', 'v14'
    vKM = 'v11'
    SRD_X, SRD_W = 's[12:15]', 's[16:19]'
    wf = lambda t: Reg('a', 4 * t, 4)
    inst_kernarg(k)
    if integrated:
        k(f's_lshl_b32 s4, {S_INST}, 5'); k(f's_add_u32 s4, s4, {S_IDX}'); k('s_lshl_b32 s4, s4, 7'); k(f's_add_u32 s4, s4, {F_OD}')
        zero_flag(k, 's4', ['v12', 'v13']); init_arrive(k, ['v12', 'v13'])
    load_srd(k, 12, S_KA, 0, X_BYTES)
    load_srd(k, 16, S_KA, 16, W_BYTES)
    k(f'v_lshlrev_b32 {v16}, 4, {vL}')
    k(f'v_lshrrev_b32 {t0}, 4, {vL}'); k(f'v_lshlrev_b32 {t1}, 2, {t0}'); k(f'v_and_b32 {t2}, 15, {vL}')
    k(f'v_xor_b32 {t1}, {t1}, {t2}'); k(f'v_lshlrev_b32 {t1}, 4, {t1}'); k(f'v_lshl_add_u32 {vW}, {t0}, 13, {t1}')
    k(f's_lshl_b32 s40, {S_IDX}, 8'); k(f's_lshl_b32 s43, {S_WAVE}, 17'); k('s_add_u32 s40, s40, s43')
    k(f's_lshl_b32 s41, {S_WAVE}, 12')
    NS = 8
    def wdma(c):
        for m in range(4):
            k(f's_add_u32 m0, s41, {(c % NS) * 16384 + m * 1024}')
            k(f's_add_u32 s5, s40, {(64 * c + 4 * m) * 8192}')
            k(f'buffer_load_dwordx4 {vW}, {SRD_W}, s5 offen lds')
    for c in range(NS - 1): wdma(c)
    k(f'v_bfe_u32 {t0}, {vL}, 4, 1'); k(f'v_and_b32 {t1}, 1, {vL}'); k(f'v_bfe_u32 {t2}, {vL}, 1, 1')
    k(f'v_lshl_or_b32 {t0}, {t1}, 1, {t0}'); k(f'v_lshlrev_b32 {t1}, 3, {t2}')
    k(f's_lshl_b32 s42, {S_WAVE}, 2'); k(f'v_or_b32 {t0}, s42, {t0}')
    k(f'v_bfe_u32 {t2}, {vL}, 2, 2'); k(f'v_lshlrev_b32 {vT}, 2, {t2}'); k(f'v_xor_b32 {t0}, {t0}, {vT}')
    k(f'v_lshl_add_u32 {t1}, {t0}, 4, {t1}'); k(f'v_lshl_add_u32 {t1}, {t2}, 8, {t1}')
    k(f'v_lshrrev_b32 {t2}, 5, {vL}'); k(f'v_lshl_add_u32 {vT}, {t2}, 11, {t1}')
    k.manual(True)
    va = 'v15'
    for c in range(10):
        done_issue = min(9, NS - 2 if c == 0 else NS - 2 + c - 1)
        k(f's_waitcnt vmcnt({(done_issue - c) * 4}) lgkmcnt(0)')
        k('s_barrier')
        if c >= 1 and c + NS - 2 <= 9: wdma(c + NS - 2)
        k(f'v_add_u32 {va}, {(c % NS) * 16384}, {vT}')
        for tt in range(4):
            fr = wf(4 * c + tt)
            k(f'ds_read_b64_tr_b16 {fr[0:2]}, {va} offset:{tt*4096}')
            k(f'ds_read_b64_tr_b16 {fr[2:4]}, {va} offset:{tt*4096+1024}')
    k('s_waitcnt vmcnt(0) lgkmcnt(0)'); k('s_barrier')
    emit_x_dma_setup(k, vL, vXD, t0, t1)
    emit_x_frag_addr(k, vL, vXA, t0, t1, t2, False)
    k(f'v_bfe_u32 {t0}, {vL}, 4, 1'); k(f'v_lshlrev_b32 {t0}, 10, {t0}'); k(f'v_lshrrev_b32 {t1}, 5, {vL}')
    k(f'v_lshl_add_u32 {t0}, {t1}, 9, {t0}'); k(f'v_and_b32 {t1}, 15, {vL}'); k(f'v_lshl_add_u32 {t0}, {t1}, 4, {t0}')
    k(f's_lshl_b32 s4, {S_WAVE}, 11'); k(f's_add_u32 s4, s4, {QF}'); k(f'v_add_u32 {vST}, s4, {t0}')
    k(f'v_and_b32 {t0}, 3, {vL}'); k(f'v_lshlrev_b32 {t0}, 4, {t0}'); k(f'v_bfe_u32 {t1}, {vL}, 4, 1'); k(f'v_lshl_add_u32 {t0}, {t1}, 3, {t0}')
    k(f'v_bfe_u32 {t1}, {vL}, 2, 2'); k(f'v_add_u32 {t0}, {t0}, {t1}'); k(f'v_lshlrev_b32 {t0}, 4, {t0}')
    k(f'v_lshrrev_b32 {t1}, 5, {vL}'); k(f'v_lshl_add_u32 {vKM}, {t1}, 3, {t0}')
    k(f'v_and_b32 {t0}, 15, {vL}'); k(f'v_lshrrev_b32 {t1}, 4, {vL}'); k(f'v_lshlrev_b32 {t1}, 2, {t1}')
    for r in range(4):
        k(f'v_add_u32 {t2}, {r}, {t1}'); k(f'v_cmp_le_u32 s[{64+2*r}:{65+2*r}], {t2}, {t0}')
    k(f's_and_b32 s4, {S_WAVE}, 1'); k('s_cmp_eq_u32 s4, 1')
    for r in range(4):
        k(f's_cselect_b64 s[{72+2*r}:{73+2*r}], s[{64+2*r}:{65+2*r}], 0')
    for r in range(4):
        k(f's_cselect_b64 s[{64+2*r}:{65+2*r}], -1, s[{64+2*r}:{65+2*r}]')
    k(f's_mov_b32 s50, {hex(f32bits(128 ** -0.5 * math.log2(math.e)))}')
    k(f's_lshl_b32 s4, {S_INST}, 11'); k(f's_add_u32 s4, s4, {S_IDX}')
    k(f's_lshl_b32 s33, s4, 14'); k(f's_lshl_b32 s5, {S_WAVE}, 12'); k('s_add_u32 s33, s33, s5')
    if KVX: k(f's_add_u32 s33, s33, {KVX}')
    k(f's_lshl_b32 s34, s4, 12'); k(f's_lshl_b32 s5, {S_WAVE}, 10'); k('s_add_u32 s34, s34, s5'); k(f's_add_u32 s34, s34, {KVM}')
    k(f's_lshl_b32 s35, s4, 13'); k(f's_and_b32 s5, {S_WAVE}, 1'); k('s_lshl_b32 s5, s5, 12'); k('s_add_u32 s35, s35, s5')
    k(f's_lshr_b32 s5, {S_WAVE}, 1'); k('s_lshl_b32 s5, s5, 11'); k('s_add_u32 s35, s35, s5'); k(f's_add_u32 s35, s35, {OF}')
    k(f's_lshl_b32 s4, {S_INST}, 5'); k(f's_add_u32 s4, s4, {S_IDX}'); k('s_lshl_b32 s4, s4, 7')
    k(f's_add_u32 s58, s4, {F_KVM}'); k(f's_add_u32 s59, s4, {F_KVD}'); k(f's_add_u32 s57, s4, {F_OD}')
    k(f's_mul_i32 s45, {S_WAVE}, 10240')
    k('s_mov_b32 s44, 0')
    k('s_mov_b32 s32, 0')
    vt = ['v16', 'v17']
    for g in x_dma(k, vXD, SRD_X, 's44', 's45'): emit_group(k, g)
    k('s_add_u32 s44, s44, 40960'); k('s_add_u32 s45, s45, 40960')
    for g in x_dma(k, vXD, SRD_X, 's44', 's45'): emit_group(k, g)
    k('s_add_u32 s44, s44, 40960'); k('s_sub_u32 s45, s45, 40960')
    if integrated: init_wait(k, vt)
    if use_flags:
        k('s_mov_b32 s55, 1'); poll_flag(k, 's59', 's55', vt, 'QA_P0')
    def kvx_dma(s_src, s_dst):
        for m in range(4):
            k(f's_add_u32 m0, {s_dst}, {m * 1024}'); k(f's_add_u32 s5, {s_src}, {m * 1024}')
            k(f'buffer_load_dwordx4 {v16}, {SRD_WS}, s5 offen sc1 lds')
    k(f's_lshl_b32 s36, {S_WAVE}, 12'); k(f's_add_u32 s36, s36, {KVXB}')
    kvx_dma('s33', 's36')
    k('s_waitcnt vmcnt(0)'); k('s_barrier')
    acc = Reg('v', 128, 16); xf = [Reg('v', 144 + 4 * i, 4) for i in range(4)]; cv = Reg('v', 160, 8)
    def qproj(interleave=()):
        il = list(interleave)
        def rd(t): k(f'ds_read_b128 {xf[t % 4]}, {vXA[t % 4]} offset:{(t >> 2) * 1024}')
        for t in range(3): rd(t)
        for t in range(40):
            if t + 3 < 40: rd(t + 3)
            k(f's_waitcnt lgkmcnt({min(3, 39 - t)})')
            k(f'v_mfma_f32_32x32x16_bf16 {acc}, {wf(t)}, {xf[t % 4]}, ' + ('0' if t == 0 else str(acc)))
            if il and t >= 1 and t % 2 == 1: emit_group(k, il.pop(0))
        for g in il: emit_group(k, g)
        k('s_nop 7'); k('s_nop 3')
        for d in range(8): k(f'v_cvt_pk_bf16_f32 {cv[d]}, {acc[2*d]}, {acc[2*d+1]}')
        k(f'ds_write_b128 {vST}, {cv[0:4]}'); k(f'ds_write_b128 {vST}, {cv[4:8]} offset:256')
    qproj()
    for u in range(4): k(f'v_add_u32 {vXA[u]}, 40960, {vXA[u]}')
    k(f'v_add_u32 {vST}, 8192, {vST}')
    k('s_mov_b32 s37, 0')
    k('s_waitcnt lgkmcnt(0)'); k('s_barrier')
    if TIMING:
        k('s_memtime s[84:85]'); k('s_memrealtime s[86:87]'); k('s_waitcnt lgkmcnt(0)')
    LOOP, LEND = k.newlabel('QA_LOOP'), k.newlabel('QA_END')
    k.label(LOOP)
    if use_flags:
        k('s_add_u32 s55, s32, 1'); poll_flag(k, 's58', 's55', vt, 'QA_P1')
    k('s_lshl_b32 s4, s37, 12'); k(f's_lshl_b32 s5, {S_WAVE}, 10'); k('s_add_u32 s4, s4, s5'); k(f's_add_u32 m0, s4, {KVMB}')
    k('s_nop 0')
    k(f'buffer_load_dwordx4 {v16}, {SRD_WS}, s34 offen sc1 lds')
    LNK = k.newlabel('QA_NK')
    k('s_cmp_ge_u32 s32, 63'); k(f's_cbranch_scc1 {LNK}')
    if use_flags:
        k('s_add_u32 s55, s32, 2'); poll_flag(k, 's59', 's55', vt, 'QA_P2')
    k(f's_add_u32 s38, s33, {32 * 16384}')
    k('s_xor_b32 s4, s37, 1'); k('s_lshl_b32 s4, s4, 14'); k(f's_lshl_b32 s5, {S_WAVE}, 12'); k('s_add_u32 s4, s4, s5'); k(f's_add_u32 s39, s4, {KVXB}')
    kvx_dma('s38', 's39')
    k.label(LNK)
    k('s_mul_i32 s4, s37, 40960'); k(f's_mul_i32 s5, {S_WAVE}, 10240'); k('s_add_u32 s45, s4, s5')
    dma = x_dma(k, vXD, SRD_X, 's44', 's45')
    qproj(dma)
    k('s_cmp_eq_u32 s37, 0'); k('s_cselect_b32 s5, -1, 1')
    k('s_mul_i32 s4, s5, 40960')
    for u in range(4): k(f'v_add_u32 {vXA[u]}, s4, {vXA[u]}')
    k('s_lshl_b32 s4, s5, 13'); k(f'v_add_u32 {vST}, s4, {vST}')
    k('s_waitcnt vmcnt(0) lgkmcnt(0)'); k('s_barrier')
    k.manual(False); k.drained()
    pool = Pool('qatt', 'v', range(20, 128))
    ad = pool.alloc(4, name='ad')
    k(f's_and_b32 s4, {S_WAVE}, 1'); k('s_lshl_b32 s4, s4, 10'); k('s_lshl_b32 s5, s37, 13'); k('s_add_u32 s4, s4, s5'); k(f's_add_u32 s4, s4, {QF}')
    k(f'v_add_u32 {ad[0]}, s4, {v16}')
    k('s_lshl_b32 s5, s37, 14'); k(f's_add_u32 s5, s5, {KVXB}'); k(f'v_add_u32 {ad[1]}, s5, {v16}')
    k('s_lshl_b32 s5, s37, 12'); k(f's_add_u32 s5, s5, {KVMB}'); k(f'v_add_u32 {ad[2]}, s5, {vKM}')
    k(f'v_add_u32 {ad[3]}, s5, {v16}')
    QB = [pool.alloc(4, name=f'Q{u}') for u in range(4)]
    KA = [[pool.alloc(4, name=f'K{t}{u}') for u in range(4)] for t in range(2)]
    KM = [pool.alloc(4, name=f'M{u}') for u in range(4)]
    T = [pool.alloc(4, name='T0'), pool.alloc(4, name='T1')]; TM = pool.alloc(4, name='TM')
    for u in range(4):
        k(f'ds_read_b128 {QB[u]}, {ad[0]} offset:{u * 2048}')
        k(f'ds_read_b128 {KA[0][u]}, {ad[1]} offset:{u * 2048}')
        k(f'ds_read_b128 {KA[1][u]}, {ad[1]} offset:{u * 2048 + 1024}')
        k(f'ds_read_b64_tr_b16 {KM[u][0:2]}, {ad[2]} offset:{u * 1024}')
        k(f'ds_read_b64_tr_b16 {KM[u][2:4]}, {ad[2]} offset:{u * 1024 + 64}')
    for u in range(4):
        c = lambda r: '0' if u == 0 else str(r)
        k(f'v_mfma_f32_16x16x32_bf16 {T[0]}, {KA[0][u]}, {QB[u]}, {c(T[0])}')
        k(f'v_mfma_f32_16x16x32_bf16 {T[1]}, {KA[1][u]}, {QB[u]}, {c(T[1])}')
        k(f'v_mfma_f32_16x16x32_bf16 {TM}, {KM[u]}, {QB[u]}, {c(TM)}')
    for r_ in QB + KA[0] + KA[1] + KM: r_.free()
    wc0 = pool.alloc(1, name='wc')
    k(f's_lshr_b32 s4, {S_WAVE}, 1'); k('s_lshl_b32 s5, s4, 12'); k(f'v_add_u32 {wc0}, s5, {ad[1]}')
    VA = [[pool.alloc(4, name=f'V{a}{t}') for t in range(2)] for a in range(2)]
    for a in range(2):
        for t in range(2): k(f'ds_read_b128 {VA[a][t]}, {wc0} offset:{8192 + a * 2048 + t * 1024}')
    k('s_lshl_b32 s5, s4, 11'); k(f'v_add_u32 {wc0}, s5, {ad[3]}')
    MA = [pool.alloc(4, name=f'MA{a}') for a in range(2)]
    for a in range(2): k(f'ds_read_b128 {MA[a]}, {wc0} offset:{a * 1024}')
    wc0.free()
    ninf, mx, t1_ = pool.alloc(1), pool.alloc(1), pool.alloc(1)
    k(f'v_mov_b32 {ninf}, 0xff800000')
    for t in range(2):
        for r in range(4):
            m = 64 + 8 * t + 2 * r
            k(f'v_cndmask_b32 {T[t][r]}, {ninf}, {T[t][r]}, s[{m}:{m+1}]')
    k(f'v_max3_f32 {mx}, {T[0][0]}, {T[0][1]}, {T[0][2]}'); k(f'v_max3_f32 {mx}, {mx}, {T[0][3]}, {T[1][0]}')
    k(f'v_max3_f32 {mx}, {mx}, {T[1][1]}, {T[1][2]}'); k(f'v_max3_f32 {mx}, {mx}, {T[1][3]}, {TM[0]}'); k(f'v_max_f32 {mx}, {mx}, {TM[1]}')
    k(f'v_mov_b32 {t1_}, {mx}'); k(f'v_permlane16_swap_b32 {mx}, {t1_}'); k(f'v_max_f32 {mx}, {mx}, {t1_}')
    k(f'v_mov_b32 {t1_}, {mx}'); k(f'v_permlane32_swap_b32 {mx}, {t1_}'); k(f'v_max_f32 {mx}, {mx}, {t1_}')
    k(f'v_mul_f32 {mx}, s50, {mx}')
    vals = [T[0][r] for r in range(4)] + [T[1][r] for r in range(4)] + [TM[0], TM[1]]
    for v in vals: k(f'v_fma_f32 {v}, {v}, s50, -{mx}')
    for v in vals: k(f'v_exp_f32 {v}, {v}')
    P = pool.alloc(4, name='P'); BM = pool.alloc(2, name='BM')
    for t in range(2):
        k(f'v_cvt_pk_bf16_f32 {P[2*t]}, {T[t][0]}, {T[t][1]}'); k(f'v_cvt_pk_bf16_f32 {P[2*t+1]}, {T[t][2]}, {T[t][3]}')
    k(f'v_mov_b32 {BM[0]}, 0'); k(f'v_cvt_pk_bf16_f32 {BM[1]}, {TM[0]}, {TM[1]}')
    O = [[pool.alloc(4, name=f'O{a}{t}') for t in range(2)] for a in range(2)]
    for a in range(2):
        for t in range(2): k(f'v_mfma_f32_16x16x32_bf16 {O[a][t]}, {VA[a][t]}, {P}, 0')
    for a in range(2):
        for t in range(2): k(f'v_mfma_f32_16x16x16_bf16 {O[a][t]}, {MA[a][2*t:2*t+2]}, {BM}, {O[a][t]}')
    ls = T[0][0]
    k(f'v_add_f32 {T[0][0]}, {T[0][0]}, {T[0][1]}'); k(f'v_add_f32 {T[0][2]}, {T[0][2]}, {T[0][3]}')
    k(f'v_add_f32 {T[1][0]}, {T[1][0]}, {T[1][1]}'); k(f'v_add_f32 {T[1][2]}, {T[1][2]}, {T[1][3]}'); k(f'v_add_f32 {TM[0]}, {TM[0]}, {TM[1]}')
    k(f'v_add_f32 {ls}, {T[0][0]}, {T[0][2]}'); k(f'v_add_f32 {T[1][0]}, {T[1][0]}, {T[1][2]}')
    k(f'v_add_f32 {ls}, {ls}, {T[1][0]}'); k(f'v_add_f32 {ls}, {ls}, {TM[0]}')
    k(f'v_mov_b32 {t1_}, {ls}'); k(f'v_permlane16_swap_b32 {ls}, {t1_}'); k(f'v_add_f32 {ls}, {ls}, {t1_}')
    k(f'v_mov_b32 {t1_}, {ls}'); k(f'v_permlane32_swap_b32 {ls}, {t1_}'); k(f'v_add_f32 {ls}, {ls}, {t1_}')
    k(f'v_rcp_f32 {ls}, {ls}')
    OS = [pool.alloc(4, name='OS0'), pool.alloc(4, name='OS1')]
    for a in range(2):
        for t in range(2):
            for r in range(4): k(f'v_mul_f32 {O[a][t][r]}, {O[a][t][r]}, {ls}')
            k(f'v_cvt_pk_bf16_f32 {OS[a][2*t]}, {O[a][t][0]}, {O[a][t][1]}'); k(f'v_cvt_pk_bf16_f32 {OS[a][2*t+1]}, {O[a][t][2]}, {O[a][t][3]}')
        k(f'buffer_store_dwordx4 {OS[a]}, {v16}, {SRD_WS}, s35 offen offset:{a * 1024} sc1')
    k.manual(True)
    k('s_waitcnt vmcnt(0)'); k('s_barrier')
    LNF = k.newlabel('QA_NF')
    k(f's_cmp_lg_u32 {S_WAVE}, 0'); k(f's_cbranch_scc1 {LNF}')
    k('s_add_u32 s5, s32, 1'); k('v_mov_b32 v16, s5'); k('v_mov_b32 v17, 0'); k('s_mov_b64 exec, 1')
    k(f'buffer_store_dword v16, v17, {SRD_WS}, s57 offen sc1'); k('s_mov_b64 exec, -1')
    k.label(LNF)
    k('s_add_u32 s32, s32, 1'); k('s_xor_b32 s37, s37, 1')
    k(f's_add_u32 s33, s33, {32 * 16384}'); k(f's_add_u32 s34, s34, {32 * 4096}'); k(f's_add_u32 s35, s35, {32 * 8192}')
    k('s_add_u32 s44, s44, 40960')
    k('s_cmp_lt_u32 s32, 64'); k(f's_cbranch_scc1 {LOOP}')
    if TIMING:
        k('s_memtime s[88:89]'); k('s_memrealtime s[90:91]'); k('s_waitcnt lgkmcnt(0)')
        k('s_sub_u32 s88, s88, s84'); k('s_sub_u32 s90, s90, s86')
        k('s_load_dwordx2 s[92:93], s[0:1], 120'); k('s_waitcnt lgkmcnt(0)')
        k(f's_lshl_b32 s94, {S_INST}, 5'); k(f's_add_u32 s94, s94, {S_IDX}'); k('s_lshl_b32 s94, s94, 4')
        k('v_mov_b32 v15, s94'); k('v_add_u32 v15, 32768, v15'); k('v_mov_b32 v20, s88'); k('v_mov_b32 v21, s90'); k('v_mov_b32 v22, 0'); k('v_mov_b32 v23, 0')
        k('global_store_dwordx4 v15, v[20:23], s[92:93]')
    k('s_waitcnt vmcnt(0)')
    k.manual(False); k.drained()
```

```python
from common import *
TIMING = False
SPIN = 0x40000

def poll_multi(k, s_off, n, s_need, vt, vstride, base):
    L, LX = k.newlabel(base), k.newlabel(base + 'X')
    k('s_mov_b32 s7, 0')
    k(f's_mov_b64 exec, {hex((1 << n) - 1)}')
    k.label(L)
    k(f'buffer_load_dword {vt}, {vstride}, {SRD_WS}, {s_off} offen sc1')
    k('s_add_u32 s7, s7, 1'); k(f's_cmp_gt_u32 s7, {hex(SPIN)}'); k(f's_cbranch_scc1 {LX}')
    k('s_waitcnt vmcnt(0)')
    k(f'v_cmp_gt_u32 vcc, {s_need}, {vt}')
    k(f's_cbranch_vccz {LX}')
    k('s_sleep 1')
    k(f's_branch {L}')
    k.label(LX)
    k('s_waitcnt vmcnt(0)')
    k('s_mov_b64 exec, -1')

def role_wo(k, LEXIT, use_flags=True, integrated=False):
    vL, v16, vW, vT0, vT1, vF, vOut = 'v2', 'v1', 'v3', 'v4', 'v5', 'v6', 'v7'
    t0, t1, t2 = 'v12', 'v13', 'v14'
    SRD_W, SRD_O = 's[16:19]', 's[12:15]'
    if integrated:
        k(f's_mul_i32 s4, {S_INST}, 20'); k(f's_add_u32 s4, s4, {S_IDX}'); k('s_lshl_b32 s4, s4, 7'); k(f's_add_u32 s4, s4, {F_WOP}')
        LZ = k.newlabel('WO_Z')
        k(f's_cmp_ge_u32 {S_IDX}, 20'); k(f's_cbranch_scc1 {LZ}')
        zero_flag(k, 's4', ['v12', 'v13'])
        k.label(LZ)
        init_arrive(k, ['v12', 'v13'])
    k(f's_cmp_ge_u32 {S_IDX}, 20'); k(f's_cbranch_scc1 {LEXIT}')
    inst_kernarg(k)
    load_srd(k, 16, S_KA, 40, W_BYTES)
    load_srd(k, 12, 's[0:1]', KA_OUT, OUT_BYTES)
    k(f'v_lshlrev_b32 {v16}, 4, {vL}')
    k(f's_mul_i32 s4, {S_IDX}, 52429'); k('s_lshr_b32 s38, s4, 18'); k('s_mul_i32 s4, s38, 5'); k(f's_sub_u32 s39, {S_IDX}, s4')
    k(f'v_lshrrev_b32 {t0}, 4, {vL}'); k(f's_and_b32 s4, {S_WAVE}, 1'); k('s_lshl_b32 s4, s4, 2'); k(f'v_add_u32 {t1}, s4, {t0}')
    k(f'v_lshlrev_b32 {t1}, 1, {t1}'); k(f'v_and_b32 {t2}, 15, {vL}'); k(f'v_xor_b32 {t1}, {t1}, {t2}'); k(f'v_lshlrev_b32 {t1}, 4, {t1}')
    k(f's_lshl_b32 s4, {S_WAVE}, 2'); k(f'v_add_u32 {t0}, s4, {t0}'); k(f'v_mul_u32_u24 {t0}, 1280, {t0}'); k(f'v_add_u32 {vW}, {t0}, {t1}')
    k(f's_mul_i32 s40, s38, {1024 * 1280}'); k('s_lshl_b32 s4, s39, 8'); k('s_add_u32 s40, s40, s4')
    k(f's_lshl_b32 s41, {S_WAVE}, 10')
    def wdma(hh):
        for mm in range(8):
            k(f's_add_u32 m0, s41, {(hh % 4) * 32768 + mm * 4096}')
            k(f's_add_u32 s5, s40, {(128 * hh + 16 * mm) * 1280}')
            k(f'buffer_load_dwordx4 {vW}, {SRD_W}, s5 offen lds')
    for hh in range(4): wdma(hh)
    k(f'v_lshrrev_b32 {t0}, 4, {vL}'); k(f'v_bfe_u32 {t1}, {vL}, 2, 2'); k(f'v_lshl_add_u32 {t0}, {t0}, 2, {t1}')
    k(f'v_and_b32 {t1}, 7, {t0}'); k(f's_lshl_b32 s4, {S_WAVE}, 1'); k(f'v_xor_b32 {t1}, s4, {t1}'); k(f'v_lshlrev_b32 {t1}, 5, {t1}')
    k(f'v_lshl_add_u32 {t0}, {t0}, 8, {t1}'); k(f'v_and_b32 {t1}, 3, {vL}'); k(f'v_lshl_add_u32 {vT0}, {t1}, 3, {t0}')
    k(f'v_xor_b32 {vT1}, 32, {vT0}')
    wf = lambda hh, v, nt: Reg('a', 4 * ((hh * 4 + v) * 2 + nt), 4)
    k.manual(True)
    for hh in range(8):
        n_after = (3 if hh == 0 else min(hh + 2, 7) - hh) * 8
        k(f's_waitcnt vmcnt({n_after}) lgkmcnt(0)'); k('s_barrier')
        if hh >= 1 and hh + 3 <= 7: wdma(hh + 3)
        k(f'v_add_u32 v8, {(hh % 4) * 32768}, {vT0}'); k(f'v_add_u32 v9, {(hh % 4) * 32768}, {vT1}')
        for v in range(4):
            for nt in range(2):
                fr = wf(hh, v, nt); ad = 'v8' if nt == 0 else 'v9'
                k(f'ds_read_b64_tr_b16 {fr[0:2]}, {ad} offset:{v * 8192}')
                k(f'ds_read_b64_tr_b16 {fr[2:4]}, {ad} offset:{v * 8192 + 4096}')
    k('s_waitcnt vmcnt(0) lgkmcnt(0)'); k('s_barrier')
    k(f'v_lshlrev_b32 {vF}, 7, {vL}')
    k(f's_lshl_b32 s4, {S_INST}, 11'); k('s_lshl_b32 s5, s38, 3'); k('s_add_u32 s4, s4, s5'); k('s_lshl_b32 s33, s4, 13')
    k(f's_lshl_b32 s5, {S_WAVE}, 10'); k('s_add_u32 s33, s33, s5'); k(f's_add_u32 s33, s33, {OF}')
    k(f's_lshl_b32 s4, {S_INST}, 5'); k('s_lshl_b32 s5, s38, 3'); k('s_add_u32 s4, s4, s5'); k('s_lshl_b32 s4, s4, 7'); k(f's_add_u32 s57, s4, {F_OD}')
    k(f's_mul_i32 s4, {S_INST}, 320'); k('s_add_u32 s4, s4, s39'); k('s_lshl_b32 s4, s4, 2'); k(f's_add_u32 s4, s4, {S_WAVE}'); k('s_lshl_b32 s4, s4, 14')
    k(f's_add_u32 s34, s4, {WOP}')
    k('s_lshl_b32 s5, s38, 10'); k('s_add_u32 s35, s34, s5')
    k('s_lshl_b32 s5, s38, 12'); k('s_add_u32 s36, s34, s5')
    k(f's_mul_i32 s4, {S_INST}, 20'); k('s_lshl_b32 s5, s39, 2'); k('s_add_u32 s4, s4, s5'); k('s_lshl_b32 s4, s4, 7'); k(f's_add_u32 s58, s4, {F_WOP}')
    k('s_lshl_b32 s5, s38, 7'); k('s_add_u32 s59, s58, s5')
    k(f'v_and_b32 {t0}, 15, {vL}'); k(f'v_mul_u32_u24 {t0}, 2560, {t0}'); k(f'v_lshrrev_b32 {t1}, 4, {vL}'); k(f'v_lshl_add_u32 {vOut}, {t1}, 3, {t0}')
    k(f's_mul_i32 s37, {S_INST}, 1280'); k('s_lshl_b32 s4, s39, 8'); k('s_add_u32 s37, s37, s4'); k(f's_lshl_b32 s4, {S_WAVE}, 6'); k('s_add_u32 s37, s37, s4')
    k('s_lshr_b32 s4, s38, 1'); k('s_lshl_b32 s4, s4, 5'); k('s_add_u32 s37, s37, s4')
    k('s_and_b32 s4, s38, 1'); k(f's_mul_i32 s4, s4, {16 * 2560}'); k('s_add_u32 s37, s37, s4')
    k('s_mov_b32 s32, 0')
    if integrated: init_wait(k, ['v15', 'v16'])
    if TIMING:
        k('s_memtime s[84:85]'); k('s_memrealtime s[86:87]'); k('s_waitcnt lgkmcnt(0)')
    LOOP = k.newlabel('WO_LOOP')
    k.label(LOOP)
    if use_flags is True:
        k('s_add_u32 s55, s32, 1'); poll_multi(k, 's57', 8, 's55', 'v15', vF, 'WO_P0')
    for m in range(16):
        k(f's_add_u32 m0, s41, {m * 4096}'); k(f's_add_u32 s5, s33, {m * 4096}')
        k(f'buffer_load_dwordx4 {v16}, {SRD_WS}, s5 offen sc1 lds')
    acc = [[Reg('v', 128 + 4 * (2 * nt + qt), 4) for qt in range(2)] for nt in range(2)]
    bf = [Reg('v', 144 + 4 * i, 4) for i in range(8)]
    for st in range(4):
        k(f's_waitcnt vmcnt({12 - 4 * st})'); k('s_barrier')
        seq = [(hh, v) for hh in (2 * st, 2 * st + 1) for v in range(4)]
        def rd(i):
            hh, v = seq[i]
            for qt in range(2): k(f'ds_read_b128 {bf[(2 * i + qt) % 8]}, {v16} offset:{hh * 8192 + qt * 4096 + v * 1024}')
        for i in range(3): rd(i)
        for i, (hh, v) in enumerate(seq):
            if i + 3 < 8: rd(i + 3)
            k(f's_waitcnt lgkmcnt({2 * min(3, 7 - i)})')
            for qt in range(2):
                for nt in range(2):
                    c = '0' if (st == 0 and i == 0) else str(acc[nt][qt])
                    k(f'v_mfma_f32_16x16x32_bf16 {acc[nt][qt]}, {wf(hh, v, nt)}, {bf[(2 * i + qt) % 8]}, {c}')
    k('s_nop 7')
    for nt in range(2):
        for qt in range(2):
            T = 2 * nt + qt
            k(f's_add_u32 s5, s35, {T * 4096}')
            k(f'buffer_store_dwordx4 {acc[nt][qt]}, {v16}, {SRD_WS}, s5 offen sc1')
    k('s_waitcnt vmcnt(0)'); k('s_barrier')
    LNF = k.newlabel('WO_NF')
    k(f's_cmp_lg_u32 {S_WAVE}, 0'); k(f's_cbranch_scc1 {LNF}')
    k('s_add_u32 s5, s32, 1'); k('v_mov_b32 v16, s5'); k('v_mov_b32 v17, 0'); k('s_mov_b64 exec, 1')
    k(f'buffer_store_dword v16, v17, {SRD_WS}, s59 offen sc1'); k('s_mov_b64 exec, -1')
    k.label(LNF)
    if use_flags:
        k('s_add_u32 s55, s32, 1'); poll_multi(k, 's58', 4, 's55', 'v15', vF, 'WO_P1')
    pr = [Reg('v', 176 + 4 * i, 4) for i in range(4)]
    for i in range(4): k(f'buffer_load_dwordx4 {pr[i]}, {v16}, {SRD_WS}, s36 offen offset:{i * 1024} sc1')
    k('s_waitcnt vmcnt(0)')
    for r in range(4):
        k(f'v_add_f32 {pr[0][r]}, {pr[0][r]}, {pr[1][r]}'); k(f'v_add_f32 {pr[2][r]}, {pr[2][r]}, {pr[3][r]}')
    for r in range(4): k(f'v_add_f32 {pr[0][r]}, {pr[0][r]}, {pr[2][r]}')
    k(f'v_cvt_pk_bf16_f32 {pr[1][0]}, {pr[0][0]}, {pr[0][1]}'); k(f'v_cvt_pk_bf16_f32 {pr[1][1]}, {pr[0][2]}, {pr[0][3]}')
    k(f'buffer_store_dwordx2 {pr[1][0:2]}, {vOut}, {SRD_O}, s37 offen')
    k('s_add_u32 s32, s32, 1')
    k(f's_add_u32 s33, s33, {32 * 8192}'); k(f's_add_u32 s35, s35, {5 * 4 * 16384}'); k(f's_add_u32 s36, s36, {5 * 4 * 16384}')
    k(f's_add_u32 s37, s37, {32 * 2560}')
    k('s_cmp_lt_u32 s32, 64'); k(f's_cbranch_scc1 {LOOP}')
    if TIMING:
        k('s_memtime s[88:89]'); k('s_memrealtime s[90:91]'); k('s_waitcnt lgkmcnt(0)')
        k('s_sub_u32 s88, s88, s84'); k('s_sub_u32 s90, s90, s86')
        k('s_load_dwordx2 s[92:93], s[0:1], 120'); k('s_waitcnt lgkmcnt(0)')
        k(f's_lshl_b32 s94, {S_INST}, 5'); k(f's_add_u32 s94, s94, {S_IDX}'); k('s_lshl_b32 s94, s94, 4')
        k('v_mov_b32 v15, s94'); k('v_add_u32 v15, 36864, v15'); k('v_mov_b32 v20, s88'); k('v_mov_b32 v21, s90'); k('v_mov_b32 v22, 0'); k('v_mov_b32 v23, 0')
        k('global_store_dwordx4 v15, v[20:23], s[92:93]')
    k('s_waitcnt vmcnt(0)')
    k.manual(False); k.drained()
```

```python
import sys
from common import *
import role_kv, role_chain, role_qatt, role_wo
NAME = 'concat_heads__memory_aug_recurrent_mem_tr__memory_aug_recurrent_mem_tr__prompt'
KNAME = NAME + '_kernel'

def prologue(k, LEND):
    k(f's_cmp_ge_u32 s2, 256'); k(f's_cbranch_scc1 {LEND}')
    k(f's_load_dwordx2 {DBG_PTR}, s[0:1], {KA_DBG}')
    k('s_getreg_b32 s12, hwreg(HW_REG_XCC_ID, 0, 4)')
    k('s_waitcnt lgkmcnt(0)')
    k('s_and_b32 s12, s12, 7')
    k('s_lshl_b32 s13, s12, 2')
    k('v_mov_b32 v3, s13'); k('v_mov_b32 v4, 1')
    L = k.newlabel('NA')
    k('v_cmp_eq_u32 vcc, 0, v0'); k('s_and_saveexec_b64 s[14:15], vcc'); k(f's_cbranch_execz {L}')
    k(f'global_atomic_add v5, v3, v4, {DBG_PTR} sc0'); k('s_waitcnt vmcnt(0)')
    k('v_mov_b32 v6, 0'); k('ds_write_b32 v6, v5'); k('s_waitcnt lgkmcnt(0)')
    k.label(L)
    k('s_mov_b64 exec, s[14:15]'); k('s_barrier')
    k('v_mov_b32 v6, 0'); k('ds_read_b32 v5, v6'); k('s_waitcnt lgkmcnt(0)')
    k('v_readfirstlane_b32 s16, v5'); k('s_barrier')
    LOK, LOV, LOVX = k.newlabel('SLOT'), k.newlabel('OV'), k.newlabel('OVX')
    k('s_lshl_b32 s17, s12, 5'); k('s_add_u32 s17, s17, s16')
    k('s_cmp_lt_u32 s16, 32'); k(f's_cbranch_scc1 {LOK}')
    k('v_and_b32 v6, 7, v0'); k('v_lshlrev_b32 v6, 2, v6')
    k('s_mov_b32 s7, 0')
    k.label(LOV)
    k(f'global_load_dword v5, v6, {DBG_PTR} sc1')
    k('s_add_u32 s7, s7, 1'); k('s_cmp_gt_u32 s7, 0x400000'); k(f's_cbranch_scc1 {LOVX}')
    k('s_waitcnt vmcnt(0)')
    k('s_mov_b32 s18, 0')
    for x in range(8):
        k(f'v_readlane_b32 s{40+x}, v5, {x}');
    k('s_nop 1')
    for x in range(8): k(f's_add_u32 s18, s18, s{40+x}')
    k('s_cmp_ge_u32 s18, 256'); k(f's_cbranch_scc1 {LOVX}')
    k('s_sleep 2'); k(f's_branch {LOV}')
    k.label(LOVX)
    k('s_waitcnt vmcnt(0)')
    L2 = k.newlabel('NB')
    k('v_mov_b32 v3, 36'); k('v_mov_b32 v4, 1')
    k('v_cmp_eq_u32 vcc, 0, v0'); k('s_and_saveexec_b64 s[14:15], vcc'); k(f's_cbranch_execz {L2}')
    k(f'global_atomic_add v5, v3, v4, {DBG_PTR} sc0'); k('s_waitcnt vmcnt(0)')
    k('v_mov_b32 v6, 0'); k('ds_write_b32 v6, v5'); k('s_waitcnt lgkmcnt(0)')
    k.label(L2)
    k('s_mov_b64 exec, s[14:15]'); k('s_barrier')
    k('v_mov_b32 v6, 0'); k('ds_read_b32 v5, v6'); k('s_waitcnt lgkmcnt(0)')
    k('v_readfirstlane_b32 s19, v5'); k('s_barrier')
    k('s_mov_b32 s17, 255')
    for x in range(8):
        k(f's_min_u32 s20, s{40+x}, 32'); k('s_sub_u32 s21, 32, s20')
        k(f's_add_u32 s22, s20, {32 * x}'); k('s_add_u32 s22, s22, s19')
        k('s_cmp_lt_u32 s19, s21'); k('s_cselect_b32 s17, s22, s17')
        k('s_cselect_b32 s19, 0x10000, s19'); k('s_cselect_b32 s21, 0, s21'); k('s_sub_u32 s19, s19, s21')
    k.label(LOK)
    k(f's_and_b32 {S_IDX}, s17, 31'); k('s_lshr_b32 s29, s17, 5'); k(f's_and_b32 {S_INST}, s29, 1')
    prologue_common(k, 'v2')

def build(timing=False):
    k = Builder()
    LEND = 'L_END'
    prologue(k, LEND)
    role_chain.INTEGRATED = True
    for m in (role_kv, role_chain, role_qatt, role_wo): m.TIMING = timing
    role_chain.STAMPS_ON = False
    LKV, LQA, LWO = 'L_KV', 'L_QA', 'L_WO'
    k('s_lshr_b32 s4, s29, 1')
    k('s_cmp_eq_u32 s4, 1'); k(f's_cbranch_scc1 {LKV}')
    k('s_cmp_eq_u32 s4, 2'); k(f's_cbranch_scc1 {LQA}')
    k('s_cmp_eq_u32 s4, 3'); k(f's_cbranch_scc1 {LWO}')
    role_chain.role_chain(k); k(f's_branch {LEND}')
    k.label(LKV); k.drained(); role_kv.role_kv(k, integrated=True); k(f's_branch {LEND}')
    k.label(LQA); k.drained(); role_qatt.role_qatt(k, True, integrated=True); k(f's_branch {LEND}')
    k.label(LWO); k.drained(); role_wo.role_wo(k, LEND, True, integrated=True)
    k.label(LEND); k('s_endpgm')
    body = k.finalize()
    print(k.stats, file=sys.stderr)
    head = open('cdna_kernels/' + NAME + '.s.ref').read().split('; Override launch')[0]
    src = head + '; Single persistent launch: 256 workgroups (one per CU), roles picked at run time from the XCD id.\n'
    src += '; @launch grid=(256,1,1) block=(256,1,1) lds=163840\n'
    src += '.amdgcn_target "amdgcn-amd-amdhsa--gfx950"\n.text\n' + kernel_head(KNAME) + body
    src += KD.format(name=KNAME).replace('\n.text\n', '\n')
    return src
if __name__ == '__main__':
    timing = len(sys.argv) > 2 and sys.argv[2] == 'timing'
    out = sys.argv[1] if len(sys.argv) > 1 else 'cdna_kernels/' + NAME + '.s'
    open(out, 'w').write(build(timing))
```

```python
import re

REG_RE = re.compile(r'^(-?|\|?)([vas])(\d+)$')
RANGE_RE = re.compile(r'^([vas])\[(\d+):(\d+)\]$')

def parse_reg(tok):
    t = tok.strip()
    neg = t.startswith('-')
    if neg: t = t[1:]
    if t.startswith('abs(') and t.endswith(')'): t = t[4:-1]
    if t.startswith('|') and t.endswith('|'): t = t[1:-1]
    m = re.match(r'^([vas])(\d+)$', t)
    if m: return [(m.group(1), int(m.group(2)))]
    m = RANGE_RE.match(t)
    if m: return [(m.group(1), i) for i in range(int(m.group(2)), int(m.group(3)) + 1)]
    if t == 'vcc': return [('x', 'vcc')]
    if t in ('vcc_lo', 'vcc_hi'): return [('x', 'vcc')]
    if t in ('exec', 'exec_lo', 'exec_hi'): return [('x', 'exec')]
    if t == 'm0': return [('x', 'm0')]
    if t == 'scc': return [('x', 'scc')]
    return []

def split_ops(s):
    out, depth, cur = [], 0, ''
    for ch in s:
        if ch in '[(': depth += 1
        if ch in '])': depth -= 1
        if ch == ',' and depth == 0:
            out.append(cur.strip()); cur = ''
        else:
            cur += ch
    if cur.strip(): out.append(cur.strip())
    return out

TRANS = ('v_exp_f32', 'v_log_f32', 'v_rcp_f32', 'v_rsq_f32', 'v_sqrt_f32', 'v_sin_f32', 'v_cos_f32', 'v_rcp_iflag_f32')

class Inst:
    __slots__ = ('text', 'op', 'defs', 'uses', 'kind', 'passes', 'tag', 'dpp', 'srcC', 'ab', 'mods', 'wide', 'note', 'nwait')
    def __init__(self, text, tag=None):
        self.text = text; self.tag = tag
        self.defs = []; self.uses = []; self.kind = 'other'; self.passes = 0
        self.dpp = False; self.srcC = []; self.ab = []; self.mods = ''; self.wide = False; self.note = None
        self.nwait = 1
        t = text.split(';')[0].strip()
        if t.endswith(':') or t.startswith('.') or not t:
            self.op = t; self.kind = 'label' if t.endswith(':') else 'dir'; self.nwait = 0
            return
        parts = t.split(None, 1)
        op = parts[0]; self.op = op
        rest = parts[1] if len(parts) > 1 else ''
        ops = split_ops(rest)
        if ops:
            last = ops[-1].split()
            if len(last) > 1:
                ops[-1] = last[0]; self.mods = ' '.join(last[1:])
        base = re.sub(r'_(e32|e64|dpp|sdwa)$', '', op)
        R = [parse_reg(o) for o in ops]
        flat = lambda L: [r for x in L for r in x]
        if op.endswith('_dpp') or 'quad_perm' in self.mods or 'row_' in self.mods:
            self.dpp = True
        if base.startswith('v_mfma') or base.startswith('v_smfmac'):
            self.kind = 'mfma'
            self.passes = 8 if '32x32' in base else 4
            self.defs = R[0]
            if base.startswith('v_smfmac'):
                self.srcC = R[0]; self.ab = R[1] + R[2] + R[3]
            else:
                self.srcC = R[3] if len(R) > 3 else []; self.ab = R[1] + R[2]
            self.uses = self.ab + self.srcC
        elif base.startswith('v_cmpx'):
            raise ValueError('v_cmpx unsupported')
        elif base.startswith('v_cmp'):
            self.kind = 'valu'; self.defs = R[0]; self.uses = flat(R[1:])
        elif base in ('v_readfirstlane_b32', 'v_readlane_b32'):
            self.kind = 'valu'; self.defs = R[0]; self.uses = flat(R[1:])
        elif base.startswith('v_permlane') and 'swap' in base:
            self.kind = 'valu'; self.defs = R[0] + R[1]; self.uses = R[0] + R[1]
        elif base in ('v_fmac_f32', 'v_mac_f32', 'v_writelane_b32', 'v_pk_fmac_f16', 'v_dot2c_f32_bf16'):
            self.kind = 'valu'; self.defs = R[0]; self.uses = flat(R)
        elif base in ('v_add_co_u32', 'v_sub_co_u32', 'v_subrev_co_u32'):
            self.kind = 'valu'; self.defs = R[0] + R[1]; self.uses = flat(R[2:])
        elif base in ('v_addc_co_u32', 'v_subb_co_u32'):
            self.kind = 'valu'; self.defs = R[0] + R[1]; self.uses = flat(R[2:])
        elif base == 'v_nop':
            self.kind = 'valu'
        elif base.startswith('v_'):
            self.kind = 'valu'; self.defs = R[0]; self.uses = flat(R[1:])
            if self.dpp: self.uses = self.uses + R[0]
            if base == 'v_cndmask_b32' and len(ops) == 3: self.uses.append(('x', 'vcc'))
        elif base.startswith('ds_read') or base.startswith('ds_bpermute') or base.startswith('ds_swizzle'):
            self.kind = 'dsr'; self.defs = R[0]; self.uses = flat(R[1:])
        elif base.startswith('ds_'):
            self.kind = 'dsw'; self.uses = flat(R)
        elif base.startswith('global_load_lds') :
            self.kind = 'vmdma'; self.uses = flat(R) + [('x', 'm0')]
        elif base.startswith('buffer_load') and re.search(r'\blds\b', self.mods):
            self.kind = 'vmdma'; self.uses = flat(R) + [('x', 'm0')]
        elif base.startswith('global_load') or base.startswith('buffer_load'):
            self.kind = 'vmld'; self.defs = R[0]; self.uses = flat(R[1:])
        elif base.startswith('global_store') or base.startswith('buffer_store'):
            self.kind = 'vmst'; self.uses = flat(R)
            self.wide = base.endswith('x4') or base.endswith('x3')
            if base.startswith('global_store'):
                self.ab = R[1]
            else:
                self.ab = R[0]
        elif base.startswith('global_atomic') :
            ret = 'sc0' in self.mods
            self.kind = 'vmld' if ret else 'vmst'
            if ret: self.defs = R[0]; self.uses = flat(R[1:])
            else: self.uses = flat(R)
        elif base.startswith('buffer_atomic'):
            ret = 'sc0' in self.mods
            self.kind = 'vmld' if ret else 'vmst'
            self.uses = flat(R)
            if ret: self.defs = R[0]
        elif base in ('buffer_inv', 'buffer_wbl2'):
            self.kind = 'vmst'
        elif base.startswith('s_load') or base in ('s_memtime', 's_memrealtime'):
            self.kind = 'smem'; self.defs = R[0]; self.uses = flat(R[1:])
        elif base == 's_waitcnt':
            self.kind = 'wait'
        elif base == 's_nop':
            self.kind = 'nop'; self.nwait = int(ops[0], 0) + 1
        elif base == 's_barrier':
            self.kind = 'barrier'
        elif base.startswith('s_cbranch') or base == 's_branch':
            self.kind = 'branch'
            if 'scc' in base: self.uses = [('x', 'scc')]
            if 'vcc' in base: self.uses = [('x', 'vcc')]
            if 'exec' in base: self.uses = [('x', 'exec')]
            self.note = ops[0]
        elif base in ('s_endpgm', 's_sleep', 's_setprio'):
            self.kind = 'salu'
        elif base.startswith('s_cmp') or base.startswith('s_bitcmp'):
            self.kind = 'salu'; self.uses = flat(R); self.defs = [('x', 'scc')]
        elif base.startswith('s_'):
            self.kind = 'salu'; self.defs = R[0] + [('x', 'scc')]; self.uses = flat(R[1:])
            if 'saveexec' in base: self.defs = self.defs + [('x', 'exec')]; self.uses = self.uses + [('x', 'exec')]
            if base.startswith('s_cselect') or base in ('s_addc_u32', 's_subb_u32'): self.uses = self.uses + [('x', 'scc')]
            if base in ('s_mov_b32', 's_mov_b64', 's_movk_i32', 's_getreg_b32', 's_cselect_b32', 's_cselect_b64', 's_mul_i32', 's_mul_hi_u32'):
                self.defs = R[0]
            if base.startswith('s_add') and len(R) == 2: self.uses = self.uses + R[0]
        else:
            raise ValueError('unknown instruction: ' + text)

def isv(r): return r[0] in ('v', 'a')

def hazard_need(p, c):
    need = 0
    pd = set(p.defs)
    if p.kind == 'valu':
        vd = {r for r in pd if isv(r)}
        sd = {r for r in pd if not isv(r) and r != ('x', 'scc')}
        if vd:
            cu = set(c.uses)
            if c.kind == 'mfma' and vd & cu: need = max(need, 2)
            if c.kind == 'valu':
                cb = c.op
                if c.dpp and vd & cu: need = max(need, 2)
                if 'permlane' in cb and vd & cu: need = max(need, 2)
                if ('readlane' in cb or 'readfirstlane' in cb) and vd & cu: need = max(need, 1)
                if re.sub(r'_(e32|e64)$', '', p.op) in TRANS and vd & cu: need = max(need, 1)
        if sd:
            cu = set(c.uses)
            if c.kind == 'valu' and sd & cu:
                need = max(need, 4 if ('readlane' in c.op or 'writelane' in c.op) else 2)
            if c.kind in ('vmld', 'vmst', 'vmdma') and sd & cu: need = max(need, 5)
            if c.kind == 'mfma' and ('x', 'exec') in sd: need = max(need, 4)
            if c.kind in ('salu', 'branch') and sd & cu: need = max(need, 1 if c.kind == 'salu' else 0)
    if p.kind == 'salu':
        if ('x', 'm0') in pd and c.kind == 'vmdma': need = max(need, 1)
    if p.kind == 'mfma':
        D = set(p.defs)
        big = {4: 8, 8: 12}[p.passes]
        if c.kind == 'valu' and (D & set(c.uses) or D & set(c.defs)): need = max(need, big)
        if c.kind in ('vmst', 'dsw', 'vmdma') and D & set(c.uses): need = max(need, big)
        if c.kind in ('vmld', 'dsr') and (D & set(c.uses) or D & set(c.defs)): need = max(need, big)
        if c.kind == 'mfma':
            if D & set(c.ab): need = max(need, big)
            cc = set(c.srcC)
            if D & cc:
                if not (cc == D and c.passes == p.passes): need = max(need, {4: 6, 8: 10}[p.passes])
            elif D & set(c.defs):
                need = max(need, {4: 6, 8: 10}[p.passes])
        if c.kind == 'valu' and set(p.srcC) & set(c.defs): need = max(need, {4: 3, 8: 7}[p.passes])
    if p.kind == 'vmst' and p.wide:
        if c.kind == 'valu' and set(p.ab) & set(c.defs): need = max(need, 2)
        elif c.kind in ('dsr', 'vmld', 'mfma') and set(p.ab) & set(c.defs): need = max(need, 1)
    return need

def nop_text(n):
    out = []
    while n > 0:
        k = min(n, 16); out.append('s_nop %d' % (k - 1)); n -= k
    return out

class Marker:
    def __init__(self, kind, **kw): self.kind = kind; self.kw = kw; self.nwait = 0; self.text = None; self.defs = []; self.uses = []

class Pool:
    def __init__(self, name, cls, regs):
        self.name = name; self.cls = cls; self.free = sorted(regs); self.all = set(regs); self.max_used = 0; self.names = {}
    def alloc(self, n=1, align=None, name=None):
        if align is None: align = 1 if n == 1 else 2
        fs = set(self.free)
        for r in self.free:
            if r % align: continue
            if all((r + i) in fs for i in range(n)):
                for i in range(n): self.free.remove(r + i); self.names[r + i] = name
                self.max_used = max(self.max_used, len(self.all) - len(self.free))
                return Reg(self.cls, r, n, self)
        raise RuntimeError('pool %s exhausted allocating %d (%s); live: %s' % (self.name, n, name, sorted(set(self.names[r] for r in self.all - fs if self.names.get(r)))))
    def alloc_at(self, i, n, name=None):
        for j in range(n):
            assert (i + j) in self.free, 'alloc_at busy %d (%s)' % (i + j, self.names.get(i + j))
            self.free.remove(i + j); self.names[i + j] = name
        self.max_used = max(self.max_used, len(self.all) - len(self.free))
        return Reg(self.cls, i, n, self)
    def release(self, reg):
        for i in range(reg.n):
            assert (reg.i + i) not in self.free, 'double free %s' % reg
            self.free.append(reg.i + i)
        self.free.sort()

class Reg:
    def __init__(self, cls, i, n=1, pool=None): self.cls = cls; self.i = i; self.n = n; self.pool = pool
    def __str__(self):
        return '%s%d' % (self.cls, self.i) if self.n == 1 else '%s[%d:%d]' % (self.cls, self.i, self.i + self.n - 1)
    __repr__ = __str__
    def __getitem__(self, k):
        if isinstance(k, slice):
            a = k.start or 0; b = self.n if k.stop is None else k.stop
            return Reg(self.cls, self.i + a, b - a)
        assert 0 <= k < self.n
        return Reg(self.cls, self.i + k, 1)
    def free(self): self.pool.release(self)

class Builder:
    def __init__(self):
        self.items = []; self.uid = 0
    def I(self, text, tag=None):
        for line in text.strip('\n').split('\n'):
            line = line.strip()
            if not line or line.startswith(';'): continue
            self.items.append(Inst(line, tag))
    __call__ = I
    def label(self, name): self.items.append(Inst(name + ':'))
    def newlabel(self, base='L'):
        Builder.gid = getattr(Builder, 'gid', 0) + 1; return '%s_%d' % (base, Builder.gid)
    def wait_vm(self, tag): self.items.append(Marker('wait_vm', tag=tag))
    def wait_lgkm_all(self): self.items.append(Inst('s_waitcnt lgkmcnt(0)'))
    def loop_begin(self): self.items.append(Marker('loop_begin'))
    def loop_end(self): self.items.append(Marker('loop_end'))
    def drained(self, vm=True, lgkm=True): self.items.append(Marker('drained', vm=vm, lgkm=lgkm))
    def manual(self, on): self.items.append(Marker('manual', on=on))
    def comment(self, s): self.items.append(Marker('comment', s=s))
    def pending_vm(self, regs): self.items.append(Marker('pending_vm', regs=regs))
    def save(self): self.items.append(Marker('save'))
    def restore(self): self.items.append(Marker('restore'))
    def cond(self, on): self.items.append(Marker('cond', on=on))

    def _sim(self, items, st, waits):
        vm, lg, manual = st['vm'], st['lg'], st['manual']
        cond = False
        def after(q, j): return sum(1 for e in q[j + 1:] if not e[2])
        def trim(q, k):
            p = len(q); n = 0
            while p > 0:
                if not q[p - 1][2]:
                    if n == k: break
                    n += 1
                p -= 1
            if k == 0: p = len(q)
            del q[:p]
        i = 0
        n = len(items)
        while i < n:
            it = items[i]
            if isinstance(it, Marker):
                if it.kind == 'loop_begin':
                    depth = 1; j = i + 1
                    while True:
                        if isinstance(items[j], Marker):
                            if items[j].kind == 'loop_begin': depth += 1
                            if items[j].kind == 'loop_end':
                                depth -= 1
                                if depth == 0: break
                        j += 1
                    body = items[i + 1:j]
                    st2 = {'vm': vm, 'lg': lg, 'manual': manual}
                    for _ in range(3):
                        self._sim(body, st2, waits)
                    vm, lg, manual = st2['vm'], st2['lg'], st2['manual']
                    i = j + 1; continue
                if it.kind == 'wait_vm':
                    idx = [k for k, e in enumerate(vm) if e[1] == it.kw['tag']]
                    if idx:
                        cnt = after(vm, idx[-1])
                        self._req(waits, it, cnt, None); del vm[:idx[-1] + 1]
                    else:
                        self._req(waits, it, None, None)
                if it.kind == 'drained':
                    if it.kw['vm']: del vm[:]
                    if it.kw['lgkm']: del lg[:]
                if it.kind == 'manual': manual = it.kw['on']
                if it.kind == 'cond': cond = it.kw['on']
                if it.kind == 'pending_vm':
                    for r in it.kw['regs']: vm.append((set(parse_reg(str(r))), None, False))
                if it.kind == 'save': st.setdefault('stack', []).append((list(vm), list(lg), manual))
                if it.kind == 'restore':
                    a_, b_, manual = st['stack'].pop(); vm[:] = a_; lg[:] = b_
                i += 1; continue
            if it.kind == 'wait':
                m = re.search(r'vmcnt\((\d+)\)', it.text)
                if m:
                    k = int(m.group(1))
                    trim(vm, k)
                m = re.search(r'lgkmcnt\((\d+)\)', it.text)
                if m:
                    k = int(m.group(1))
                    if any(e[1] == 'smem' for e in lg):
                        if k == 0: del lg[:]
                    else: trim(lg, k)
                i += 1; continue
            if it.kind in ('label', 'dir'):
                i += 1; continue
            touched = set(it.uses) | set(it.defs)
            if not manual:
                idx = [k for k, e in enumerate(vm) if e[0] & touched]
                if idx:
                    cnt = after(vm, idx[-1])
                    self._req(waits, it, cnt, None); del vm[:idx[-1] + 1]
                idx = [k for k, e in enumerate(lg) if e[0] & touched]
                if idx:
                    if any(e[1] == 'smem' for e in lg):
                        cnt = 0; self._req(waits, it, None, 0); del lg[:]
                    else:
                        cnt = after(lg, idx[-1])
                        self._req(waits, it, None, cnt); del lg[:idx[-1] + 1]
            if it.kind == 'vmld': vm.append((set(it.defs), it.tag, cond))
            elif it.kind in ('vmst', 'vmdma'): vm.append((set(), it.tag, cond))
            elif it.kind == 'dsr': lg.append((set(it.defs), 'ds', cond))
            elif it.kind == 'dsw': lg.append((set(), 'ds', cond))
            elif it.kind == 'smem':
                lg.append((set(it.defs), 'smem', cond))
            assert manual or len(vm) <= 63 + 64, 'vm queue overflow'
            i += 1
        st['vm'], st['lg'], st['manual'] = vm, lg, manual

    def _req(self, waits, it, vm, lg):
        a, b = waits.get(id(it), (None, None))
        if vm is not None: a = vm if a is None else min(a, vm)
        if lg is not None: b = lg if b is None else min(b, lg)
        waits[id(it)] = (a, b)

    def finalize(self):
        waits = {}
        self._sim(self.items, {'vm': [], 'lg': [], 'manual': False}, waits)
        seq = []
        for it in self.items:
            w = waits.get(id(it))
            if w and (w[0] is not None or w[1] is not None):
                parts = []
                if w[0] is not None: parts.append('vmcnt(%d)' % min(w[0], 63))
                if w[1] is not None: parts.append('lgkmcnt(%d)' % min(w[1], 15))
                seq.append(Inst('s_waitcnt ' + ' '.join(parts)))
            if isinstance(it, Marker):
                if it.kind == 'comment': seq.append(Inst('; ' + it.kw['s']))
                continue
            seq.append(it)
        labels = {it.op[:-1]: k for k, it in enumerate(seq) if it.kind == 'label'}
        extra = [0] * len(seq)
        WINDOW = 14
        def check(prev_list, k):
            changed = False
            return changed
        def need_at(k, path_before):
            c = seq[k]; dist = extra[k]; need = 0
            for p_idx in reversed(path_before):
                p = seq[p_idx]
                h = hazard_need(p, c) if p.kind in ('valu', 'salu', 'mfma', 'vmst') else 0
                if h > dist: need = max(need, h - dist)
                dist += p.nwait + extra[p_idx]
                if dist > WINDOW + 8: break
            return need
        real = [k for k, it in enumerate(seq) if it.kind not in ('label', 'dir') and it.text and not it.text.startswith(';')]
        pos = {k: n for n, k in enumerate(real)}
        for _ in range(4):
            changed = False
            for n, k in enumerate(real):
                nd = need_at(k, real[max(0, n - 30):n])
                if nd: extra[k] += nd; changed = True
            for n, k in enumerate(real):
                it = seq[k]
                if it.kind == 'branch' and it.note in labels:
                    tgt = labels[it.note]
                    after = [x for x in real if x > tgt][:30]
                    before = real[max(0, n - 30):n + 1]
                    for m_, x in enumerate(after):
                        nd = need_at(x, before + after[:m_])
                        if nd: extra[x] += nd; changed = True
            if not changed: break
        out = []
        for k, it in enumerate(seq):
            if extra[k]:
                for t in nop_text(extra[k]): out.append('  ' + t)
            if it.kind == 'label': out.append(it.text)
            else: out.append('  ' + it.text)
        self.stats = {'insts': len(real), 'nops': sum(1 for e in extra if e), 'nop_states': sum(extra)}
        return '\n'.join(out) + '\n'
```

```python
from common import *
from role_qatt import poll_flag
import math
TIMING = False
DBG_STEPS = 0
NOPOISON = False
SPIN = 0x40000
SAFE_FLAG = 's25'

XQK = 0; OX = 0; TC = 4096; MEM = 6144; WL = 16384

def ops_list():
    ops = []
    for M in 'QKV':
        for c in range(10):
            for t in range(2): ops.append((M, t, c))
    for i in range(10):
        for c2 in range(2): ops.append(('O', i, c2))
    return ops
G_UNITS = [('K', 9), ('Q', 9), ('O', 0, 1), ('O', 4, 1)]
L_UNITS = [('V', 1), ('V', 2), ('V', 3), ('V', 4), ('V', 5), ('O', 1, 0), ('O', 2, 1), ('O', 3, 0), ('O', 4, 0)]
G23 = 48
G01 = 64
def unit_of(op):
    if op[0] == 'O': return ('O', op[1] >> 1, op[2]), op[1] & 1
    return (op[0], op[2]), op[1]
def all_units():
    u = []
    for M in 'QKV':
        for c in range(10): u.append((M, c))
    for ip in range(5):
        for c2 in range(2): u.append(('O', ip, c2))
    return u
def classify():
    src = {}; nR = 0
    for op in ops_list():
        u, o = unit_of(op)
        if u in G_UNITS: src[op] = ('G', G_UNITS.index(u) * 2 + o)
        elif u in L_UNITS: src[op] = ('L', L_UNITS.index(u), o)
        else:
            reg = Reg('a', 8 * nR, 8) if nR < 32 else Reg('v', 80 + 8 * (nR - 32), 8)
            src[op] = ('R', reg); nR += 1
    assert nR == 54
    return src
SRC = classify()
def unit_ops(u):
    if u[0] == 'O': return [('O', 2 * u[1], u[2]), ('O', 2 * u[1] + 1, u[2])]
    return [(u[0], 0, u[1]), (u[0], 1, u[1])]

v16l, vBL, vIDX, vXW, vXR, vOW, vPS, vLN = 'v0', 'v1', 'v2', 'v3', 'v4', 'v5', 'v6', 'v7'
S_SEG, S_KX, S_KVM, S_PCUR, S_POTH, S_MNEXT, S_MPOI, S_WSTR = 's32', 's33', 's34', 's35', 's36', 's37', 's38', 's39'
M_N2, M_N8, M_N4 = 's[44:45]', 's[46:47]', 's[48:49]'
S_C = 's50'
S_RED = 's51'
S_RLD, S_RPUB = 's52', 's53'
S_PST = 's54'
S_PST2 = 's55'
S_PB, S_MB = 's56', 's57'
S_FKVM, S_FKVD = 's58', 's59'

def startup_weights(k, pool):
    units = [u for u in all_units() if u not in L_UNITS]
    assert len(units) == 31
    for n in range(31, 40): units.append(L_UNITS[n % 9])
    load_srd(k, 12, S_KA, 16, W_BYTES); load_srd(k, 16, S_KA, 24, W_BYTES)
    load_srd(k, 20, S_KA, 32, W_BYTES); load_srd(k, 60, S_KA, 40, W_BYTES)
    SR = {'Q': 's[12:15]', 'K': 's[16:19]', 'V': 's[20:23]', 'O': 's[60:63]'}
    t = pool.alloc(8, name='st')
    vWq, vWo, vTq0, vTq1, vTo0, vTo1 = [t[i] for i in range(6)]
    a, b = t[6], t[7]
    k(f's_and_b32 s4, {S_WAVE}, 1'); k('s_lshl_b32 s4, s4, 1')
    k(f's_lshr_b32 s5, {S_WAVE}, 1'); k('s_lshl_b32 s5, s5, 2'); k('s_or_b32 s4, s4, s5')
    k(f'v_bfe_u32 {a}, {vLN}, 4, 1'); k(f'v_or_b32 {a}, s4, {a}'); k(f'v_lshlrev_b32 {a}, 1, {a}')
    k(f'v_and_b32 {b}, 15, {vLN}'); k(f'v_xor_b32 {a}, {a}, {b}'); k(f'v_lshlrev_b32 {a}, 4, {a}')
    k(f's_lshl_b32 s4, {S_WAVE}, 2')
    k(f'v_lshrrev_b32 {b}, 4, {vLN}'); k(f'v_add_u32 {b}, s4, {b}')
    k(f'v_lshl_add_u32 {vWq}, {b}, 13, {a}')
    k(f'v_mul_u32_u24 {b}, 1280, {b}'); k(f'v_add_u32 {vWo}, {b}, {a}')
    x = pool.alloc(4, name='st2')
    k(f'v_bfe_u32 {x[0]}, {vLN}, 2, 1')
    k(f'v_bfe_u32 {x[1]}, {vLN}, 3, 1')
    k(f'v_bfe_u32 {x[2]}, {vLN}, 4, 1')
    k(f'v_lshrrev_b32 {x[3]}, 5, {vLN}')
    k(f'v_lshl_or_b32 {a}, {x[2]}, 1, {x[0]}'); k(f'v_lshl_or_b32 {a}, {x[1]}, 2, {a}')
    k(f'v_lshl_or_b32 {b}, {x[1]}, 3, {x[0]}'); k(f'v_lshl_or_b32 {b}, {x[2]}, 2, {b}'); k(f'v_lshl_or_b32 {b}, {x[3]}, 4, {b}')
    k(f'v_lshlrev_b32 {b}, 8, {b}')
    k(f'v_and_b32 {x[0]}, 3, {vLN}'); k(f'v_lshl_add_u32 {b}, {x[0]}, 3, {b}')
    k(f's_lshl_b32 s4, {S_WAVE}, 1')
    k(f'v_xor_b32 {x[0]}, s4, {a}'); k(f'v_lshl_add_u32 {vTq0}, {x[0]}, 5, {b}')
    k(f'v_xor_b32 {vTq1}, 32, {vTq0}')
    k(f'v_xor_b32 {x[0]}, {S_WAVE}, {a}'); k(f'v_lshl_add_u32 {vTo0}, {x[0]}, 5, {b}')
    k(f'v_xor_b32 {vTo1}, 128, {vTo0}')
    x.free()
    k(f's_lshl_b32 s40, {S_IDX}, 8'); k(f's_mul_i32 s41, {S_IDX}, {128*1280}'); k(f's_lshl_b32 s42, {S_WAVE}, 10')
    def dma(n):
        u = units[n]; slot = n % 9
        for mm in range(4):
            k(f's_add_u32 m0, s42, {WL + slot * 16384 + mm * 4096}')
            if u[0] == 'O':
                k(f's_add_u32 s5, s41, {(64 * u[2] + 16 * mm) * 1280 + u[1] * 256}')
                k(f'buffer_load_dwordx4 {vWo}, {SR["O"]}, s5 offen lds')
            else:
                k(f's_add_u32 s5, s40, {(64 * u[1] + 16 * mm) * 8192}')
                k(f'buffer_load_dwordx4 {vWq}, {SR[u[0]]}, s5 offen lds')
    tmp = pool.alloc(16, align=2, name='wtmp')
    ad = pool.alloc(2, name='wad')
    k.manual(True)
    DEPTH = 8
    q = []
    def issue(n):
        dma(n); q.extend([n] * 4)
    for n in range(DEPTH): issue(n)
    for n in range(40):
        u = units[n]; slot = n % 9
        last = max(i for i, e in enumerate(q) if e == n)
        k(f's_waitcnt vmcnt({min(63, len(q) - 1 - last)}) lgkmcnt(0)'); del q[:last + 1]
        k('s_barrier')
        if n + DEPTH < 40 and n >= 0:
            issue(n + DEPTH)
        a0, a1 = (vTo0, vTo1) if u[0] == 'O' else (vTq0, vTq1)
        k(f'v_add_u32 {ad[0]}, {WL + slot * 16384}, {a0}')
        k(f'v_add_u32 {ad[1]}, {WL + slot * 16384}, {a1}')
        dsts = []
        for o, op in enumerate(unit_ops(u)):
            s = SRC[op]
            dst = s[1] if s[0] == 'R' else tmp[8 * o:8 * o + 8]
            dsts.append((s, dst))
            for p in range(4):
                off = (32 * (p >> 1) + 2 * (p & 1)) * 256
                k(f'ds_read_b64_tr_b16 {dst[2*p:2*p+2]}, {ad[o]} offset:{off}')
        kind = dsts[0][0][0]
        if kind == 'G':
            k('s_waitcnt lgkmcnt(0)')
            for s, dst in dsts:
                for hh in range(2):
                    k(f's_add_u32 s5, {S_WSTR}, {s[1] * 2048 + hh * 1024}')
                    k(f'buffer_store_dwordx4 {dst[4*hh:4*hh+4]}, {v16l}, {SRD_WS}, s5 offen'); q.append('st')
            k('s_waitcnt vmcnt(%d)' % 0 if False else 's_nop 1')
        if kind == 'L':
            k('s_waitcnt lgkmcnt(0)')
            k('s_barrier')
            k(f's_lshl_b32 s4, {S_WAVE}, 12')
            k(f'v_add_u32 {ad[0]}, s4, {v16l}')
            k(f'v_add_u32 {ad[0]}, {WL + slot * 16384}, {ad[0]}')
            for o, (s, dst) in enumerate(dsts):
                for hh in range(2):
                    k(f'ds_write_b128 {ad[0]}, {dst[4*hh:4*hh+4]} offset:{o*2048 + hh*1024}')
    k('s_waitcnt vmcnt(0) lgkmcnt(0)')
    k('s_barrier')
    k.manual(False); k.drained()
    t.free(); tmp.free(); ad.free()

def smf(k, acc, A, B): k(f'v_smfmac_f32_16x16x64_bf16 {acc}, {A}, {B}, {vIDX}')

INTEGRATED = False
SAFE = [False]
def stf(): return ' sc1' if SAFE[0] else ''

def role_chain(k):
    pool = Pool('chain', 'v', range(8, 80))
    k(f'v_mov_b32 {vLN}, v2')
    inst_kernarg(k)
    k(f'v_lshlrev_b32 {v16l}, 4, {vLN}')
    k(f's_lshl_b32 s4, {S_INST}, 5'); k(f's_add_u32 s4, s4, {S_IDX}'); k('s_lshl_b32 s4, s4, 2'); k(f's_add_u32 s4, s4, {S_WAVE}')
    k(f's_lshl_b32 s4, s4, 14'); k(f's_add_u32 {S_WSTR}, s4, {WSTR}')
    startup_weights(k, pool)
    t = pool.alloc(6, name='init')
    a, b, c_, d = t[0], t[1], t[2], t[3]
    k(f'v_and_b32 {a}, 15, {vLN}'); k(f'v_lshrrev_b32 {b}, 4, {vLN}')
    k(f'v_and_b32 {c_}, 2, {vLN}'); k(f'v_cmp_ne_u32 {M_N2}, 0, {c_}')
    k(f'v_cmp_gt_u32 {M_N8}, 8, {a}'); k(f'v_cmp_gt_u32 {M_N4}, 4, {a}')
    k(f'v_and_b32 {c_}, 1, {vLN}'); k(f'v_cmp_ne_u32 vcc, 0, {c_}')
    k(f'v_mov_b32 {d}, 0x44444444'); k(f'v_mov_b32 {vIDX}, 0xeeeeeeee'); k(f'v_cndmask_b32 {vIDX}, {d}, {vIDX}, vcc')
    k(f's_lshl_b32 s4, {S_WAVE}, 12'); k(f's_add_u32 s4, s4, {WL}'); k(f'v_add_u32 {vBL}, s4, {v16l}')
    k(f's_lshl_b32 s4, {S_WAVE}, 10'); k(f'v_lshlrev_b32 {c_}, 5, {a}'); k(f'v_lshl_add_u32 {c_}, {b}, 3, {c_}'); k(f'v_add_u32 {vXW}, s4, {c_}')
    k(f'v_bfe_u32 {c_}, {vLN}, 2, 2'); k(f'v_lshl_add_u32 {c_}, {b}, 3, {c_}'); k(f'v_lshlrev_b32 {c_}, 5, {c_}')
    k(f'v_and_b32 {d}, 3, {vLN}'); k(f'v_lshl_add_u32 {c_}, {d}, 3, {c_}'); k(f'v_add_u32 {vXR}, s4, {c_}')
    k(f'v_lshrrev_b32 {c_}, 2, {a}'); k(f'v_lshlrev_b32 {c_}, 1, {c_}'); k(f'v_and_b32 {d}, 1, {a}'); k(f'v_or_b32 {c_}, {c_}, {d}')
    k(f'v_lshlrev_b32 {c_}, 1, {c_}'); k(f'v_lshrrev_b32 {d}, 1, {b}'); k(f'v_or_b32 {c_}, {c_}, {d}')
    k(f'v_lshlrev_b32 {c_}, 4, {c_}'); k(f'v_and_b32 {d}, 1, {b}'); k(f'v_lshl_add_u32 {c_}, {d}, 3, {c_}')
    k(f's_lshr_b32 s4, {S_WAVE}, 1'); k('s_lshl_b32 s4, s4, 10'); k(f's_and_b32 s5, {S_WAVE}, 1'); k('s_lshl_b32 s5, s5, 9'); k('s_add_u32 s4, s4, s5')
    k(f'v_add_u32 {vOW}, s4, {c_}')
    k(f'v_lshrrev_b32 {c_}, 2, {a}'); k(f'v_lshlrev_b32 {c_}, 13, {c_}'); k(f'v_and_b32 {d}, 3, {a}'); k(f'v_lshl_add_u32 {d}, {b}, 2, {d}')
    k(f'v_lshl_add_u32 {vPS}, {d}, 4, {c_}')
    k(f's_mov_b32 {S_C}, {hex(f32bits(128 ** -0.5 * math.log2(math.e)))}')
    k(f's_mul_i32 {S_PB}, {S_INST}, {2*PART_BUF}'); k(f's_add_u32 {S_PB}, {S_PB}, {PART}')
    k(f's_mul_i32 {S_MB}, {S_INST}, {3*16384}'); k(f's_add_u32 {S_MB}, {S_MB}, {MEMR}')
    k(f's_lshl_b32 s4, {S_WAVE}, 15'); k(f's_lshl_b32 s5, {S_IDX}, 8'); k(f's_add_u32 {S_PST}, s4, s5')
    k(f's_lshl_b32 s4, {S_WAVE}, 14'); k(f's_lshl_b32 s5, {S_IDX}, 7'); k(f's_add_u32 {S_PST2}, s4, s5'); k(f's_add_u32 {S_PST2}, {S_PST2}, 262144')
    k(f's_mov_b32 {S_RED}, 0')
    k(f's_cmp_eq_u32 {S_WAVE}, 0'); k(f's_cselect_b32 {S_RED}, 1, 0')
    k(f's_cmp_lt_u32 {S_IDX}, 16'); k('s_cselect_b32 s4, 2, 0'); k(f's_cmp_eq_u32 {S_WAVE}, 1'); k(f's_cselect_b32 {S_RED}, s4, {S_RED}')
    k(f's_bfe_u32 s4, {S_IDX}, 0x20002'); k('s_lshl_b32 s4, s4, 8')
    k(f's_bfe_u32 s5, {S_IDX}, 0x10001'); k('s_lshl_b32 s5, s5, 4'); k('s_add_u32 s4, s4, s5')
    k(f's_and_b32 s5, {S_IDX}, 1'); k('s_lshl_b32 s5, s5, 3'); k('s_add_u32 s4, s4, s5')
    k(f's_lshr_b32 s5, {S_IDX}, 4'); k('s_lshl_b32 s5, s5, 12'); k('s_add_u32 s5, s5, s4')
    k('s_add_u32 s4, s4, 8192')
    k(f's_cmp_eq_u32 {S_RED}, 2'); k(f's_cselect_b32 {S_RPUB}, s4, s5')
    k(f's_lshl_b32 s4, {S_IDX}, 12'); k('s_add_u32 s4, s4, 262144'); k(f's_lshl_b32 s5, {S_IDX}, 13')
    k(f's_cmp_eq_u32 {S_RED}, 2'); k(f's_cselect_b32 {S_RLD}, s4, s5')
    k(f's_cmp_eq_u32 {S_RED}, 2'); k(f's_cselect_b64 {M_PUB}, {M_N4}, {M_N8}')
    k(f's_cmp_eq_u32 {S_RED}, 0'); k(f's_cselect_b64 {M_PUB}, 0, {M_PUB}')
    k(f's_cmp_lt_u32 {S_IDX}, 16'); k(f's_cselect_b64 {M_HALFCU}, -1, 0')
    k(f's_cmp_eq_u32 {S_WAVE}, 3'); k(f's_cselect_b64 {M_W3}, 1, 0')
    k(f's_lshl_b32 s4, {S_IDX}, 13'); k(f's_lshl_b32 s5, {S_WAVE}, 11'); k(f's_add_u32 {S_POIF}, s4, s5')
    k(f's_lshl_b32 s4, {S_IDX}, 12'); k(f's_lshl_b32 s5, {S_WAVE}, 10'); k('s_add_u32 s4, s4, s5'); k(f's_add_u32 {S_POIH}, s4, 262144')
    k(f's_lshl_b32 s4, {S_WAVE}, 11'); k(f's_add_u32 {S_TOFF}, s4, {32 * 16384}')
    k(f's_lshl_b32 s4, {S_INST}, 11'); k(f's_add_u32 s4, s4, {S_IDX}')
    k(f's_lshl_b32 {S_KX}, s4, 14'); k(f's_lshl_b32 s5, {S_WAVE}, 11'); k(f's_add_u32 {S_KX}, {S_KX}, s5')
    if KVX: k(f's_add_u32 {S_KX}, {S_KX}, {KVX}')
    k(f's_lshl_b32 {S_KVM}, s4, 12'); k(f's_lshl_b32 s5, {S_WAVE}, 10'); k(f's_add_u32 {S_KVM}, {S_KVM}, s5'); k(f's_add_u32 {S_KVM}, {S_KVM}, {KVM}')
    k(f's_lshl_b32 s4, {S_INST}, 5'); k(f's_add_u32 s4, s4, {S_IDX}'); k('s_lshl_b32 s4, s4, 7')
    k(f's_add_u32 {S_FKVM}, s4, {F_KVM}'); k(f's_add_u32 {S_FKVD}, s4, {F_KVD}')
    k(f's_mov_b32 {S_SEG}, 0'); k(f's_mov_b32 {S_KVSEEN}, 0')
    k(f's_lshl_b32 s4, {S_WAVE}, 10'); k(f's_add_u32 {S_TCW}, s4, {MEM + 6144}')
    k(f's_mov_b32 {S_PCUR}, {S_PB}'); k(f's_add_u32 {S_POTH}, {S_PB}, {PART_BUF}')
    k(f's_add_u32 {S_MNEXT}, {S_MB}, 16384'); k(f's_mov_b32 {S_MPOI}, {S_MB}'); k(f's_mov_b32 {S_MPP}, {S_MB}')
    if INTEGRATED:
        chain_init(k, pool)
    load_srd(k, 12, S_KA, 8, MEM0_BYTES)
    k(f'v_bfe_u32 {c_}, {vLN}, 1, 3'); k(f'v_mul_u32_u24 {c_}, 1280, {c_}')
    k(f'v_lshl_add_u32 {c_}, {b}, 5, {c_}'); k(f'v_and_b32 {d}, 1, {vLN}'); k(f'v_lshl_add_u32 {c_}, {d}, 4, {c_}')
    m0r = pool.alloc(12, align=2, name='m0')
    k(f's_lshl_b32 s4, {S_WAVE}, 7')
    for j in range(3):
        k(f's_add_u32 s5, s4, {j * 512}')
        k(f'buffer_load_dwordx4 {m0r[4*j:4*j+4]}, {c_}, s[12:15], s5 offen')
    k(f's_lshl_b32 s4, {S_WAVE}, 10'); k(f'v_add_u32 {d}, s4, {v16l}')
    k(f'ds_write_b128 {d}, {m0r[0:4]} offset:{MEM}')
    k(f'ds_write_b128 {d}, {m0r[4:8]} offset:{MEM + 4096}')
    L1 = k.newlabel('CH_M0')
    k(f's_cmp_ge_u32 {S_WAVE}, 2'); k(f's_cbranch_scc1 {L1}')
    k(f'ds_write_b128 {d}, {m0r[8:12]} offset:{MEM + 8192}')
    k.label(L1)
    z = m0r
    k('s_waitcnt vmcnt(0) lgkmcnt(0)')
    for i in range(4): k(f'v_mov_b32 {z[i]}, 0')
    k(f'ds_write_b128 {v16l}, {z[0:4]} offset:{TC}')
    k('s_waitcnt lgkmcnt(0)')
    k('s_barrier')
    k.drained()
    m0r.free(); t.free()
    gload(k, Reg('v', G23, 8), 0)
    k('s_waitcnt vmcnt(0)'); k.drained()
    if TIMING:
        k('s_memtime s[64:65]'); k('s_memrealtime s[66:67]'); k('s_waitcnt lgkmcnt(0)')
        for i in range(8): k(f's_mov_b32 s{80+i}, 0')
    LEND = k.newlabel('CH_END')
    if INTEGRATED:
        vt = pool.alloc(2, name='iw')
        init_wait(k, vt)
        k(f's_lshl_b32 s4, {S_INST}, 2'); k(f'v_mov_b32 {vt[1]}, s4')
        k(f'global_load_dword {vt[0]}, {vt[1]}, {DBG_PTR} sc1'); k('s_waitcnt vmcnt(0)')
        k(f'v_readfirstlane_b32 s6, {vt[0]}')
        k('s_mov_b32 s60, s6')
        k('s_mov_b32 s61, 2'); poll_flag(k, S_FKVD, 's61', vt, 'CH_KV0')
        vt.free()
        k.drained()
        LSAFE = k.newlabel('CH_SAFE')
        k('s_cmp_lt_u32 s60, 32'); k(f's_cbranch_scc1 {LSAFE}')
        for safe in (False, True):
            SAFE[0] = safe
            if safe: k.label(LSAFE); k.drained()
            LOOP = k.newlabel('CH_LOOP'); k.label(LOOP)
            step(k, pool, LOOP, LEND)
        SAFE[0] = False
    else:
        LOOP = k.newlabel('CH_LOOP')
        k.label(LOOP)
        step(k, pool, LOOP, LEND)
    k.label(LEND)
    if TIMING:
        k('s_memtime s[68:69]'); k('s_memrealtime s[70:71]'); k('s_waitcnt lgkmcnt(0)')
        k('s_sub_u32 s68, s68, s64'); k('s_sub_u32 s70, s70, s66')
        k('s_load_dwordx2 s[72:73], s[0:1], 120'); k('s_waitcnt lgkmcnt(0)')
        k(f's_lshl_b32 s74, {S_INST}, 5'); k(f's_add_u32 s74, s74, {S_IDX}'); k('s_lshl_b32 s74, s74, 2'); k(f's_add_u32 s74, s74, {S_WAVE}'); k('s_lshl_b32 s74, s74, 6')
        k('v_mov_b32 v8, s74'); k('v_add_u32 v8, 1024, v8')
        k('v_mov_b32 v12, s68'); k('v_mov_b32 v13, s70'); k('v_mov_b32 v14, s66'); k('v_mov_b32 v15, 0')
        k('global_store_dwordx4 v8, v[12:15], s[72:73]')
        for j in range(2):
            for i in range(4): k(f'v_mov_b32 v{16+4*j+i}, s{80+4*j+i}')
            k(f'global_store_dwordx4 v8, v[{16+4*j}:{19+4*j}], s[72:73] offset:{16+16*j}')
        k('s_waitcnt vmcnt(0)')

def chain_init(k, pool):
    p = pool.alloc(4, name='ip'); a = pool.alloc(2, name='ia')
    zero_flag(k, S_FKVM, a)
    L = k.newlabel('CI')
    k(f's_cmp_eq_u32 {S_RED}, 0'); k(f's_cbranch_scc1 {L}')
    for i in range(4): k(f'v_mov_b32 {p[i]}, -1')
    for b in range(2):
        k(f's_add_u32 s5, {S_PB}, {S_RLD}')
        if b: k(f's_add_u32 s5, s5, {PART_BUF}')
        for m in range(4): k(f'buffer_store_dwordx4 {p}, {v16l}, {SRD_WS}, s5 offen offset:{m * 1024} sc1')
        L2 = k.newlabel('CI2')
        k(f's_cmp_eq_u32 {S_RED}, 2'); k(f's_cbranch_scc1 {L2}')
        k('s_add_u32 s5, s5, 4096')
        for m in range(4): k(f'buffer_store_dwordx4 {p}, {v16l}, {SRD_WS}, s5 offen offset:{m * 1024} sc1')
        k.label(L2)
    pub_addr(k, a[0], a[1])
    k(f's_cmp_eq_u32 {S_RED}, 2'); k(f's_cselect_b64 exec, {M_N4}, {M_N8}')
    for b in range(3):
        k(f's_add_u32 s5, {S_MB}, {S_RPUB}')
        if b: k(f's_add_u32 s5, s5, {b * 16384}')
        k(f'buffer_store_dwordx2 {p[0:2]}, {a[0]}, {SRD_WS}, s5 offen sc1')
    k('s_mov_b64 exec, -1')
    k.label(L)
    init_arrive(k, a)
    k.drained()
    p.free(); a.free()

def f32bits(x):
    import struct
    return struct.unpack('<I', struct.pack('<f', x))[0]

STAMP = [0]
def stamp(k, i):
    if not TIMING: return
    k('s_memtime s[76:77]'); k('s_waitcnt lgkmcnt(0)')
    k('s_sub_u32 s78, s76, s79'); k(f's_add_u32 s{80+i}, s{80+i}, s78'); k('s_mov_b32 s79, s76')

def gload(k, dst, gi):
    k(f's_add_u32 s5, {S_WSTR}, {gi * 2048}')
    k(f'buffer_load_dwordx4 {dst[0:4]}, {v16l}, {SRD_WS}, s5 offen')
    k(f'buffer_load_dwordx4 {dst[4:8]}, {v16l}, {SRD_WS}, s5 offen offset:1024')

def zero(k, r):
    for i in range(0, r.n, 2): k(f'v_mov_b64 {r[i:i+2]}, 0')

KVF = ' nt'
S_KVSEEN = 's62'
S_TCW = 's63'
S_MPP = 's88'
S_POIF, S_POIH = 's89', 's96'
M_PUB, M_HALFCU, M_W3 = 's[90:91]', 's[92:93]', 's[94:95]'
NLS_O = 2
NPRE = 4
PRE_SLEEP = 6
TOUCH_ON = True
STAMPS_ON = True
ONLY = None
P1_AT = -1
MARK = None
def mark(k, name):
    if TIMING and MARK == name: stamp(k, 0)

def bstamp(k, i):
    if TIMING and STAMPS_ON and (ONLY is None or ONLY == i): stamp(k, i)

def gload1(k, dst, gi, half):
    if half == 0:
        k(f's_add_u32 s5, {S_WSTR}, {gi * 2048}')
        k(f'buffer_load_dwordx4 {dst[0:4]}, {v16l}, {SRD_WS}, s5 offen')
    else:
        k(f's_add_u32 s5, {S_WSTR}, {gi * 2048}')
        k(f'buffer_load_dwordx4 {dst[4:8]}, {v16l}, {SRD_WS}, s5 offen offset:1024')

class VStream:
    def __init__(self, k, pool, slot, accv, G):
        self.k, self.pool, self.accv, self.G = k, pool, accv, G
        self.order = [9, 8, 7, 6, 0, 1, 2, 3, 4, 5]
        self.slot = {9: slot[9], 8: slot[8], 7: slot[7]}
        self.slot[6] = slot[9]; self.slot[0] = slot[8]; self.slot[1] = slot[7]
        self.slot[2] = slot[9]; self.slot[3] = slot[7]; self.slot[4] = slot[9]; self.slot[5] = slot[7]
        self.after = {}
        for j, p in {3: 0, 4: 1, 5: 2, 6: 3, 7: 5, 8: 6, 9: 7}.items(): self.after.setdefault(p, []).append(j)
        self.ops = [('V', t, c) for c in self.order for t in range(2)]
        self.lops = [op for op in self.ops if SRC[op][0] == 'L']
        self.li = {op: i for i, op in enumerate(self.lops)}
        self.i = 0; self.LS = None; self.bl = None
    def start_l(self):
        self.LS = [self.pool.alloc_at(8, 8, 'L0'), self.pool.alloc_at(16, 8, 'L1')]
        self.lload(0); self.lload(1)
    def lload(self, n):
        op = self.lops[n]; off = SRC[op][1] * 16384 + SRC[op][2] * 2048
        d = self.LS[n % 2]; ad = vBL
        if off >= 65536:
            if self.bl is None:
                self.bl = self.pool.alloc(1, name='blv'); self.k(f'v_add_u32 {self.bl}, 65536, {vBL}')
            ad = str(self.bl); off -= 65536
        self.k(f'ds_read_b128 {d[0:4]}, {ad} offset:{off}'); self.k(f'ds_read_b128 {d[4:8]}, {ad} offset:{off + 1024}')
    def emit(self, n=1):
        k = self.k
        for _ in range(n):
            if self.i >= len(self.ops): return
            op = self.ops[self.i]; s = SRC[op]; c = op[2]
            Bv = s[1] if s[0] == 'R' else (self.G[op[1]] if s[0] == 'G' else self.LS[self.li[op] % 2])
            smf(k, self.accv[op[1]], self.slot[c], Bv)
            if s[0] == 'L' and self.li[op] + 2 < len(self.lops): self.lload(self.li[op] + 2)
            j = self.i // 2
            if op[1] == 1:
                for jn in self.after.get(j, []):
                    cn = self.order[jn]
                    k(f'ds_read_b128 {self.slot[cn]}, {v16l} offset:{MEM + cn * 1024}')
            self.i += 1
    def finish(self):
        self.emit(100)
        for l_ in self.LS: l_.free()
        if self.bl is not None: self.bl.free()

def poison_ops(k, pz):
    def p0():
        k(f'v_mov_b32 {pz[0]}, -1'); k(f'v_mov_b32 {pz[1]}, -1')
        pub_addr(k, pz[2], pz[3])
        k(f's_add_u32 s6, {S_MPP}, {S_RPUB}'); k(f's_mov_b64 exec, {M_PUB}')
        k(f'buffer_store_dwordx2 {pz[0:2]}, {pz[2]}, {SRD_WS}, s6 offen' + stf())
        k('s_mov_b64 exec, -1')
        k(f'v_mov_b32 {pz[2]}, -1'); k(f'v_mov_b32 {pz[3]}, -1')
    def p1():
        k(f's_add_u32 s6, {S_POTH}, {S_POIF}')
        k(f'buffer_store_dwordx4 {pz}, {v16l}, {SRD_WS}, s6 offen' + stf())
    def p2():
        k(f's_add_u32 s6, {S_POTH}, {S_POIF}')
        k(f'buffer_store_dwordx4 {pz}, {v16l}, {SRD_WS}, s6 offen offset:1024' + stf())
    def p3():
        k(f's_add_u32 s6, {S_POTH}, {S_POIH}'); k(f's_mov_b64 exec, {M_HALFCU}')
        k(f'buffer_store_dwordx4 {pz}, {v16l}, {SRD_WS}, s6 offen' + stf())
        k('s_mov_b64 exec, -1')
    return [p0, p1, p2, p3]

def step(k, pool, LOOP, LEND):
    if TIMING and STAMPS_ON:
        k('s_memtime s[76:77]'); k('s_waitcnt lgkmcnt(0)'); k('s_mov_b32 s79, s76')
    G0, G1 = pool.alloc_at(G01, 8, 'G0'), pool.alloc_at(G01 + 8, 8, 'G1')
    G2, G3 = pool.alloc_at(G23, 8, 'G2'), pool.alloc_at(G23 + 8, 8, 'G3')
    k.pending_vm([G2[0:4], G2[4:8]])
    pz = pool.alloc_at(44, 4, 'pz')
    accq = [pool.alloc_at(8, 4, 'q0'), pool.alloc_at(12, 4, 'q1')]
    acck = [pool.alloc_at(16, 4, 'k0'), pool.alloc_at(24, 4, 'k1')]
    A = [pool.alloc_at(28, 4, 'A0'), pool.alloc_at(32, 4, 'A1'), pool.alloc_at(20, 4, 'A2')]
    KX = pool.alloc_at(36, 8, 'KX')
    slot = {c: A[c % 3] for c in range(10)}
    def rdA(c): k(f'ds_read_b128 {slot[c]}, {v16l} offset:{MEM + c * 1024}')
    rdA(0); rdA(1)
    for r in accq + acck: zero(k, r)
    gmap = {('K', 0, 9): G2, ('K', 1, 9): G3, ('Q', 0, 9): G0, ('Q', 1, 9): G1}
    def B(op):
        s = SRC[op]
        return s[1] if s[0] == 'R' else gmap[op]
    po = poison_ops(k, pz)
    def kx(h): k(f'buffer_load_dwordx4 {KX[4*h:4*h+4]}, {v16l}, {SRD_WS}, {S_KX} offen offset:{1024*h}' + KVF)
    vm = {0: lambda: gload1(k, G3, 1, 0), 1: lambda: gload1(k, G3, 1, 1), 2: lambda: gload1(k, G0, 2, 0), 3: lambda: gload1(k, G0, 2, 1),
          4: lambda: gload1(k, G1, 3, 0), 5: lambda: gload1(k, G1, 3, 1), 6: lambda: None, 7: lambda: kx(0), 8: lambda: kx(1)}
    for c in range(9):
        if c + 2 < 10: rdA(c + 2)
        if TIMING and P1_AT == c: stamp(k, 0)
        for t in range(2): smf(k, acck[t], slot[c], B(('K', t, c)))
        vm[c]()
        for t in range(2): smf(k, accq[t], slot[c], B(('Q', t, c)))
    for t in range(2): smf(k, acck[t], slot[9], B(('K', t, 9)))
    accv = [G2[0:4], G2[4:8]]
    zero(k, G2)
    VX = G3
    k(f's_add_u32 s5, {S_KX}, 8192')
    k(f'buffer_load_dwordx4 {VX[0:4]}, {v16l}, {SRD_WS}, s5 offen' + KVF)
    for t in range(2): smf(k, accq[t], slot[9], B(('Q', t, 9)))
    G0.free(); G1.free()
    bstamp(k, 0)
    V = VStream(k, pool, slot, accv, None)
    V.emit(2)
    k(f's_add_u32 s5, {S_KX}, 8192')
    k(f'buffer_load_dwordx4 {VX[4:8]}, {v16l}, {SRD_WS}, s5 offen offset:1024' + KVF)
    W = pool.alloc_at(64, 4, 'W')
    KV4 = pool.alloc_at(68, 4, 'KV4')
    TCH = pool.alloc_at(76, 2, 'touch')
    if TOUCH_ON:
        k(f'v_lshlrev_b32 {TCH[1]}, 3, {v16l}')
        k(f's_add_u32 s5, {S_KX}, {S_TOFF}')
        k('s_mov_b64 exec, 0xffffffff')
        k(f'buffer_load_dword {TCH[0]}, {TCH[1]}, {SRD_WS}, s5 offen')
        k('s_mov_b64 exec, -1')
    V.emit(2)
    for t in range(2):
        a = acck[t]
        k(f'v_add_f32 {a[0]}, {a[0]}, {a[1]}'); k(f'v_add_f32 {a[2]}, {a[2]}, {a[3]}')
        k(f'v_cvt_pk_bf16_f32 {W[2*t]}, {a[0]}, {a[2]}')
    for t in range(2):
        a = accq[t]
        k(f'v_add_f32 {a[0]}, {a[0]}, {a[1]}'); k(f'v_add_f32 {a[2]}, {a[2]}, {a[3]}')
        k(f'v_cvt_pk_bf16_f32 {W[2*t+1]}, {a[0]}, {a[2]}')
        k(f'ds_write_b64 {vXW}, {W[2*t:2*t+2]} offset:{XQK + t * 512}')
    for r in accq + acck: r.free()
    V.emit(2)
    for t in range(2): k(f'v_mov_b32 {KV4[2*t]}, {W[2*t]}')
    po[0]()
    k('s_waitcnt lgkmcnt(0)'); k('s_barrier'); k.drained(vm=False)
    W.free()
    bstamp(k, 1)
    X0 = pool.alloc_at(8, 4, 'X0'); XR = [pool.alloc_at(12, 4, 'Xa'), pool.alloc_at(16, 4, 'Xb')]
    xa = KV4[1]
    def rdX(dst, m):
        ad = vXR
        if m:
            k(f'v_xor_b32 {xa}, {m * 1024}, {vXR}'); ad = str(xa)
        k(f'ds_read_b64_tr_b16 {dst[0:2]}, {ad} offset:{XQK}')
        k(f'ds_read_b64_tr_b16 {dst[2:4]}, {ad} offset:{XQK + 128}')
    rdX(X0, 0); rdX(XR[0], 1); rdX(XR[1], 2)
    po[1]()
    V.emit(2)
    TX = [pool.alloc_at(24, 4, 'TX0'), pool.alloc_at(64, 4, 'TX1')]
    TM = pool.alloc_at(72, 4, 'TM')
    for t in range(2): k(f'v_mfma_f32_16x16x32_bf16 {TX[t]}, {KX[4*t:4*t+4]}, {X0}, 0')
    k(f'v_mfma_f32_16x16x32_bf16 {TM}, {X0}, {X0}, 0')
    rdX(X0, 3)
    k(f'v_mfma_f32_16x16x32_bf16 {TM}, {XR[0]}, {XR[0]}, {TM}')
    k(f'v_mfma_f32_16x16x32_bf16 {TM}, {XR[1]}, {XR[1]}, {TM}')
    V.emit(2)
    k(f'v_mfma_f32_16x16x32_bf16 {TM}, {X0}, {X0}, {TM}')
    for x_ in XR + [X0, KX]: x_.free()
    A[2].free()
    V.start_l()
    k(f's_mov_b64 vcc, {M_N2}')
    k(f'v_add_u32 {xa}, {S_TCW}, {v16l}')
    po[2]()
    for r in range(4):
        k(f'v_cndmask_b32_dpp {TX[0][r]}, {TX[1][r]}, {TX[0][r]}, vcc quad_perm:[2,3,2,3] row_mask:0xf bank_mask:0xf')
    k(f'ds_write_b128 {xa}, {TX[0]}')
    po[3](); pz.free()
    V.emit(2)
    k('s_waitcnt lgkmcnt(0)'); k('s_barrier'); k.drained(vm=False)
    bstamp(k, 2)
    S = TX[0]; S1 = TX[1]; S2 = pool.alloc_at(36, 4, 'S2'); S3 = pool.alloc_at(40, 4, 'S3')
    for m, dst in ((1, S1), (2, S2), (3, S3)):
        k(f'v_xor_b32 {dst[0]}, {m * 1024}, {xa}')
        k(f'ds_read_b128 {dst}, {dst[0]}')
    mx, t1 = TM[2], TM[3]
    k(f'v_mov_b32 {t1}, 0xff800000')
    k(f'v_cndmask_b32 {TM[0]}, {t1}, {TM[0]}, vcc')
    k(f'v_cndmask_b32 {TM[1]}, {t1}, {TM[1]}, vcc')
    k(f'v_max_f32 {mx}, {TM[0]}, {TM[1]}')
    V.emit(2)
    for r in range(4): k(f'v_add_f32 {S[r]}, {S[r]}, {S1[r]}')
    for r in range(4): k(f'v_add_f32 {S2[r]}, {S2[r]}, {S3[r]}')
    for r in range(4): k(f'v_add_f32 {S[r]}, {S[r]}, {S2[r]}')
    for r_ in (S1, S2, S3): r_.free()
    mark(k, 'adds')
    k(f'v_max3_f32 {mx}, {mx}, {S[0]}, {S[1]}'); k(f'v_max3_f32 {mx}, {mx}, {S[2]}, {S[3]}')
    V.emit(2)
    k(f'v_max_f32_dpp {mx}, {mx}, {mx} quad_perm:[2,3,0,1] row_mask:0xf bank_mask:0xf')
    k(f'v_mov_b32 {t1}, {mx}')
    k(f'v_permlane16_swap_b32 {mx}, {t1}'); k(f'v_max_f32 {mx}, {mx}, {t1}')
    k(f'v_mov_b32 {t1}, {mx}')
    k(f'v_permlane32_swap_b32 {mx}, {t1}'); k(f'v_max_f32 {mx}, {mx}, {t1}')
    k(f'v_mul_f32 {mx}, {S_C}, {mx}')
    mark(k, 'max')
    V.emit(2)
    for r in range(4): k(f'v_fma_f32 {S[r]}, {S[r]}, {S_C}, -{mx}')
    for r in range(2): k(f'v_fma_f32 {TM[r]}, {TM[r]}, {S_C}, -{mx}')
    for r in range(4): k(f'v_exp_f32 {S[r]}, {S[r]}')
    for r in range(2): k(f'v_exp_f32 {TM[r]}, {TM[r]}')
    mark(k, 'exp')
    V.finish()
    mark(k, 'vfin')
    A[0].free(); A[1].free()
    GOa = [pool.alloc(8, name='GOa0'), pool.alloc(8, name='GOa1')]
    gload1(k, GOa[0], 4, 0)
    P = pool.alloc(4, name='P'); BM = pool.alloc(2, name='BM')
    k(f'v_cvt_pk_bf16_f32 {P[0]}, {S[0]}, {S[1]}'); k(f'v_cvt_pk_bf16_f32 {P[1]}, {S[2]}, {S[3]}')
    k(f'v_mov_b32 {BM[0]}, 0'); k(f'v_cvt_pk_bf16_f32 {BM[1]}, {TM[0]}, {TM[1]}')
    k(f'v_mov_b32_dpp {P[2]}, {P[0]} quad_perm:[0,1,0,1] row_mask:0xf bank_mask:0xf')
    k(f'v_mov_b32_dpp {P[3]}, {P[1]} quad_perm:[0,1,0,1] row_mask:0xf bank_mask:0xf')
    O = [pool.alloc(4, name='O0'), pool.alloc(4, name='O1')]
    gload1(k, GOa[0], 4, 1)
    for t in range(2):
        k(f'v_add_f32 {accv[t][0]}, {accv[t][0]}, {accv[t][1]}'); k(f'v_add_f32 {accv[t][2]}, {accv[t][2]}, {accv[t][3]}')
        k(f'v_cvt_pk_bf16_f32 {KV4[2*t+1]}, {accv[t][0]}, {accv[t][2]}')
    for t in range(2): k(f'v_mfma_f32_16x16x32_bf16 {O[t]}, {VX[4*t:4*t+4]}, {P}, 0')
    mark(k, 'pvx')
    gload1(k, GOa[1], 5, 0)
    ls = S[0]
    k(f'v_add_f32 {S[0]}, {S[0]}, {S[1]}'); k(f'v_add_f32 {S[2]}, {S[2]}, {S[3]}'); k(f'v_add_f32 {t1}, {TM[0]}, {TM[1]}')
    for t in range(2): k(f'v_mfma_f32_16x16x16_bf16 {O[t]}, {KV4[2*t:2*t+2]}, {BM}, {O[t]}')
    k(f'v_add_f32 {ls}, {S[0]}, {S[2]}'); k(f'v_add_f32 {ls}, {ls}, {t1}')
    G2.free()
    LCONT = k.newlabel('CH_CONT')
    k(f's_cmp_lt_u32 {S_SEG}, 63'); k(f's_cbranch_scc1 {LCONT}')
    k.save()
    k(f'buffer_store_dwordx4 {KV4}, {v16l}, {SRD_WS}, {S_KVM} offen sc1')
    k('s_waitcnt vmcnt(0)'); k('s_barrier')
    flag_store(k, pool, S_FKVM, '64')
    k('s_waitcnt vmcnt(0)')
    k(f's_branch {LEND}')
    k.restore()
    k.label(LCONT)
    gload1(k, GOa[1], 5, 1)
    k(f'v_add_f32_dpp {ls}, {ls}, {ls} quad_perm:[2,3,0,1] row_mask:0xf bank_mask:0xf')
    k(f'v_mov_b32 {t1}, {ls}'); k(f'v_permlane16_swap_b32 {ls}, {t1}'); k(f'v_add_f32 {ls}, {ls}, {t1}')
    k(f'v_mov_b32 {t1}, {ls}'); k(f'v_permlane32_swap_b32 {ls}, {t1}'); k(f'v_add_f32 {ls}, {ls}, {t1}')
    k(f'v_rcp_f32 {ls}, {ls}')
    mark(k, 'rcp')
    G3.free()
    GOb = [pool.alloc(8, name='GOb0'), pool.alloc(8, name='GOb1')]
    gload1(k, GOb[0], 6, 0)
    for t in range(2):
        for r in range(4): k(f'v_mul_f32 {O[t][r]}, {O[t][r]}, {ls}')
        k(f'v_cvt_pk_bf16_f32 {P[2*t]}, {O[t][0]}, {O[t][1]}'); k(f'v_cvt_pk_bf16_f32 {P[2*t+1]}, {O[t][2]}, {O[t][3]}')
    k(f's_mov_b64 exec, {M_N2}')
    for t in range(2): k(f'ds_write_b64 {vOW}, {P[2*t:2*t+2]} offset:{OX + t * 256}')
    k('s_mov_b64 exec, -1')
    mark(k, 'oxw')
    gload1(k, GOb[0], 6, 1)
    for r in (S, TM, BM, O[0], O[1]): r.free()
    LS = [pool.alloc(8, name=f'L{i}') for i in range(NLS_O)]
    bl = pool.alloc(1, name='blo')
    k(f'v_add_u32 {bl}, 81920, {vBL}')
    oops = [('O', i, c2) for i in range(10) for c2 in range(2)]
    lops = [op for op in oops if SRC[op][0] == 'L']
    li = {op: i for i, op in enumerate(lops)}
    def lload(n):
        op = lops[n]; base = (SRC[op][1] - 5) * 16384 + SRC[op][2] * 2048
        k(f'ds_read_b128 {LS[n % NLS_O][0:4]}, {bl} offset:{base}'); k(f'ds_read_b128 {LS[n % NLS_O][4:8]}, {bl} offset:{base + 1024}')
    for n in range(NLS_O): lload(n)
    P.free()
    AO = [pool.alloc(4, name='AO0'), pool.alloc(4, name='AO1')]
    acc = {}
    for i in range(NPRE):
        try: acc[i] = pool.alloc(4, name=f'o{i}')
        except RuntimeError: break
        zero(k, acc[i])
    mark(k, 'preb3')
    k('s_waitcnt lgkmcnt(0)'); k('s_barrier'); k.drained(vm=False)
    for c2 in range(2): k(f'ds_read_b128 {AO[c2]}, {v16l} offset:{OX + c2 * 1024}')
    gload1(k, GOb[1], 7, 0); gload1(k, GOb[1], 7, 1)
    k(f'buffer_store_dwordx4 {KV4}, {v16l}, {SRD_WS}, {S_KVM} offen sc1')
    k(f'v_mov_b32 {TCH[1]}, {S_SEG}')
    k(f's_mov_b64 exec, {M_W3}')
    k(f'buffer_store_dword {TCH[1]}, {v16l}, {SRD_WS}, {S_FKVM} offen sc1')
    k('s_mov_b64 exec, -1')
    KV4.free(); TCH.free()
    bstamp(k, 3)
    def epi(i):
        a = acc[i]; q = acc[i & ~3]
        k(f'v_add_f32 {a[0]}, {a[0]}, {a[1]}'); k(f'v_add_f32 {a[2]}, {a[2]}, {a[3]}')
        k(f'v_cvt_pk_bf16_f32 {q[i & 3]}, {a[0]}, {a[2]}')
        if i & 3: a.free()
        if i in (3, 7):
            k(f's_add_u32 s5, {S_PCUR}, {S_PST}')
            if i == 7: k(f's_add_u32 s5, s5, {16 * 8192}')
            k(f'buffer_store_dwordx4 {q}, {vPS}, {SRD_WS}, s5 offen' + stf()); q.free()
        if i == 9:
            h2 = pool.alloc(1, name='ps2'); k(f'v_lshrrev_b32 {h2}, 1, {vPS}')
            k(f's_add_u32 s5, {S_PCUR}, {S_PST2}')
            k(f'buffer_store_dwordx2 {q[0:2]}, {h2}, {SRD_WS}, s5 offen' + stf()); h2.free(); q.free()
    gmap = {('O', 0, 1): GOa[0], ('O', 1, 1): GOa[1], ('O', 8, 1): GOb[0], ('O', 9, 1): GOb[1]}
    def grab(nx):
        if nx < 10 and nx not in acc:
            try: acc[nx] = pool.alloc(4, name=f'o{nx}')
            except RuntimeError: return False
            zero(k, acc[nx])
        return True
    for i in range(10):
        assert grab(i)
        for c2 in range(2):
            op = ('O', i, c2); s = SRC[op]
            Bv = s[1] if s[0] == 'R' else (gmap[op] if s[0] == 'G' else LS[li[op] % NLS_O])
            smf(k, acc[i], AO[c2], Bv)
            if s[0] == 'L' and li[op] + NLS_O < len(lops): lload(li[op] + NLS_O)
        mark(k, 'r%d' % i)
        if i < 2: GOa[i].free()
        if i >= 2: epi(i - 2)
        for nx in (i + 1, i + 2, i + 3): grab(nx)
    epi(8); epi(9)
    for r in AO + LS + GOb + [bl]: r.free()
    bstamp(k, 4)
    hops(k, pool)
    bstamp(k, 5)
    k(f's_add_u32 {S_SEG}, {S_SEG}, 1')
    k(f's_add_u32 {S_KX}, {S_KX}, {32 * 16384}'); k(f's_add_u32 {S_KVM}, {S_KVM}, {32 * 4096}')
    k(f's_mov_b32 s5, {S_PCUR}'); k(f's_mov_b32 {S_PCUR}, {S_POTH}'); k(f's_mov_b32 {S_POTH}, s5')
    k(f's_mov_b32 {S_MPP}, {S_MPOI}')
    k(f's_mov_b32 {S_MPOI}, {S_MNEXT}')
    k(f's_add_u32 {S_MNEXT}, {S_MNEXT}, 16384'); k(f's_sub_u32 s5, {S_MNEXT}, {S_MB}'); k('s_cmp_eq_u32 s5, 49152')
    k(f's_cselect_b32 {S_MNEXT}, {S_MB}, {S_MNEXT}')
    if DBG_STEPS:
        k(f's_cmp_ge_u32 {S_SEG}, {DBG_STEPS}'); k(f's_cbranch_scc1 {LEND}')
    k(f's_branch {LOOP}')

KVM_EARLY = False
S_TOFF = 's97'
def hops(k, pool):
    LPOLL, LNR = k.newlabel('HP_POLL'), k.newlabel('HP_NR')
    G2 = pool.alloc_at(G23, 8, 'G2')
    k.manual(True)
    k(f's_cmp_eq_u32 {S_RED}, 0'); k(f's_cbranch_scc1 {LNR}')
    G2.free()
    hop1(k, pool)
    G2 = pool.alloc_at(G23, 8, 'G2')
    k(f's_branch {LPOLL}')
    k.label(LNR)
    if INTEGRATED:
        LSEEN = k.newlabel('HP_SEEN')
        k(f's_cmp_lg_u32 {S_WAVE}, 3'); k(f's_cbranch_scc1 {LSEEN}')
        k(f's_add_u32 s61, {S_SEG}, 3'); k('s_min_u32 s61, s61, 64')
        k(f's_cmp_ge_u32 {S_KVSEEN}, s61'); k(f's_cbranch_scc1 {LSEEN}')
        vt = pool.alloc(2, name='kvp')
        poll_flag(k, S_FKVD, 's61', vt, 'CH_KV')
        k(f's_mov_b32 {S_KVSEEN}, s6')
        vt.free()
        k.label(LSEEN)
    if PRE_SLEEP: k(f's_sleep {PRE_SLEEP}')
    k.label(LPOLL)
    d = pool.alloc(12, align=2, name='mland'); t = pool.alloc(2, name='h2t')
    k(f's_lshl_b32 s4, {S_WAVE}, 1'); k(f's_cmp_eq_u32 {S_WAVE}, 3'); k('s_cselect_b32 s4, 7, s4'); k('s_lshl_b32 s4, s4, 10')
    k(f's_add_u32 s5, {S_MNEXT}, s4')
    k(f'v_add_u32 {t[1]}, s4, {v16l}')
    k('s_mov_b32 s7, 0')
    L3, L2, LD = k.newlabel('H2_3'), k.newlabel('H2_2'), k.newlabel('H2_D')
    k(f's_cmp_ge_u32 {S_WAVE}, 2'); k(f's_cbranch_scc1 {L3}')
    for n, L in ((2, L2), (3, L3)):
        LX = k.newlabel('H2_X')
        k.label(L)
        for j in range(n): k(f'buffer_load_dwordx4 {d[4*j:4*j+4]}, {v16l}, {SRD_WS}, s5 offen offset:{j * 1024} sc1')
        k('s_add_u32 s7, s7, 1'); k('s_cmp_gt_u32 s7, ' + hex(SPIN)); k(f's_cbranch_scc1 {LX}')
        k('s_waitcnt vmcnt(0)')
        k(f'v_max3_u32 {t[0]}, {d[0]}, {d[1]}, {d[2]}')
        rest = list(range(3, 4 * n))
        while rest:
            if len(rest) >= 2: k(f'v_max3_u32 {t[0]}, {t[0]}, {d[rest[0]]}, {d[rest[1]]}'); rest = rest[2:]
            else: k(f'v_max_u32 {t[0]}, {t[0]}, {d[rest[0]]}'); rest = rest[1:]
        k(f'v_cmp_eq_u32 vcc, -1, {t[0]}')
        k(f's_cbranch_vccnz {L}')
        k.label(LX)
        k('s_waitcnt vmcnt(0)')
        bstamp(k, 7)
        for j in range(n): k(f'ds_write_b128 {t[1]}, {d[4*j:4*j+4]} offset:{MEM + j * 1024}')
        if n == 2: k(f's_branch {LD}')
    k.label(LD)
    gload1(k, G2, 0, 0); gload1(k, G2, 0, 1)
    d.free(); t.free()
    k('s_waitcnt lgkmcnt(0)'); k('s_barrier')
    k.manual(False); k.drained()
    G2.free()

def flag_store(k, pool, s_off, val):
    f = pool.alloc(2, name='flag')
    k(f'v_mov_b32 {f[0]}, {val}'); k(f'v_mov_b32 {f[1]}, 0')
    k('s_mov_b64 exec, 1')
    k(f'buffer_store_dword {f[0]}, {f[1]}, {SRD_WS}, {s_off} offen sc1')
    k('s_mov_b64 exec, -1')
    f.free()

def pub_addr(k, dst, tmp):
    k(f'v_bfe_u32 {dst}, {vLN}, 1, 3'); k(f'v_lshlrev_b32 {dst}, 10, {dst}')
    k(f'v_lshrrev_b32 {tmp}, 4, {vLN}'); k(f'v_lshl_add_u32 {dst}, {tmp}, 6, {dst}')
    k(f'v_and_b32 {tmp}, 1, {vLN}'); k(f'v_lshl_add_u32 {dst}, {tmp}, 5, {dst}')

def hop1(k, pool):
    LFULL, LHALF, LPUB = k.newlabel('H1_F'), k.newlabel('H1_H'), k.newlabel('H1_P')
    dA = pool.alloc_at(8, 16, 'landA'); dB = pool.alloc_at(G23, 16, 'landB')
    class DD:
        def __getitem__(self, x):
            if isinstance(x, slice):
                a, b = x.start, x.stop
                return dA[a:b] if a < 16 else dB[a - 16:b - 16]
            return dA[x] if x < 16 else dB[x - 16]
        def free(self): dA.free(); dB.free()
    d = DD(); sel = pool.alloc(4, name='sel'); acc = pool.alloc(4, name='racc'); t = pool.alloc(3, name='h1t')
    def setup():
        k(f'v_and_b32 {t[0]}, 1, {vLN}'); k(f'v_lshlrev_b32 {t[0]}, 4, {t[0]}'); k(f'v_mov_b32 {t[1]}, 0x3f80'); k(f'v_lshlrev_b32 {t[0]}, {t[0]}, {t[1]}')
        k(f'v_bfe_u32 {t[1]}, {vLN}, 1, 3')
        for dd in range(4):
            k(f'v_cmp_eq_u32 vcc, {dd}, {t[1]}'); k('s_nop 1'); k(f'v_cndmask_b32 {sel[dd]}, 0, {t[0]}, vcc')
        pub_addr(k, t[0], t[1])
    k(f's_add_u32 s5, {S_PCUR}, {S_RLD}'); k('s_add_u32 s6, s5, 4096')
    k('s_mov_b32 s7, 0')
    k(f's_cmp_eq_u32 {S_RED}, 2'); k(f's_cbranch_scc1 {LHALF}')
    def check(L, n):
        LX = k.newlabel('H1_X')
        k('s_nop 7')
        k(f'v_cmp_u_f32 vcc, {acc[0]}, {acc[1]}'); k(f'v_cmp_u_f32 s[40:41], {acc[2]}, {acc[3]}'); k('s_nop 1'); k('s_or_b64 vcc, vcc, s[40:41]')
        k(f's_cbranch_vccz {LPUB}')
        k(f'v_max3_u32 {t[1]}, {d[0]}, {d[1]}, {d[2]}')
        rest = list(range(3, n))
        while rest:
            if len(rest) >= 2: k(f'v_max3_u32 {t[1]}, {t[1]}, {d[rest[0]]}, {d[rest[1]]}'); rest = rest[2:]
            else: k(f'v_max_u32 {t[1]}, {t[1]}, {d[rest[0]]}'); rest = rest[1:]
        k(f'v_cmp_eq_u32 vcc, -1, {t[1]}')
        k(f's_cbranch_vccz {LPUB}')
        k('s_add_u32 s7, s7, 1'); k('s_cmp_gt_u32 s7, ' + hex(SPIN)); k(f's_cbranch_scc0 {L}')
        k(f's_branch {LPUB}')
    def loads_full():
        for m in range(8):
            k(f'buffer_load_dwordx4 {d[4*m:4*m+4]}, {v16l}, {SRD_WS}, {"s5" if m < 4 else "s6"} offen offset:{(m % 4) * 1024} sc1')
    setup()
    k.label(LFULL); loads_full()
    for m in range(8):
        k(f's_waitcnt vmcnt({7 - m})')
        k(f'v_mfma_f32_16x16x32_bf16 {acc}, {d[4*m:4*m+4]}, {sel}, ' + ('0' if m == 0 else str(acc)))
    check(LFULL, 32)
    k.label(LHALF)
    k(f'v_lshrrev_b32 {t[2]}, 1, {v16l}')
    def loads_half():
        for m in range(8):
            k(f'buffer_load_dwordx2 {d[2*m:2*m+2]}, {t[2]}, {SRD_WS}, s5 offen offset:{m * 512} sc1')
    LH2 = k.newlabel('H1_H2')
    setup()
    k.label(LH2); loads_half()
    for m in range(8):
        k(f's_waitcnt vmcnt({7 - m})')
        k(f'v_mfma_f32_16x16x16_bf16 {acc}, {d[2*m:2*m+2]}, {sel[0:2]}, ' + ('0' if m == 0 else str(acc)))
    check(LH2, 16)
    k.label(LPUB)
    bstamp(k, 6)
    k(f'v_cvt_pk_bf16_f32 {d[0]}, {acc[0]}, {acc[1]}'); k(f'v_cvt_pk_bf16_f32 {d[1]}, {acc[2]}, {acc[3]}')
    k(f'v_min_u32 {d[0]}, 0xfffffffe, {d[0]}'); k(f'v_min_u32 {d[1]}, 0xfffffffe, {d[1]}')
    k(f's_add_u32 s5, {S_MNEXT}, {S_RPUB}')
    k(f's_cmp_eq_u32 {S_RED}, 2'); k(f's_cselect_b64 exec, {M_N4}, {M_N8}')
    k(f'buffer_store_dwordx2 {d[0:2]}, {t[0]}, {SRD_WS}, s5 offen' + stf())
    k('s_mov_b64 exec, -1')
    for r in (sel, d, acc, t): r.free()
```

```python
from common import *
from role_kv import emit_x_dma_setup, emit_x_frag_addr, x_dma, emit_group
import math, struct
TIMING = False
SPIN = 0x40000
def f32bits(x): return struct.unpack('<I', struct.pack('<f', x))[0]

XB = 0
QF = 81920
KVXB = 98304
KVMB = 131072
WRING = 0

def poll_flag(k, s_off, s_need, vt, label_base, sleep=1):
    L, LX = k.newlabel(label_base), k.newlabel(label_base + 'X')
    k(f'v_mov_b32 {vt[1]}, 0')
    k('s_mov_b32 s7, 0')
    k.label(L)
    k(f'buffer_load_dword {vt[0]}, {vt[1]}, {SRD_WS}, {s_off} offen sc1')
    k('s_add_u32 s7, s7, 1'); k(f's_cmp_gt_u32 s7, {hex(SPIN)}'); k(f's_cbranch_scc1 {LX}')
    k('s_waitcnt vmcnt(0)')
    k(f'v_readfirstlane_b32 s6, {vt[0]}')
    k(f's_cmp_ge_u32 s6, {s_need}')
    k(f's_cbranch_scc1 {LX}')
    if sleep: k(f's_sleep {sleep}')
    k(f's_branch {L}')
    k.label(LX)
    k('s_waitcnt vmcnt(0)')

def role_qatt(k, use_flags=True, integrated=False):
    vL, vXD, vST, vW, v16 = 'v2', 'v3', 'v8', 'v9', 'v1'
    vXA = ['v4', 'v5', 'v6', 'v7']
    vT = 'v10'
    t0, t1, t2 = 'v12', 'v13', 'v14'
    vKM = 'v11'
    SRD_X, SRD_W = 's[12:15]', 's[16:19]'
    wf = lambda t: Reg('a', 4 * t, 4)
    inst_kernarg(k)
    if integrated:
        k(f's_lshl_b32 s4, {S_INST}, 5'); k(f's_add_u32 s4, s4, {S_IDX}'); k('s_lshl_b32 s4, s4, 7'); k(f's_add_u32 s4, s4, {F_OD}')
        zero_flag(k, 's4', ['v12', 'v13']); init_arrive(k, ['v12', 'v13'])
    load_srd(k, 12, S_KA, 0, X_BYTES)
    load_srd(k, 16, S_KA, 16, W_BYTES)
    k(f'v_lshlrev_b32 {v16}, 4, {vL}')
    k(f'v_lshrrev_b32 {t0}, 4, {vL}'); k(f'v_lshlrev_b32 {t1}, 2, {t0}'); k(f'v_and_b32 {t2}, 15, {vL}')
    k(f'v_xor_b32 {t1}, {t1}, {t2}'); k(f'v_lshlrev_b32 {t1}, 4, {t1}'); k(f'v_lshl_add_u32 {vW}, {t0}, 13, {t1}')
    k(f's_lshl_b32 s40, {S_IDX}, 8'); k(f's_lshl_b32 s43, {S_WAVE}, 17'); k('s_add_u32 s40, s40, s43')
    k(f's_lshl_b32 s41, {S_WAVE}, 12')
    NS = 8
    def wdma(c):
        for m in range(4):
            k(f's_add_u32 m0, s41, {(c % NS) * 16384 + m * 1024}')
            k(f's_add_u32 s5, s40, {(64 * c + 4 * m) * 8192}')
            k(f'buffer_load_dwordx4 {vW}, {SRD_W}, s5 offen lds')
    for c in range(NS - 1): wdma(c)
    k(f'v_bfe_u32 {t0}, {vL}, 4, 1'); k(f'v_and_b32 {t1}, 1, {vL}'); k(f'v_bfe_u32 {t2}, {vL}, 1, 1')
    k(f'v_lshl_or_b32 {t0}, {t1}, 1, {t0}'); k(f'v_lshlrev_b32 {t1}, 3, {t2}')
    k(f's_lshl_b32 s42, {S_WAVE}, 2'); k(f'v_or_b32 {t0}, s42, {t0}')
    k(f'v_bfe_u32 {t2}, {vL}, 2, 2'); k(f'v_lshlrev_b32 {vT}, 2, {t2}'); k(f'v_xor_b32 {t0}, {t0}, {vT}')
    k(f'v_lshl_add_u32 {t1}, {t0}, 4, {t1}'); k(f'v_lshl_add_u32 {t1}, {t2}, 8, {t1}')
    k(f'v_lshrrev_b32 {t2}, 5, {vL}'); k(f'v_lshl_add_u32 {vT}, {t2}, 11, {t1}')
    k.manual(True)
    va = 'v15'
    for c in range(10):
        done_issue = min(9, NS - 2 if c == 0 else NS - 2 + c - 1)
        k(f's_waitcnt vmcnt({(done_issue - c) * 4}) lgkmcnt(0)')
        k('s_barrier')
        if c >= 1 and c + NS - 2 <= 9: wdma(c + NS - 2)
        k(f'v_add_u32 {va}, {(c % NS) * 16384}, {vT}')
        for tt in range(4):
            fr = wf(4 * c + tt)
            k(f'ds_read_b64_tr_b16 {fr[0:2]}, {va} offset:{tt*4096}')
            k(f'ds_read_b64_tr_b16 {fr[2:4]}, {va} offset:{tt*4096+1024}')
    k('s_waitcnt vmcnt(0) lgkmcnt(0)'); k('s_barrier')
    emit_x_dma_setup(k, vL, vXD, t0, t1)
    emit_x_frag_addr(k, vL, vXA, t0, t1, t2, False)
    k(f'v_bfe_u32 {t0}, {vL}, 4, 1'); k(f'v_lshlrev_b32 {t0}, 10, {t0}'); k(f'v_lshrrev_b32 {t1}, 5, {vL}')
    k(f'v_lshl_add_u32 {t0}, {t1}, 9, {t0}'); k(f'v_and_b32 {t1}, 15, {vL}'); k(f'v_lshl_add_u32 {t0}, {t1}, 4, {t0}')
    k(f's_lshl_b32 s4, {S_WAVE}, 11'); k(f's_add_u32 s4, s4, {QF}'); k(f'v_add_u32 {vST}, s4, {t0}')
    k(f'v_and_b32 {t0}, 3, {vL}'); k(f'v_lshlrev_b32 {t0}, 4, {t0}'); k(f'v_bfe_u32 {t1}, {vL}, 4, 1'); k(f'v_lshl_add_u32 {t0}, {t1}, 3, {t0}')
    k(f'v_bfe_u32 {t1}, {vL}, 2, 2'); k(f'v_add_u32 {t0}, {t0}, {t1}'); k(f'v_lshlrev_b32 {t0}, 4, {t0}')
    k(f'v_lshrrev_b32 {t1}, 5, {vL}'); k(f'v_lshl_add_u32 {vKM}, {t1}, 3, {t0}')
    k(f'v_and_b32 {t0}, 15, {vL}'); k(f'v_lshrrev_b32 {t1}, 4, {vL}'); k(f'v_lshlrev_b32 {t1}, 2, {t1}')
    for r in range(4):
        k(f'v_add_u32 {t2}, {r}, {t1}'); k(f'v_cmp_le_u32 s[{64+2*r}:{65+2*r}], {t2}, {t0}')
    k(f's_and_b32 s4, {S_WAVE}, 1'); k('s_cmp_eq_u32 s4, 1')
    for r in range(4):
        k(f's_cselect_b64 s[{72+2*r}:{73+2*r}], s[{64+2*r}:{65+2*r}], 0')
    for r in range(4):
        k(f's_cselect_b64 s[{64+2*r}:{65+2*r}], -1, s[{64+2*r}:{65+2*r}]')
    k(f's_mov_b32 s50, {hex(f32bits(128 ** -0.5 * math.log2(math.e)))}')
    k(f's_lshl_b32 s4, {S_INST}, 11'); k(f's_add_u32 s4, s4, {S_IDX}')
    k(f's_lshl_b32 s33, s4, 14'); k(f's_lshl_b32 s5, {S_WAVE}, 12'); k('s_add_u32 s33, s33, s5')
    if KVX: k(f's_add_u32 s33, s33, {KVX}')
    k(f's_lshl_b32 s34, s4, 12'); k(f's_lshl_b32 s5, {S_WAVE}, 10'); k('s_add_u32 s34, s34, s5'); k(f's_add_u32 s34, s34, {KVM}')
    k(f's_lshl_b32 s35, s4, 13'); k(f's_and_b32 s5, {S_WAVE}, 1'); k('s_lshl_b32 s5, s5, 12'); k('s_add_u32 s35, s35, s5')
    k(f's_lshr_b32 s5, {S_WAVE}, 1'); k('s_lshl_b32 s5, s5, 11'); k('s_add_u32 s35, s35, s5'); k(f's_add_u32 s35, s35, {OF}')
    k(f's_lshl_b32 s4, {S_INST}, 5'); k(f's_add_u32 s4, s4, {S_IDX}'); k('s_lshl_b32 s4, s4, 7')
    k(f's_add_u32 s58, s4, {F_KVM}'); k(f's_add_u32 s59, s4, {F_KVD}'); k(f's_add_u32 s57, s4, {F_OD}')
    k(f's_mul_i32 s45, {S_WAVE}, 10240')
    k('s_mov_b32 s44, 0')
    k('s_mov_b32 s32, 0'); k('s_mov_b32 s60, 0')
    vt = ['v16', 'v17']
    for g in x_dma(k, vXD, SRD_X, 's44', 's45'): emit_group(k, g)
    k('s_add_u32 s44, s44, 40960'); k('s_add_u32 s45, s45, 40960')
    for g in x_dma(k, vXD, SRD_X, 's44', 's45'): emit_group(k, g)
    k('s_add_u32 s44, s44, 40960'); k('s_sub_u32 s45, s45, 40960')
    if integrated: init_wait(k, vt)
    if use_flags:
        k('s_mov_b32 s55, 1'); poll_flag(k, 's59', 's55', vt, 'QA_P0')
    def kvx_dma(s_src, s_dst):
        for m in range(4):
            k(f's_add_u32 m0, {s_dst}, {m * 1024}'); k(f's_add_u32 s5, {s_src}, {m * 1024}')
            k(f'buffer_load_dwordx4 {v16}, {SRD_WS}, s5 offen sc1 lds')
    k(f's_lshl_b32 s36, {S_WAVE}, 12'); k(f's_add_u32 s36, s36, {KVXB}')
    kvx_dma('s33', 's36')
    k('s_waitcnt vmcnt(0)'); k('s_barrier')
    acc = Reg('v', 128, 16); xf = [Reg('v', 144 + 4 * i, 4) for i in range(4)]; cv = Reg('v', 160, 8)
    def qproj(interleave=()):
        il = list(interleave)
        def rd(t): k(f'ds_read_b128 {xf[t % 4]}, {vXA[t % 4]} offset:{(t >> 2) * 1024}')
        for t in range(3): rd(t)
        for t in range(40):
            if t + 3 < 40: rd(t + 3)
            k(f's_waitcnt lgkmcnt({min(3, 39 - t)})')
            k(f'v_mfma_f32_32x32x16_bf16 {acc}, {wf(t)}, {xf[t % 4]}, ' + ('0' if t == 0 else str(acc)))
            if il and t >= 1 and t % 2 == 1: emit_group(k, il.pop(0))
        for g in il: emit_group(k, g)
        k('s_nop 7'); k('s_nop 3')
        for d in range(8): k(f'v_cvt_pk_bf16_f32 {cv[d]}, {acc[2*d]}, {acc[2*d+1]}')
        k(f'ds_write_b128 {vST}, {cv[0:4]}'); k(f'ds_write_b128 {vST}, {cv[4:8]} offset:256')
    qproj()
    for u in range(4): k(f'v_add_u32 {vXA[u]}, 40960, {vXA[u]}')
    k(f'v_add_u32 {vST}, 8192, {vST}')
    k('s_mov_b32 s37, 0')
    k('s_waitcnt lgkmcnt(0)'); k('s_barrier')
    if TIMING:
        k('s_memtime s[84:85]'); k('s_memrealtime s[86:87]'); k('s_waitcnt lgkmcnt(0)')
    LOOP, LEND = k.newlabel('QA_LOOP'), k.newlabel('QA_END')
    k.label(LOOP)
    if use_flags:
        k('s_add_u32 s55, s32, 1'); poll_flag(k, 's58', 's55', vt, 'QA_P1')
    k('s_lshl_b32 s4, s37, 12'); k(f's_lshl_b32 s5, {S_WAVE}, 10'); k('s_add_u32 s4, s4, s5'); k(f's_add_u32 m0, s4, {KVMB}')
    k('s_nop 0')
    k(f'buffer_load_dwordx4 {v16}, {SRD_WS}, s34 offen sc1 lds')
    LNK = k.newlabel('QA_NK')
    k('s_cmp_ge_u32 s32, 63'); k(f's_cbranch_scc1 {LNK}')
    if use_flags:
        LSEEN = k.newlabel('QA_SEEN')
        k('s_add_u32 s55, s32, 2'); k('s_cmp_ge_u32 s60, s55'); k(f's_cbranch_scc1 {LSEEN}')
        poll_flag(k, 's59', 's55', vt, 'QA_P2'); k('s_mov_b32 s60, s6')
        k.label(LSEEN)
    k(f's_add_u32 s38, s33, {32 * 16384}')
    k('s_xor_b32 s4, s37, 1'); k('s_lshl_b32 s4, s4, 14'); k(f's_lshl_b32 s5, {S_WAVE}, 12'); k('s_add_u32 s4, s4, s5'); k(f's_add_u32 s39, s4, {KVXB}')
    kvx_dma('s38', 's39')
    k.label(LNK)
    k('s_mul_i32 s4, s37, 40960'); k(f's_mul_i32 s5, {S_WAVE}, 10240'); k('s_add_u32 s45, s4, s5')
    dma = x_dma(k, vXD, SRD_X, 's44', 's45')
    qproj(dma)
    k('s_cmp_eq_u32 s37, 0'); k('s_cselect_b32 s5, -1, 1')
    k('s_mul_i32 s4, s5, 40960')
    for u in range(4): k(f'v_add_u32 {vXA[u]}, s4, {vXA[u]}')
    k('s_lshl_b32 s4, s5, 13'); k(f'v_add_u32 {vST}, s4, {vST}')
    LW1, LW2 = k.newlabel('QA_W1'), k.newlabel('QA_W2')
    k('s_cmp_ge_u32 s32, 63'); k(f's_cbranch_scc1 {LW1}')
    k('s_waitcnt vmcnt(14) lgkmcnt(0)'); k(f's_branch {LW2}')
    k.label(LW1); k('s_waitcnt vmcnt(10) lgkmcnt(0)')
    k.label(LW2)
    k('s_barrier')
    LNF0 = k.newlabel('QA_NF0')
    k(f's_cmp_lg_u32 {S_WAVE}, 0'); k(f's_cbranch_scc1 {LNF0}')
    k('v_mov_b32 v16, s32'); k('v_mov_b32 v17, 0'); k('s_mov_b64 exec, 1')
    k(f'buffer_store_dword v16, v17, {SRD_WS}, s57 offen sc1'); k('s_mov_b64 exec, -1')
    k.label(LNF0)
    k.manual(False); k.drained()
    pool = Pool('qatt', 'v', range(20, 128))
    ad = pool.alloc(4, name='ad')
    k(f's_and_b32 s4, {S_WAVE}, 1'); k('s_lshl_b32 s4, s4, 10'); k('s_lshl_b32 s5, s37, 13'); k('s_add_u32 s4, s4, s5'); k(f's_add_u32 s4, s4, {QF}')
    k(f'v_add_u32 {ad[0]}, s4, {v16}')
    k('s_lshl_b32 s5, s37, 14'); k(f's_add_u32 s5, s5, {KVXB}'); k(f'v_add_u32 {ad[1]}, s5, {v16}')
    k('s_lshl_b32 s5, s37, 12'); k(f's_add_u32 s5, s5, {KVMB}'); k(f'v_add_u32 {ad[2]}, s5, {vKM}')
    k(f'v_add_u32 {ad[3]}, s5, {v16}')
    QB = [pool.alloc(4, name=f'Q{u}') for u in range(4)]
    KA = [[pool.alloc(4, name=f'K{t}{u}') for u in range(4)] for t in range(2)]
    KM = [pool.alloc(4, name=f'M{u}') for u in range(4)]
    T = [pool.alloc(4, name='T0'), pool.alloc(4, name='T1')]; TM = pool.alloc(4, name='TM')
    for u in range(4):
        k(f'ds_read_b128 {QB[u]}, {ad[0]} offset:{u * 2048}')
        k(f'ds_read_b128 {KA[0][u]}, {ad[1]} offset:{u * 2048}')
        k(f'ds_read_b128 {KA[1][u]}, {ad[1]} offset:{u * 2048 + 1024}')
        k(f'ds_read_b64_tr_b16 {KM[u][0:2]}, {ad[2]} offset:{u * 1024}')
        k(f'ds_read_b64_tr_b16 {KM[u][2:4]}, {ad[2]} offset:{u * 1024 + 64}')
    for u in range(4):
        c = lambda r: '0' if u == 0 else str(r)
        k(f'v_mfma_f32_16x16x32_bf16 {T[0]}, {KA[0][u]}, {QB[u]}, {c(T[0])}')
        k(f'v_mfma_f32_16x16x32_bf16 {T[1]}, {KA[1][u]}, {QB[u]}, {c(T[1])}')
        k(f'v_mfma_f32_16x16x32_bf16 {TM}, {KM[u]}, {QB[u]}, {c(TM)}')
    for r_ in QB + KA[0] + KA[1] + KM: r_.free()
    wc0 = pool.alloc(1, name='wc')
    k(f's_lshr_b32 s4, {S_WAVE}, 1'); k('s_lshl_b32 s5, s4, 12'); k(f'v_add_u32 {wc0}, s5, {ad[1]}')
    VA = [[pool.alloc(4, name=f'V{a}{t}') for t in range(2)] for a in range(2)]
    for a in range(2):
        for t in range(2): k(f'ds_read_b128 {VA[a][t]}, {wc0} offset:{8192 + a * 2048 + t * 1024}')
    k('s_lshl_b32 s5, s4, 11'); k(f'v_add_u32 {wc0}, s5, {ad[3]}')
    MA = [pool.alloc(4, name=f'MA{a}') for a in range(2)]
    for a in range(2): k(f'ds_read_b128 {MA[a]}, {wc0} offset:{a * 1024}')
    wc0.free()
    ninf, mx, t1_ = pool.alloc(1), pool.alloc(1), pool.alloc(1)
    k(f'v_mov_b32 {ninf}, 0xff800000')
    for t in range(2):
        for r in range(4):
            m = 64 + 8 * t + 2 * r
            k(f'v_cndmask_b32 {T[t][r]}, {ninf}, {T[t][r]}, s[{m}:{m+1}]')
    k(f'v_max3_f32 {mx}, {T[0][0]}, {T[0][1]}, {T[0][2]}'); k(f'v_max3_f32 {mx}, {mx}, {T[0][3]}, {T[1][0]}')
    k(f'v_max3_f32 {mx}, {mx}, {T[1][1]}, {T[1][2]}'); k(f'v_max3_f32 {mx}, {mx}, {T[1][3]}, {TM[0]}'); k(f'v_max_f32 {mx}, {mx}, {TM[1]}')
    k(f'v_mov_b32 {t1_}, {mx}'); k(f'v_permlane16_swap_b32 {mx}, {t1_}'); k(f'v_max_f32 {mx}, {mx}, {t1_}')
    k(f'v_mov_b32 {t1_}, {mx}'); k(f'v_permlane32_swap_b32 {mx}, {t1_}'); k(f'v_max_f32 {mx}, {mx}, {t1_}')
    k(f'v_mul_f32 {mx}, s50, {mx}')
    vals = [T[0][r] for r in range(4)] + [T[1][r] for r in range(4)] + [TM[0], TM[1]]
    for v in vals: k(f'v_fma_f32 {v}, {v}, s50, -{mx}')
    for v in vals: k(f'v_exp_f32 {v}, {v}')
    P = pool.alloc(4, name='P'); BM = pool.alloc(2, name='BM')
    for t in range(2):
        k(f'v_cvt_pk_bf16_f32 {P[2*t]}, {T[t][0]}, {T[t][1]}'); k(f'v_cvt_pk_bf16_f32 {P[2*t+1]}, {T[t][2]}, {T[t][3]}')
    k(f'v_mov_b32 {BM[0]}, 0'); k(f'v_cvt_pk_bf16_f32 {BM[1]}, {TM[0]}, {TM[1]}')
    O = [[pool.alloc(4, name=f'O{a}{t}') for t in range(2)] for a in range(2)]
    for a in range(2):
        for t in range(2): k(f'v_mfma_f32_16x16x32_bf16 {O[a][t]}, {VA[a][t]}, {P}, 0')
    for a in range(2):
        for t in range(2): k(f'v_mfma_f32_16x16x16_bf16 {O[a][t]}, {MA[a][2*t:2*t+2]}, {BM}, {O[a][t]}')
    ls = T[0][0]
    k(f'v_add_f32 {T[0][0]}, {T[0][0]}, {T[0][1]}'); k(f'v_add_f32 {T[0][2]}, {T[0][2]}, {T[0][3]}')
    k(f'v_add_f32 {T[1][0]}, {T[1][0]}, {T[1][1]}'); k(f'v_add_f32 {T[1][2]}, {T[1][2]}, {T[1][3]}'); k(f'v_add_f32 {TM[0]}, {TM[0]}, {TM[1]}')
    k(f'v_add_f32 {ls}, {T[0][0]}, {T[0][2]}'); k(f'v_add_f32 {T[1][0]}, {T[1][0]}, {T[1][2]}')
    k(f'v_add_f32 {ls}, {ls}, {T[1][0]}'); k(f'v_add_f32 {ls}, {ls}, {TM[0]}')
    k(f'v_mov_b32 {t1_}, {ls}'); k(f'v_permlane16_swap_b32 {ls}, {t1_}'); k(f'v_add_f32 {ls}, {ls}, {t1_}')
    k(f'v_mov_b32 {t1_}, {ls}'); k(f'v_permlane32_swap_b32 {ls}, {t1_}'); k(f'v_add_f32 {ls}, {ls}, {t1_}')
    k(f'v_rcp_f32 {ls}, {ls}')
    OS = [pool.alloc(4, name='OS0'), pool.alloc(4, name='OS1')]
    for a in range(2):
        for t in range(2):
            for r in range(4): k(f'v_mul_f32 {O[a][t][r]}, {O[a][t][r]}, {ls}')
            k(f'v_cvt_pk_bf16_f32 {OS[a][2*t]}, {O[a][t][0]}, {O[a][t][1]}'); k(f'v_cvt_pk_bf16_f32 {OS[a][2*t+1]}, {O[a][t][2]}, {O[a][t][3]}')
        k(f'buffer_store_dwordx4 {OS[a]}, {v16}, {SRD_WS}, s35 offen offset:{a * 1024} sc1')
    k.manual(True)
    k('s_waitcnt vmcnt(2) lgkmcnt(0)'); k('s_barrier')
    k('s_add_u32 s32, s32, 1'); k('s_xor_b32 s37, s37, 1')
    k(f's_add_u32 s33, s33, {32 * 16384}'); k(f's_add_u32 s34, s34, {32 * 4096}'); k(f's_add_u32 s35, s35, {32 * 8192}')
    k('s_add_u32 s44, s44, 40960')
    k('s_cmp_lt_u32 s32, 64'); k(f's_cbranch_scc1 {LOOP}')
    k('s_waitcnt vmcnt(0)'); k('s_barrier')
    LNFE = k.newlabel('QA_NFE')
    k(f's_cmp_lg_u32 {S_WAVE}, 0'); k(f's_cbranch_scc1 {LNFE}')
    k('v_mov_b32 v16, 64'); k('v_mov_b32 v17, 0'); k('s_mov_b64 exec, 1')
    k(f'buffer_store_dword v16, v17, {SRD_WS}, s57 offen sc1'); k('s_mov_b64 exec, -1')
    k.label(LNFE)
    if TIMING:
        k('s_memtime s[88:89]'); k('s_memrealtime s[90:91]'); k('s_waitcnt lgkmcnt(0)')
        k('s_sub_u32 s88, s88, s84'); k('s_sub_u32 s90, s90, s86')
        k('s_load_dwordx2 s[92:93], s[0:1], 120'); k('s_waitcnt lgkmcnt(0)')
        k(f's_lshl_b32 s94, {S_INST}, 5'); k(f's_add_u32 s94, s94, {S_IDX}'); k('s_lshl_b32 s94, s94, 4')
        k('v_mov_b32 v15, s94'); k('v_add_u32 v15, 32768, v15'); k('v_mov_b32 v20, s88'); k('v_mov_b32 v21, s90'); k('v_mov_b32 v22, 0'); k('v_mov_b32 v23, 0')
        k('global_store_dwordx4 v15, v[20:23], s[92:93]')
    k('s_waitcnt vmcnt(0)')
    k.manual(False); k.drained()
```

```python
from common import *
TIMING = False
SPIN = 0x40000

def poll_multi(k, s_off, n, s_need, vt, vstride, base):
    L, LX = k.newlabel(base), k.newlabel(base + 'X')
    k('s_mov_b32 s7, 0')
    k(f's_mov_b64 exec, {hex((1 << n) - 1)}')
    k.label(L)
    k(f'buffer_load_dword {vt}, {vstride}, {SRD_WS}, {s_off} offen sc1')
    k('s_add_u32 s7, s7, 1'); k(f's_cmp_gt_u32 s7, {hex(SPIN)}'); k(f's_cbranch_scc1 {LX}')
    k('s_waitcnt vmcnt(0)')
    k(f'v_cmp_gt_u32 vcc, {s_need}, {vt}')
    k(f's_cbranch_vccz {LX}')
    k('s_sleep 1')
    k(f's_branch {L}')
    k.label(LX)
    k('s_waitcnt vmcnt(0)')
    k('s_mov_b64 exec, -1')

def role_wo(k, LEXIT, use_flags=True, integrated=False):
    vL, v16, vW, vT0, vT1, vF, vOut = 'v2', 'v1', 'v3', 'v4', 'v5', 'v6', 'v7'
    t0, t1, t2 = 'v12', 'v13', 'v14'
    SRD_W, SRD_O = 's[16:19]', 's[12:15]'
    if integrated:
        k(f's_mul_i32 s4, {S_INST}, 20'); k(f's_add_u32 s4, s4, {S_IDX}'); k('s_lshl_b32 s4, s4, 7'); k(f's_add_u32 s4, s4, {F_WOP}')
        LZ = k.newlabel('WO_Z')
        k(f's_cmp_ge_u32 {S_IDX}, 20'); k(f's_cbranch_scc1 {LZ}')
        zero_flag(k, 's4', ['v12', 'v13'])
        k.label(LZ)
        init_arrive(k, ['v12', 'v13'])
    k(f's_cmp_ge_u32 {S_IDX}, 20'); k(f's_cbranch_scc1 {LEXIT}')
    inst_kernarg(k)
    load_srd(k, 16, S_KA, 40, W_BYTES)
    load_srd(k, 12, 's[0:1]', KA_OUT, OUT_BYTES)
    k(f'v_lshlrev_b32 {v16}, 4, {vL}')
    k(f's_mul_i32 s4, {S_IDX}, 52429'); k('s_lshr_b32 s38, s4, 18'); k('s_mul_i32 s4, s38, 5'); k(f's_sub_u32 s39, {S_IDX}, s4')
    k(f'v_lshrrev_b32 {t0}, 4, {vL}'); k(f's_and_b32 s4, {S_WAVE}, 1'); k('s_lshl_b32 s4, s4, 2'); k(f'v_add_u32 {t1}, s4, {t0}')
    k(f'v_lshlrev_b32 {t1}, 1, {t1}'); k(f'v_and_b32 {t2}, 15, {vL}'); k(f'v_xor_b32 {t1}, {t1}, {t2}'); k(f'v_lshlrev_b32 {t1}, 4, {t1}')
    k(f's_lshl_b32 s4, {S_WAVE}, 2'); k(f'v_add_u32 {t0}, s4, {t0}'); k(f'v_mul_u32_u24 {t0}, 1280, {t0}'); k(f'v_add_u32 {vW}, {t0}, {t1}')
    k(f's_mul_i32 s40, s38, {1024 * 1280}'); k('s_lshl_b32 s4, s39, 8'); k('s_add_u32 s40, s40, s4')
    k(f's_lshl_b32 s41, {S_WAVE}, 10')
    def wdma(hh):
        for mm in range(8):
            k(f's_add_u32 m0, s41, {(hh % 4) * 32768 + mm * 4096}')
            k(f's_add_u32 s5, s40, {(128 * hh + 16 * mm) * 1280}')
            k(f'buffer_load_dwordx4 {vW}, {SRD_W}, s5 offen lds')
    for hh in range(4): wdma(hh)
    k(f'v_lshrrev_b32 {t0}, 4, {vL}'); k(f'v_bfe_u32 {t1}, {vL}, 2, 2'); k(f'v_lshl_add_u32 {t0}, {t0}, 2, {t1}')
    k(f'v_and_b32 {t1}, 7, {t0}'); k(f's_lshl_b32 s4, {S_WAVE}, 1'); k(f'v_xor_b32 {t1}, s4, {t1}'); k(f'v_lshlrev_b32 {t1}, 5, {t1}')
    k(f'v_lshl_add_u32 {t0}, {t0}, 8, {t1}'); k(f'v_and_b32 {t1}, 3, {vL}'); k(f'v_lshl_add_u32 {vT0}, {t1}, 3, {t0}')
    k(f'v_xor_b32 {vT1}, 32, {vT0}')
    wf = lambda hh, v, nt: Reg('a', 4 * ((hh * 4 + v) * 2 + nt), 4)
    k.manual(True)
    for hh in range(8):
        n_after = (3 if hh == 0 else min(hh + 2, 7) - hh) * 8
        k(f's_waitcnt vmcnt({n_after}) lgkmcnt(0)'); k('s_barrier')
        if hh >= 1 and hh + 3 <= 7: wdma(hh + 3)
        k(f'v_add_u32 v8, {(hh % 4) * 32768}, {vT0}'); k(f'v_add_u32 v9, {(hh % 4) * 32768}, {vT1}')
        for v in range(4):
            for nt in range(2):
                fr = wf(hh, v, nt); ad = 'v8' if nt == 0 else 'v9'
                k(f'ds_read_b64_tr_b16 {fr[0:2]}, {ad} offset:{v * 8192}')
                k(f'ds_read_b64_tr_b16 {fr[2:4]}, {ad} offset:{v * 8192 + 4096}')
    k('s_waitcnt vmcnt(0) lgkmcnt(0)'); k('s_barrier')
    k(f'v_lshlrev_b32 {vF}, 7, {vL}')
    k(f's_lshl_b32 s4, {S_INST}, 11'); k('s_lshl_b32 s5, s38, 3'); k('s_add_u32 s4, s4, s5'); k('s_lshl_b32 s33, s4, 13')
    k(f's_lshl_b32 s5, {S_WAVE}, 10'); k('s_add_u32 s33, s33, s5'); k(f's_add_u32 s33, s33, {OF}')
    k(f's_lshl_b32 s4, {S_INST}, 5'); k('s_lshl_b32 s5, s38, 3'); k('s_add_u32 s4, s4, s5'); k('s_lshl_b32 s4, s4, 7'); k(f's_add_u32 s57, s4, {F_OD}')
    k(f's_mul_i32 s4, {S_INST}, 320'); k('s_add_u32 s4, s4, s39'); k('s_lshl_b32 s4, s4, 2'); k(f's_add_u32 s4, s4, {S_WAVE}'); k('s_lshl_b32 s4, s4, 14')
    k(f's_add_u32 s34, s4, {WOP}')
    k('s_lshl_b32 s5, s38, 10'); k('s_add_u32 s35, s34, s5')
    k('s_lshl_b32 s5, s38, 12'); k('s_add_u32 s36, s34, s5')
    k(f's_mul_i32 s4, {S_INST}, 20'); k('s_lshl_b32 s5, s39, 2'); k('s_add_u32 s4, s4, s5'); k('s_lshl_b32 s4, s4, 7'); k(f's_add_u32 s58, s4, {F_WOP}')
    k('s_lshl_b32 s5, s38, 7'); k('s_add_u32 s59, s58, s5')
    k(f'v_and_b32 {t0}, 15, {vL}'); k(f'v_mul_u32_u24 {t0}, 2560, {t0}'); k(f'v_lshrrev_b32 {t1}, 4, {vL}'); k(f'v_lshl_add_u32 {vOut}, {t1}, 3, {t0}')
    k(f's_mul_i32 s37, {S_INST}, 1280'); k('s_lshl_b32 s4, s39, 8'); k('s_add_u32 s37, s37, s4'); k(f's_lshl_b32 s4, {S_WAVE}, 6'); k('s_add_u32 s37, s37, s4')
    k('s_lshr_b32 s4, s38, 1'); k('s_lshl_b32 s4, s4, 5'); k('s_add_u32 s37, s37, s4')
    k('s_and_b32 s4, s38, 1'); k(f's_mul_i32 s4, s4, {16 * 2560}'); k('s_add_u32 s37, s37, s4')
    k('s_mov_b32 s32, 0')
    if integrated: init_wait(k, ['v15', 'v16'])
    if TIMING:
        k('s_memtime s[84:85]'); k('s_memrealtime s[86:87]'); k('s_waitcnt lgkmcnt(0)')
    vP = 'v10'
    k(f'v_lshlrev_b32 {vP}, 7, {vL}'); k(f'v_add_u32 {vP}, s57, {vP}')
    k(f'v_subrev_u32 {t0}, 8, {vL}'); k(f'v_lshlrev_b32 {t0}, 7, {t0}'); k(f'v_add_u32 {t0}, s58, {t0}')
    k(f'v_cmp_gt_u32 vcc, 8, {vL}'); k('s_nop 1'); k(f'v_cndmask_b32 {vP}, {t0}, {vP}, vcc')
    k('s_mov_b64 s[60:61], vcc')
    acc = [[Reg('v', 128 + 4 * (2 * nt + qt), 4) for qt in range(2)] for nt in range(2)]
    bf = [Reg('v', 144 + 4 * i, 4) for i in range(8)]
    pr = [Reg('v', 176 + 4 * i, 4) for i in range(4)]
    vN = 'v11'
    def poll(need_o, need_p, base):
        L, LX = k.newlabel(base), k.newlabel(base + 'X')
        k(f'v_mov_b32 {vN}, {need_p}'); k(f'v_mov_b32 v16, {need_o}'); k(f'v_cndmask_b32 {vN}, {vN}, v16, s[60:61]')
        k('s_mov_b32 s7, 0'); k('s_mov_b64 exec, 0xfff')
        k.label(L)
        k(f'buffer_load_dword v15, {vP}, {SRD_WS}, 0 offen sc1')
        k('s_add_u32 s7, s7, 1'); k(f's_cmp_gt_u32 s7, {hex(SPIN)}'); k(f's_cbranch_scc1 {LX}')
        k('s_waitcnt vmcnt(0)')
        k(f'v_cmp_gt_u32 vcc, {vN}, v15')
        k(f's_cbranch_vccz {LX}')
        k('s_sleep 1'); k(f's_branch {L}')
        k.label(LX)
        k('s_waitcnt vmcnt(0)'); k('s_mov_b64 exec, -1')
    def part_loads():
        for i in range(4): k(f'buffer_load_dwordx4 {pr[i]}, {v16}, {SRD_WS}, s36 offen offset:{i * 1024} sc1')
    def finalize():
        for r in range(4):
            k(f'v_add_f32 {pr[0][r]}, {pr[0][r]}, {pr[1][r]}'); k(f'v_add_f32 {pr[2][r]}, {pr[2][r]}, {pr[3][r]}')
        for r in range(4): k(f'v_add_f32 {pr[0][r]}, {pr[0][r]}, {pr[2][r]}')
        k(f'v_cvt_pk_bf16_f32 {pr[1][0]}, {pr[0][0]}, {pr[0][1]}'); k(f'v_cvt_pk_bf16_f32 {pr[1][1]}, {pr[0][2]}, {pr[0][3]}')
        k(f'buffer_store_dwordx2 {pr[1][0:2]}, {vOut}, {SRD_O}, s37 offen')
        k(f's_add_u32 s36, s36, {5 * 4 * 16384}'); k(f's_add_u32 s37, s37, {32 * 2560}')
    def own_flag(val):
        LNF = k.newlabel('WO_NF')
        k(f's_cmp_lg_u32 {S_WAVE}, 0'); k(f's_cbranch_scc1 {LNF}')
        k(f'v_mov_b32 v16, {val}'); k('v_mov_b32 v17, 0'); k('s_mov_b64 exec, 1')
        k(f'buffer_store_dword v16, v17, {SRD_WS}, s59 offen sc1'); k('s_mov_b64 exec, -1')
        k.label(LNF)
    LOOP = k.newlabel('WO_LOOP')
    k.label(LOOP)
    k('s_add_u32 s55, s32, 1')
    k('s_sub_u32 s56, s32, 1'); k('s_cmp_lt_u32 s32, 2'); k('s_cselect_b32 s56, 0, s56')
    if use_flags is not True: k('s_mov_b32 s55, 0')
    poll('s55', 's56', 'WO_P0')
    for m in range(16):
        k(f's_add_u32 m0, s41, {m * 4096}'); k(f's_add_u32 s5, s33, {m * 4096}')
        k(f'buffer_load_dwordx4 {v16}, {SRD_WS}, s5 offen sc1 lds')
    part_loads()
    for st in range(4):
        k(f's_waitcnt vmcnt({16 - 4 * st})'); k('s_barrier')
        if st == 0: own_flag('s32')
        seq = [(hh, v) for hh in (2 * st, 2 * st + 1) for v in range(4)]
        def rd(i):
            hh, v = seq[i]
            for qt in range(2): k(f'ds_read_b128 {bf[(2 * i + qt) % 8]}, {v16} offset:{hh * 8192 + qt * 4096 + v * 1024}')
        for i in range(3): rd(i)
        for i, (hh, v) in enumerate(seq):
            if i + 3 < 8: rd(i + 3)
            k(f's_waitcnt lgkmcnt({2 * min(3, 7 - i)})')
            for qt in range(2):
                for nt in range(2):
                    c = '0' if (st == 0 and i == 0) else str(acc[nt][qt])
                    k(f'v_mfma_f32_16x16x32_bf16 {acc[nt][qt]}, {wf(hh, v, nt)}, {bf[(2 * i + qt) % 8]}, {c}')
    LNFIN = k.newlabel('WO_NFIN')
    k('s_waitcnt vmcnt(0)')
    k('s_cmp_lt_u32 s32, 2'); k(f's_cbranch_scc1 {LNFIN}')
    finalize()
    k.label(LNFIN)
    k('s_nop 7')
    for nt in range(2):
        for qt in range(2):
            T = 2 * nt + qt
            k(f's_add_u32 s5, s35, {T * 4096}')
            k(f'buffer_store_dwordx4 {acc[nt][qt]}, {v16}, {SRD_WS}, s5 offen sc1')
    k('s_barrier')
    k('s_add_u32 s32, s32, 1')
    k(f's_add_u32 s33, s33, {32 * 8192}'); k(f's_add_u32 s35, s35, {5 * 4 * 16384}')
    k('s_cmp_lt_u32 s32, 64'); k(f's_cbranch_scc1 {LOOP}')
    k('s_waitcnt vmcnt(0)'); k('s_barrier')
    own_flag('64')
    k('s_mov_b32 s55, 0'); k('s_mov_b32 s56, 63')
    poll('s55', 's56', 'WO_P1'); part_loads(); k('s_waitcnt vmcnt(0)'); finalize()
    k('s_mov_b32 s56, 64')
    poll('s55', 's56', 'WO_P2'); part_loads(); k('s_waitcnt vmcnt(0)'); finalize()
    if TIMING:
        k('s_memtime s[88:89]'); k('s_memrealtime s[90:91]'); k('s_waitcnt lgkmcnt(0)')
        k('s_sub_u32 s88, s88, s84'); k('s_sub_u32 s90, s90, s86')
        k('s_load_dwordx2 s[92:93], s[0:1], 120'); k('s_waitcnt lgkmcnt(0)')
        k(f's_lshl_b32 s94, {S_INST}, 5'); k(f's_add_u32 s94, s94, {S_IDX}'); k('s_lshl_b32 s94, s94, 4')
        k('v_mov_b32 v15, s94'); k('v_add_u32 v15, 36864, v15'); k('v_mov_b32 v20, s88'); k('v_mov_b32 v21, s90'); k('v_mov_b32 v22, s86'); k('v_mov_b32 v23, 0')
        k('global_store_dwordx4 v15, v[20:23], s[92:93]')
    k('s_waitcnt vmcnt(0)')
    k.manual(False); k.drained()
```

```python
from common import *
from role_qatt import poll_flag
import math
TIMING = False
DBG_STEPS = 0
NOPOISON = False
SPIN = 0x40000
SAFE_FLAG = 's25'

XQK = 0; OX = 0; TC = 4096; MEM = 6144; WL = 16384

def ops_list():
    ops = []
    for M in 'QKV':
        for c in range(10):
            for t in range(2): ops.append((M, t, c))
    for i in range(10):
        for c2 in range(2): ops.append(('O', i, c2))
    return ops
G_UNITS = [('K', 9), ('Q', 9), ('O', 0, 1), ('O', 4, 1)]
L_UNITS = [('V', 1), ('V', 2), ('V', 3), ('V', 4), ('V', 5), ('O', 1, 0), ('O', 2, 1), ('O', 3, 0), ('O', 4, 0)]
G23 = 48
G01 = 64
def unit_of(op):
    if op[0] == 'O': return ('O', op[1] >> 1, op[2]), op[1] & 1
    return (op[0], op[2]), op[1]
def all_units():
    u = []
    for M in 'QKV':
        for c in range(10): u.append((M, c))
    for ip in range(5):
        for c2 in range(2): u.append(('O', ip, c2))
    return u
def classify():
    src = {}; nR = 0
    for op in ops_list():
        u, o = unit_of(op)
        if u in G_UNITS: src[op] = ('G', G_UNITS.index(u) * 2 + o)
        elif u in L_UNITS: src[op] = ('L', L_UNITS.index(u), o)
        else:
            reg = Reg('a', 8 * nR, 8) if nR < 32 else Reg('v', 80 + 8 * (nR - 32), 8)
            src[op] = ('R', reg); nR += 1
    assert nR == 54
    return src
SRC = classify()
def unit_ops(u):
    if u[0] == 'O': return [('O', 2 * u[1], u[2]), ('O', 2 * u[1] + 1, u[2])]
    return [(u[0], 0, u[1]), (u[0], 1, u[1])]

v16l, vBL, vIDX, vXW, vXR, vOW, vPS, vLN = 'v0', 'v1', 'v2', 'v3', 'v4', 'v5', 'v6', 'v7'
S_SEG, S_KX, S_KVM, S_PCUR, S_POTH, S_MNEXT, S_MPOI, S_WSTR = 's32', 's33', 's34', 's35', 's36', 's37', 's38', 's39'
M_N2, M_N8, M_N4 = 's[44:45]', 's[46:47]', 's[48:49]'
S_C = 's50'
S_RED = 's51'
S_RLD, S_RPUB = 's52', 's53'
S_PST = 's54'
S_PST2 = 's55'
S_PB, S_MB = 's56', 's57'
S_FKVM, S_FKVD = 's58', 's59'

def startup_weights(k, pool):
    units = [u for u in all_units() if u not in L_UNITS]
    assert len(units) == 31
    for n in range(31, 40): units.append(L_UNITS[n % 9])
    load_srd(k, 12, S_KA, 16, W_BYTES); load_srd(k, 16, S_KA, 24, W_BYTES)
    load_srd(k, 20, S_KA, 32, W_BYTES); load_srd(k, 60, S_KA, 40, W_BYTES)
    SR = {'Q': 's[12:15]', 'K': 's[16:19]', 'V': 's[20:23]', 'O': 's[60:63]'}
    t = pool.alloc(8, name='st')
    vWq, vWo, vTq0, vTq1, vTo0, vTo1 = [t[i] for i in range(6)]
    a, b = t[6], t[7]
    k(f's_and_b32 s4, {S_WAVE}, 1'); k('s_lshl_b32 s4, s4, 1')
    k(f's_lshr_b32 s5, {S_WAVE}, 1'); k('s_lshl_b32 s5, s5, 2'); k('s_or_b32 s4, s4, s5')
    k(f'v_bfe_u32 {a}, {vLN}, 4, 1'); k(f'v_or_b32 {a}, s4, {a}'); k(f'v_lshlrev_b32 {a}, 1, {a}')
    k(f'v_and_b32 {b}, 15, {vLN}'); k(f'v_xor_b32 {a}, {a}, {b}'); k(f'v_lshlrev_b32 {a}, 4, {a}')
    k(f's_lshl_b32 s4, {S_WAVE}, 2')
    k(f'v_lshrrev_b32 {b}, 4, {vLN}'); k(f'v_add_u32 {b}, s4, {b}')
    k(f'v_lshl_add_u32 {vWq}, {b}, 13, {a}')
    k(f'v_mul_u32_u24 {b}, 1280, {b}'); k(f'v_add_u32 {vWo}, {b}, {a}')
    x = pool.alloc(4, name='st2')
    k(f'v_bfe_u32 {x[0]}, {vLN}, 2, 1')
    k(f'v_bfe_u32 {x[1]}, {vLN}, 3, 1')
    k(f'v_bfe_u32 {x[2]}, {vLN}, 4, 1')
    k(f'v_lshrrev_b32 {x[3]}, 5, {vLN}')
    k(f'v_lshl_or_b32 {a}, {x[2]}, 1, {x[0]}'); k(f'v_lshl_or_b32 {a}, {x[1]}, 2, {a}')
    k(f'v_lshl_or_b32 {b}, {x[1]}, 3, {x[0]}'); k(f'v_lshl_or_b32 {b}, {x[2]}, 2, {b}'); k(f'v_lshl_or_b32 {b}, {x[3]}, 4, {b}')
    k(f'v_lshlrev_b32 {b}, 8, {b}')
    k(f'v_and_b32 {x[0]}, 3, {vLN}'); k(f'v_lshl_add_u32 {b}, {x[0]}, 3, {b}')
    k(f's_lshl_b32 s4, {S_WAVE}, 1')
    k(f'v_xor_b32 {x[0]}, s4, {a}'); k(f'v_lshl_add_u32 {vTq0}, {x[0]}, 5, {b}')
    k(f'v_xor_b32 {vTq1}, 32, {vTq0}')
    k(f'v_xor_b32 {x[0]}, {S_WAVE}, {a}'); k(f'v_lshl_add_u32 {vTo0}, {x[0]}, 5, {b}')
    k(f'v_xor_b32 {vTo1}, 128, {vTo0}')
    x.free()
    k(f's_lshl_b32 s40, {S_IDX}, 8'); k(f's_mul_i32 s41, {S_IDX}, {128*1280}'); k(f's_lshl_b32 s42, {S_WAVE}, 10')
    def dma(n):
        u = units[n]; slot = n % 9
        for mm in range(4):
            k(f's_add_u32 m0, s42, {WL + slot * 16384 + mm * 4096}')
            if u[0] == 'O':
                k(f's_add_u32 s5, s41, {(64 * u[2] + 16 * mm) * 1280 + u[1] * 256}')
                k(f'buffer_load_dwordx4 {vWo}, {SR["O"]}, s5 offen' + WFL['chain'] + ' lds')
            else:
                k(f's_add_u32 s5, s40, {(64 * u[1] + 16 * mm) * 8192}')
                k(f'buffer_load_dwordx4 {vWq}, {SR[u[0]]}, s5 offen' + WFL['chain'] + ' lds')
    tmp = pool.alloc(16, align=2, name='wtmp')
    ad = pool.alloc(2, name='wad')
    k.manual(True)
    DEPTH = 8
    q = []
    def issue(n):
        dma(n); q.extend([n] * 4)
    for n in range(DEPTH): issue(n)
    for n in range(40):
        u = units[n]; slot = n % 9
        last = max(i for i, e in enumerate(q) if e == n)
        k(f's_waitcnt vmcnt({min(63, len(q) - 1 - last)}) lgkmcnt(0)'); del q[:last + 1]
        k('s_barrier')
        if n + DEPTH < 40 and n >= 0:
            issue(n + DEPTH)
        a0, a1 = (vTo0, vTo1) if u[0] == 'O' else (vTq0, vTq1)
        k(f'v_add_u32 {ad[0]}, {WL + slot * 16384}, {a0}')
        k(f'v_add_u32 {ad[1]}, {WL + slot * 16384}, {a1}')
        dsts = []
        for o, op in enumerate(unit_ops(u)):
            s = SRC[op]
            dst = s[1] if s[0] == 'R' else tmp[8 * o:8 * o + 8]
            dsts.append((s, dst))
            for p in range(4):
                off = (32 * (p >> 1) + 2 * (p & 1)) * 256
                k(f'ds_read_b64_tr_b16 {dst[2*p:2*p+2]}, {ad[o]} offset:{off}')
        kind = dsts[0][0][0]
        if kind == 'G':
            k('s_waitcnt lgkmcnt(0)')
            for s, dst in dsts:
                for hh in range(2):
                    k(f's_add_u32 s5, {S_WSTR}, {s[1] * 2048 + hh * 1024}')
                    k(f'buffer_store_dwordx4 {dst[4*hh:4*hh+4]}, {v16l}, {SRD_WS}, s5 offen'); q.append('st')
            k('s_waitcnt vmcnt(%d)' % 0 if False else 's_nop 1')
        if kind == 'L':
            k('s_waitcnt lgkmcnt(0)')
            k('s_barrier')
            k(f's_lshl_b32 s4, {S_WAVE}, 12')
            k(f'v_add_u32 {ad[0]}, s4, {v16l}')
            k(f'v_add_u32 {ad[0]}, {WL + slot * 16384}, {ad[0]}')
            for o, (s, dst) in enumerate(dsts):
                for hh in range(2):
                    k(f'ds_write_b128 {ad[0]}, {dst[4*hh:4*hh+4]} offset:{o*2048 + hh*1024}')
    k('s_waitcnt vmcnt(0) lgkmcnt(0)')
    k('s_barrier')
    k.manual(False); k.drained()
    t.free(); tmp.free(); ad.free()

def smf(k, acc, A, B): k(f'v_smfmac_f32_16x16x64_bf16 {acc}, {A}, {B}, {vIDX}')

INTEGRATED = False
SAFE = [False]
def stf(): return ' sc1' if SAFE[0] else ''

def role_chain(k):
    pool = Pool('chain', 'v', range(8, 80))
    k(f'v_mov_b32 {vLN}, v2')
    inst_kernarg(k)
    k(f'v_lshlrev_b32 {v16l}, 4, {vLN}')
    k(f's_lshl_b32 s4, {S_INST}, 5'); k(f's_add_u32 s4, s4, {S_IDX}'); k('s_lshl_b32 s4, s4, 2'); k(f's_add_u32 s4, s4, {S_WAVE}')
    k(f's_lshl_b32 s4, s4, 14'); k(f's_add_u32 {S_WSTR}, s4, {WSTR}')
    startup_weights(k, pool)
    if TIMING:
        k('s_memrealtime s[98:99]'); k('s_waitcnt lgkmcnt(0)')
    t = pool.alloc(6, name='init')
    a, b, c_, d = t[0], t[1], t[2], t[3]
    k(f'v_and_b32 {a}, 15, {vLN}'); k(f'v_lshrrev_b32 {b}, 4, {vLN}')
    k(f'v_and_b32 {c_}, 2, {vLN}'); k(f'v_cmp_ne_u32 {M_N2}, 0, {c_}')
    k(f'v_cmp_gt_u32 {M_N8}, 8, {a}'); k(f'v_cmp_gt_u32 {M_N4}, 4, {a}')
    k(f'v_and_b32 {c_}, 1, {vLN}'); k(f'v_cmp_ne_u32 vcc, 0, {c_}')
    k(f'v_mov_b32 {d}, 0x44444444'); k(f'v_mov_b32 {vIDX}, 0xeeeeeeee'); k(f'v_cndmask_b32 {vIDX}, {d}, {vIDX}, vcc')
    k(f's_lshl_b32 s4, {S_WAVE}, 12'); k(f's_add_u32 s4, s4, {WL}'); k(f'v_add_u32 {vBL}, s4, {v16l}')
    k(f's_lshl_b32 s4, {S_WAVE}, 10'); k(f'v_lshlrev_b32 {c_}, 5, {a}'); k(f'v_lshl_add_u32 {c_}, {b}, 3, {c_}'); k(f'v_add_u32 {vXW}, s4, {c_}')
    k(f'v_bfe_u32 {c_}, {vLN}, 2, 2'); k(f'v_lshl_add_u32 {c_}, {b}, 3, {c_}'); k(f'v_lshlrev_b32 {c_}, 5, {c_}')
    k(f'v_and_b32 {d}, 3, {vLN}'); k(f'v_lshl_add_u32 {c_}, {d}, 3, {c_}'); k(f'v_add_u32 {vXR}, s4, {c_}')
    k(f'v_lshrrev_b32 {c_}, 2, {a}'); k(f'v_lshlrev_b32 {c_}, 1, {c_}'); k(f'v_and_b32 {d}, 1, {a}'); k(f'v_or_b32 {c_}, {c_}, {d}')
    k(f'v_lshlrev_b32 {c_}, 1, {c_}'); k(f'v_lshrrev_b32 {d}, 1, {b}'); k(f'v_or_b32 {c_}, {c_}, {d}')
    k(f'v_lshlrev_b32 {c_}, 4, {c_}'); k(f'v_and_b32 {d}, 1, {b}'); k(f'v_lshl_add_u32 {c_}, {d}, 3, {c_}')
    k(f's_lshr_b32 s4, {S_WAVE}, 1'); k('s_lshl_b32 s4, s4, 10'); k(f's_and_b32 s5, {S_WAVE}, 1'); k('s_lshl_b32 s5, s5, 9'); k('s_add_u32 s4, s4, s5')
    k(f'v_add_u32 {vOW}, s4, {c_}')
    k(f'v_lshrrev_b32 {c_}, 2, {a}'); k(f'v_lshlrev_b32 {c_}, 13, {c_}'); k(f'v_and_b32 {d}, 3, {a}'); k(f'v_lshl_add_u32 {d}, {b}, 2, {d}')
    k(f'v_lshl_add_u32 {vPS}, {d}, 4, {c_}')
    k(f's_mov_b32 {S_C}, {hex(f32bits(128 ** -0.5 * math.log2(math.e)))}')
    k(f's_mul_i32 {S_PB}, {S_INST}, {2*PART_BUF}'); k(f's_add_u32 {S_PB}, {S_PB}, {PART}')
    k(f's_mul_i32 {S_MB}, {S_INST}, {3*16384}'); k(f's_add_u32 {S_MB}, {S_MB}, {MEMR}')
    k(f's_lshl_b32 s4, {S_WAVE}, 15'); k(f's_lshl_b32 s5, {S_IDX}, 8'); k(f's_add_u32 {S_PST}, s4, s5')
    k(f's_lshl_b32 s4, {S_WAVE}, 14'); k(f's_lshl_b32 s5, {S_IDX}, 7'); k(f's_add_u32 {S_PST2}, s4, s5'); k(f's_add_u32 {S_PST2}, {S_PST2}, 262144')
    k(f's_mov_b32 {S_RED}, 0')
    k(f's_cmp_eq_u32 {S_WAVE}, 0'); k(f's_cselect_b32 {S_RED}, 1, 0')
    k(f's_cmp_lt_u32 {S_IDX}, 16'); k('s_cselect_b32 s4, 2, 0'); k(f's_cmp_eq_u32 {S_WAVE}, 1'); k(f's_cselect_b32 {S_RED}, s4, {S_RED}')
    k(f's_bfe_u32 s4, {S_IDX}, 0x20002'); k('s_lshl_b32 s4, s4, 8')
    k(f's_bfe_u32 s5, {S_IDX}, 0x10001'); k('s_lshl_b32 s5, s5, 4'); k('s_add_u32 s4, s4, s5')
    k(f's_and_b32 s5, {S_IDX}, 1'); k('s_lshl_b32 s5, s5, 3'); k('s_add_u32 s4, s4, s5')
    k(f's_lshr_b32 s5, {S_IDX}, 4'); k('s_lshl_b32 s5, s5, 12'); k('s_add_u32 s5, s5, s4')
    k('s_add_u32 s4, s4, 8192')
    k(f's_cmp_eq_u32 {S_RED}, 2'); k(f's_cselect_b32 {S_RPUB}, s4, s5')
    k(f's_lshl_b32 s4, {S_IDX}, 12'); k('s_add_u32 s4, s4, 262144'); k(f's_lshl_b32 s5, {S_IDX}, 13')
    k(f's_cmp_eq_u32 {S_RED}, 2'); k(f's_cselect_b32 {S_RLD}, s4, s5')
    k(f's_cmp_eq_u32 {S_RED}, 2'); k(f's_cselect_b64 {M_PUB}, {M_N4}, {M_N8}')
    k(f's_cmp_eq_u32 {S_RED}, 0'); k(f's_cselect_b64 {M_PUB}, 0, {M_PUB}')
    k(f's_cmp_lt_u32 {S_IDX}, 16'); k(f's_cselect_b64 {M_HALFCU}, -1, 0')
    k(f's_cmp_eq_u32 {S_WAVE}, 3'); k(f's_cselect_b64 {M_W3}, 1, 0')
    k(f's_lshl_b32 s4, {S_IDX}, 13'); k(f's_lshl_b32 s5, {S_WAVE}, 11'); k(f's_add_u32 {S_POIF}, s4, s5')
    k(f's_lshl_b32 s4, {S_IDX}, 12'); k(f's_lshl_b32 s5, {S_WAVE}, 10'); k('s_add_u32 s4, s4, s5'); k(f's_add_u32 {S_POIH}, s4, 262144')
    k(f's_lshl_b32 s4, {S_WAVE}, 11'); k(f's_add_u32 {S_TOFF}, s4, {32 * 16384}')
    k('s_mov_b32 s18, -1'); k('s_mov_b32 s19, 0')
    k(f's_lshl_b32 s4, {S_INST}, 11'); k(f's_add_u32 s4, s4, {S_IDX}')
    k(f's_lshl_b32 {S_KX}, s4, 14'); k(f's_lshl_b32 s5, {S_WAVE}, 11'); k(f's_add_u32 {S_KX}, {S_KX}, s5')
    if KVX: k(f's_add_u32 {S_KX}, {S_KX}, {KVX}')
    k(f's_lshl_b32 {S_KVM}, s4, 12'); k(f's_lshl_b32 s5, {S_WAVE}, 10'); k(f's_add_u32 {S_KVM}, {S_KVM}, s5'); k(f's_add_u32 {S_KVM}, {S_KVM}, {KVM}')
    k(f's_lshl_b32 s4, {S_INST}, 5'); k(f's_add_u32 s4, s4, {S_IDX}'); k('s_lshl_b32 s4, s4, 7')
    k(f's_add_u32 {S_FKVM}, s4, {F_KVM}'); k(f's_add_u32 {S_FKVD}, s4, {F_KVD}')
    k(f's_mov_b32 {S_SEG}, 0'); k(f's_mov_b32 {S_KVSEEN}, 0')
    k(f's_lshl_b32 s4, {S_WAVE}, 10'); k(f's_add_u32 {S_TCW}, s4, {MEM + 6144}')
    k(f's_mov_b32 {S_PCUR}, {S_PB}'); k(f's_add_u32 {S_POTH}, {S_PB}, {PART_BUF}')
    k(f's_add_u32 {S_MNEXT}, {S_MB}, 16384'); k(f's_mov_b32 {S_MPOI}, {S_MB}'); k(f's_mov_b32 {S_MPP}, {S_MB}')
    if INTEGRATED:
        chain_init(k, pool)
    load_srd(k, 12, S_KA, 8, MEM0_BYTES)
    k(f'v_bfe_u32 {c_}, {vLN}, 1, 3'); k(f'v_mul_u32_u24 {c_}, 1280, {c_}')
    k(f'v_lshl_add_u32 {c_}, {b}, 5, {c_}'); k(f'v_and_b32 {d}, 1, {vLN}'); k(f'v_lshl_add_u32 {c_}, {d}, 4, {c_}')
    m0r = pool.alloc(12, align=2, name='m0')
    k(f's_lshl_b32 s4, {S_WAVE}, 7')
    for j in range(3):
        k(f's_add_u32 s5, s4, {j * 512}')
        k(f'buffer_load_dwordx4 {m0r[4*j:4*j+4]}, {c_}, s[12:15], s5 offen')
    k(f's_lshl_b32 s4, {S_WAVE}, 10'); k(f'v_add_u32 {d}, s4, {v16l}')
    k(f'ds_write_b128 {d}, {m0r[0:4]} offset:{MEM}')
    k(f'ds_write_b128 {d}, {m0r[4:8]} offset:{MEM + 4096}')
    L1 = k.newlabel('CH_M0')
    k(f's_cmp_ge_u32 {S_WAVE}, 2'); k(f's_cbranch_scc1 {L1}')
    k(f'ds_write_b128 {d}, {m0r[8:12]} offset:{MEM + 8192}')
    k.label(L1)
    z = m0r
    k('s_waitcnt vmcnt(0) lgkmcnt(0)')
    for i in range(4): k(f'v_mov_b32 {z[i]}, 0')
    k(f'ds_write_b128 {v16l}, {z[0:4]} offset:{TC}')
    k('s_waitcnt lgkmcnt(0)')
    k('s_barrier')
    k.drained()
    m0r.free(); t.free()
    for i in range(1, 4): k(f's_add_u32 {S_WS4[i]}, {S_WSTR}, {4096 * i}')
    k(f's_add_u32 {S_VX}, {S_KX}, 8192')
    gload(k, Reg('v', G23, 8), 0)
    k('s_waitcnt vmcnt(0)'); k.drained()
    if TIMING:
        k('s_memtime s[64:65]'); k('s_memrealtime s[66:67]'); k('s_waitcnt lgkmcnt(0)')
        for i in range(8): k(f's_mov_b32 s{80+i}, 0')
    LEND = k.newlabel('CH_END')
    if INTEGRATED:
        vt = pool.alloc(2, name='iw')
        init_wait(k, vt)
        k(f's_lshl_b32 s4, {S_INST}, 2'); k(f'v_mov_b32 {vt[1]}, s4')
        k(f'global_load_dword {vt[0]}, {vt[1]}, {DBG_PTR} sc1'); k('s_waitcnt vmcnt(0)')
        k(f'v_readfirstlane_b32 s6, {vt[0]}')
        k('s_mov_b32 s60, s6')
        k('s_mov_b32 s61, 1'); poll_flag(k, S_FKVD, 's61', vt, 'CH_KV0'); k(f's_mov_b32 {S_KVSEEN}, s6')
        vt.free()
        k.drained()
        LSAFE = k.newlabel('CH_SAFE')
        k('s_cmp_lt_u32 s60, 32'); k(f's_cbranch_scc1 {LSAFE}')
        for safe in (False, True):
            SAFE[0] = safe
            if safe: k.label(LSAFE); k.drained()
            LOOP = k.newlabel('CH_LOOP'); k.label(LOOP)
            step(k, pool, LOOP, LEND)
        SAFE[0] = False
    else:
        LOOP = k.newlabel('CH_LOOP')
        k.label(LOOP)
        step(k, pool, LOOP, LEND)
    k.label(LEND)
    if TIMING:
        k('s_memtime s[68:69]'); k('s_memrealtime s[70:71]'); k('s_waitcnt lgkmcnt(0)')
        k('s_sub_u32 s68, s68, s64'); k('s_sub_u32 s70, s70, s66')
        k('s_load_dwordx2 s[72:73], s[0:1], 120'); k('s_waitcnt lgkmcnt(0)')
        k(f's_lshl_b32 s74, {S_INST}, 5'); k(f's_add_u32 s74, s74, {S_IDX}'); k('s_lshl_b32 s74, s74, 2'); k(f's_add_u32 s74, s74, {S_WAVE}'); k('s_lshl_b32 s74, s74, 6')
        k('v_mov_b32 v8, s74'); k('v_add_u32 v8, 1024, v8')
        k('v_mov_b32 v12, s68'); k('v_mov_b32 v13, s70'); k('v_mov_b32 v14, s66'); k('v_mov_b32 v15, s100')
        k('global_store_dwordx4 v8, v[12:15], s[72:73]')
        for j in range(2):
            for i in range(4): k(f'v_mov_b32 v{16+4*j+i}, ' + ('s98' if (j == 0 and i == 0 and not STAMPS_ON) else f's{80+4*j+i}'))
            k(f'global_store_dwordx4 v8, v[{16+4*j}:{19+4*j}], s[72:73] offset:{16+16*j}')
        k('s_waitcnt vmcnt(0)')

def chain_init(k, pool):
    p = pool.alloc(4, name='ip'); a = pool.alloc(2, name='ia')
    zero_flag(k, S_FKVM, a)
    L = k.newlabel('CI')
    k(f's_cmp_eq_u32 {S_RED}, 0'); k(f's_cbranch_scc1 {L}')
    for i in range(4): k(f'v_mov_b32 {p[i]}, -1')
    for b in range(2):
        k(f's_add_u32 s5, {S_PB}, {S_RLD}')
        if b: k(f's_add_u32 s5, s5, {PART_BUF}')
        for m in range(4): k(f'buffer_store_dwordx4 {p}, {v16l}, {SRD_WS}, s5 offen offset:{m * 1024} sc1')
        L2 = k.newlabel('CI2')
        k(f's_cmp_eq_u32 {S_RED}, 2'); k(f's_cbranch_scc1 {L2}')
        k('s_add_u32 s5, s5, 4096')
        for m in range(4): k(f'buffer_store_dwordx4 {p}, {v16l}, {SRD_WS}, s5 offen offset:{m * 1024} sc1')
        k.label(L2)
    pub_addr(k, a[0], a[1])
    k(f's_cmp_eq_u32 {S_RED}, 2'); k(f's_cselect_b64 exec, {M_N4}, {M_N8}')
    for b in range(3):
        k(f's_add_u32 s5, {S_MB}, {S_RPUB}')
        if b: k(f's_add_u32 s5, s5, {b * 16384}')
        k(f'buffer_store_dwordx2 {p[0:2]}, {a[0]}, {SRD_WS}, s5 offen sc1')
    k('s_mov_b64 exec, -1')
    k.label(L)
    init_arrive(k, a)
    k.drained()
    p.free(); a.free()

def f32bits(x):
    import struct
    return struct.unpack('<I', struct.pack('<f', x))[0]

STAMP = [0]
def stamp(k, i):
    if not TIMING: return
    k('s_memtime s[76:77]'); k('s_waitcnt lgkmcnt(0)')
    k('s_sub_u32 s78, s76, s79'); k(f's_add_u32 s{80+i}, s{80+i}, s78'); k('s_mov_b32 s79, s76')

def gload(k, dst, gi):
    k(f's_add_u32 s5, {S_WSTR}, {gi * 2048}')
    k(f'buffer_load_dwordx4 {dst[0:4]}, {v16l}, {SRD_WS}, s5 offen')
    k(f'buffer_load_dwordx4 {dst[4:8]}, {v16l}, {SRD_WS}, s5 offen offset:1024')

def zero(k, r):
    for i in range(0, r.n, 2): k(f'v_mov_b64 {r[i:i+2]}, 0')

KVF = ' nt'
S_KVSEEN = 's62'
S_TCW = 's63'
S_MPP = 's88'
S_POIF, S_POIH = 's89', 's96'
M_PUB, M_HALFCU, M_W3 = 's[90:91]', 's[92:93]', 's[94:95]'
NLS_O = 2
NPRE = 4
RED_SLEEP = 1
RED_SLEEP_H = 2
PRE_SLEEP = 6
TOUCH_ON = True
STAMPS_ON = True
COUNT_POLLS = False
ONLY = None
P1_AT = -1
MARK = None
def mark(k, name):
    if TIMING and MARK == name: stamp(k, 0)

def bstamp(k, i):
    if TIMING and STAMPS_ON and (ONLY is None or ONLY == i): stamp(k, i)

S_WS4 = [S_WSTR, 's12', 's13', 's14']
def gload1(k, dst, gi, half):
    off = (gi & 1) * 2048 + half * 1024
    k(f'buffer_load_dwordx4 {dst[4*half:4*half+4]}, {v16l}, {SRD_WS}, {S_WS4[gi >> 1]} offen offset:{off}')

class VStream:
    def __init__(self, k, pool, slot, accv, G):
        self.k, self.pool, self.accv, self.G = k, pool, accv, G
        self.order = [9, 8, 7, 6, 0, 1, 2, 3, 4, 5]
        self.slot = {9: slot[9], 8: slot[8], 7: slot[7]}
        self.slot[6] = slot[9]; self.slot[0] = slot[8]; self.slot[1] = slot[7]
        self.slot[2] = slot[9]; self.slot[3] = slot[7]; self.slot[4] = slot[9]; self.slot[5] = slot[7]
        self.after = {}
        for j, p in {3: 0, 4: 1, 5: 2, 6: 3, 7: 5, 8: 6, 9: 7}.items(): self.after.setdefault(p, []).append(j)
        self.ops = [('V', t, c) for c in self.order for t in range(2)]
        self.lops = [op for op in self.ops if SRC[op][0] == 'L']
        self.li = {op: i for i, op in enumerate(self.lops)}
        self.i = 0; self.LS = None; self.bl = None
    def start_l(self):
        self.LS = [self.pool.alloc_at(8, 8, 'L0'), self.pool.alloc_at(16, 8, 'L1')]
        self.lload(0); self.lload(1)
    def lload(self, n):
        op = self.lops[n]; off = SRC[op][1] * 16384 + SRC[op][2] * 2048
        d = self.LS[n % 2]; ad = vBL
        if off >= 65536:
            if self.bl is None:
                self.bl = self.pool.alloc(1, name='blv'); self.k(f'v_add_u32 {self.bl}, 65536, {vBL}')
            ad = str(self.bl); off -= 65536
        self.k(f'ds_read_b128 {d[0:4]}, {ad} offset:{off}'); self.k(f'ds_read_b128 {d[4:8]}, {ad} offset:{off + 1024}')
    def emit(self, n=1):
        k = self.k
        for _ in range(n):
            if self.i >= len(self.ops): return
            op = self.ops[self.i]; s = SRC[op]; c = op[2]
            Bv = s[1] if s[0] == 'R' else (self.G[op[1]] if s[0] == 'G' else self.LS[self.li[op] % 2])
            smf(k, self.accv[op[1]], self.slot[c], Bv)
            if s[0] == 'L' and self.li[op] + 2 < len(self.lops): self.lload(self.li[op] + 2)
            j = self.i // 2
            if op[1] == 1:
                for jn in self.after.get(j, []):
                    cn = self.order[jn]
                    k(f'ds_read_b128 {self.slot[cn]}, {v16l} offset:{MEM + cn * 1024}')
            self.i += 1
    def finish(self):
        self.emit(100)
        for l_ in self.LS: l_.free()
        if self.bl is not None: self.bl.free()

def poison_ops(k, pz):
    def p0():
        k(f'v_mov_b32 {pz[0]}, -1'); k(f'v_mov_b32 {pz[1]}, -1')
        pub_addr(k, pz[2], pz[3])
        k(f's_add_u32 s6, {S_MPP}, {S_RPUB}'); k(f's_mov_b64 exec, {M_PUB}')
        k(f'buffer_store_dwordx2 {pz[0:2]}, {pz[2]}, {SRD_WS}, s6 offen' + stf())
        k('s_mov_b64 exec, -1')
        k(f'v_mov_b32 {pz[2]}, -1'); k(f'v_mov_b32 {pz[3]}, -1')
    def p1():
        k(f's_add_u32 s6, {S_POTH}, {S_POIF}')
        k(f'buffer_store_dwordx4 {pz}, {v16l}, {SRD_WS}, s6 offen' + stf())
    def p2():
        k(f's_add_u32 s6, {S_POTH}, {S_POIF}')
        k(f'buffer_store_dwordx4 {pz}, {v16l}, {SRD_WS}, s6 offen offset:1024' + stf())
    def p3():
        k(f's_add_u32 s6, {S_POTH}, {S_POIH}'); k(f's_mov_b64 exec, {M_HALFCU}')
        k(f'buffer_store_dwordx4 {pz}, {v16l}, {SRD_WS}, s6 offen' + stf())
        k('s_mov_b64 exec, -1')
    return [p0, p1, p2, p3]

def step(k, pool, LOOP, LEND):
    if TIMING and STAMPS_ON:
        k('s_memtime s[76:77]'); k('s_waitcnt lgkmcnt(0)'); k('s_mov_b32 s79, s76')
    G0, G1 = pool.alloc_at(G01, 8, 'G0'), pool.alloc_at(G01 + 8, 8, 'G1')
    G2, G3 = pool.alloc_at(G23, 8, 'G2'), pool.alloc_at(G23 + 8, 8, 'G3')
    k.pending_vm([G2[0:4], G2[4:8]])
    pz = pool.alloc_at(44, 4, 'pz')
    accq = [pool.alloc_at(8, 4, 'q0'), pool.alloc_at(12, 4, 'q1')]
    acck = [pool.alloc_at(16, 4, 'k0'), pool.alloc_at(24, 4, 'k1')]
    A = [pool.alloc_at(28, 4, 'A0'), pool.alloc_at(32, 4, 'A1'), pool.alloc_at(20, 4, 'A2')]
    KX = pool.alloc_at(36, 8, 'KX')
    slot = {c: A[c % 3] for c in range(10)}
    def rdA(c): k(f'ds_read_b128 {slot[c]}, {v16l} offset:{MEM + c * 1024}')
    rdA(0); rdA(1)
    for r in accq + acck: zero(k, r)
    gmap = {('K', 0, 9): G2, ('K', 1, 9): G3, ('Q', 0, 9): G0, ('Q', 1, 9): G1}
    def B(op):
        s = SRC[op]
        return s[1] if s[0] == 'R' else gmap[op]
    po = poison_ops(k, pz)
    def kx(h): k(f'buffer_load_dwordx4 {KX[4*h:4*h+4]}, {v16l}, {SRD_WS}, {S_KX} offen offset:{1024*h}' + KVF)
    vm = {0: lambda: gload1(k, G3, 1, 0), 1: lambda: gload1(k, G3, 1, 1), 2: lambda: gload1(k, G0, 2, 0), 3: lambda: gload1(k, G0, 2, 1),
          4: lambda: gload1(k, G1, 3, 0), 5: lambda: gload1(k, G1, 3, 1), 6: lambda: None, 7: lambda: kx(0), 8: lambda: kx(1)}
    for c in range(9):
        if c + 2 < 10: rdA(c + 2)
        if TIMING and P1_AT == c: stamp(k, 0)
        for t in range(2): smf(k, acck[t], slot[c], B(('K', t, c)))
        vm[c]()
        for t in range(2): smf(k, accq[t], slot[c], B(('Q', t, c)))
    for t in range(2): smf(k, acck[t], slot[9], B(('K', t, 9)))
    accv = [G2[0:4], G2[4:8]]
    zero(k, G2)
    VX = G3
    k(f'buffer_load_dwordx4 {VX[0:4]}, {v16l}, {SRD_WS}, {S_VX} offen' + KVF)
    for t in range(2): smf(k, accq[t], slot[9], B(('Q', t, 9)))
    G0.free(); G1.free()
    bstamp(k, 0)
    V = VStream(k, pool, slot, accv, None)
    V.emit(2)
    k(f'buffer_load_dwordx4 {VX[4:8]}, {v16l}, {SRD_WS}, {S_VX} offen offset:1024' + KVF)
    W = pool.alloc_at(64, 4, 'W')
    KV4 = pool.alloc_at(68, 4, 'KV4')
    TCH = pool.alloc_at(76, 2, 'touch')
    if TOUCH_ON:
        k(f'v_lshlrev_b32 {TCH[1]}, 3, {v16l}')
        k(f's_add_u32 s5, {S_KX}, {S_TOFF}')
        if INTEGRATED:
            k(f's_add_u32 s6, {S_SEG}, 2'); k(f's_cmp_ge_u32 {S_KVSEEN}, s6'); k('s_cselect_b64 exec, s[18:19], 0')
        else:
            k('s_mov_b64 exec, 0xffffffff')
        k(f'buffer_load_dword {TCH[0]}, {TCH[1]}, {SRD_WS}, s5 offen')
        k('s_mov_b64 exec, -1')
    if INTEGRATED:
        k(f'buffer_load_dword {TCH[1]}, off, {SRD_WS}, {S_FKVD} sc1')
    k(f's_sub_u32 s5, {S_KVM}, {32 * 4096}')
    k(f's_cmp_lg_u32 {S_SEG}, 0'); k('s_cselect_b64 exec, -1, 0')
    k(f'buffer_store_dwordx4 {pz}, {v16l}, {SRD_WS}, s5 offen sc1')
    k('s_mov_b64 exec, -1')
    k(f's_sub_u32 s6, {S_SEG}, 1'); k(f's_max_i32 s6, s6, 0')
    k(f'v_mov_b32 {W[0]}, s6')
    k(f's_mov_b64 exec, {M_W3}')
    k(f'buffer_store_dword {W[0]}, {v16l}, {SRD_WS}, {S_FKVM} offen sc1')
    k('s_mov_b64 exec, -1')
    V.emit(2)
    for t in range(2):
        a = acck[t]
        k(f'v_add_f32 {a[0]}, {a[0]}, {a[1]}'); k(f'v_add_f32 {a[2]}, {a[2]}, {a[3]}')
        k(f'v_cvt_pk_bf16_f32 {W[2*t]}, {a[0]}, {a[2]}')
    for t in range(2):
        a = accq[t]
        k(f'v_add_f32 {a[0]}, {a[0]}, {a[1]}'); k(f'v_add_f32 {a[2]}, {a[2]}, {a[3]}')
        k(f'v_cvt_pk_bf16_f32 {W[2*t+1]}, {a[0]}, {a[2]}')
        k(f'ds_write_b64 {vXW}, {W[2*t:2*t+2]} offset:{XQK + t * 512}')
    for r in accq + acck: r.free()
    V.emit(2)
    for t in range(2): k(f'v_mov_b32 {KV4[2*t]}, {W[2*t]}')
    po[0]()
    k('s_waitcnt lgkmcnt(0)'); k('s_barrier'); k.drained(vm=False)
    W.free()
    bstamp(k, 1)
    X0 = pool.alloc_at(8, 4, 'X0'); XR = [pool.alloc_at(12, 4, 'Xa'), pool.alloc_at(16, 4, 'Xb')]
    xa = KV4[1]
    def rdX(dst, m):
        ad = vXR
        if m:
            k(f'v_xor_b32 {xa}, {m * 1024}, {vXR}'); ad = str(xa)
        k(f'ds_read_b64_tr_b16 {dst[0:2]}, {ad} offset:{XQK}')
        k(f'ds_read_b64_tr_b16 {dst[2:4]}, {ad} offset:{XQK + 128}')
    rdX(X0, 0); rdX(XR[0], 1); rdX(XR[1], 2)
    po[1]()
    V.emit(2)
    TX = [pool.alloc_at(24, 4, 'TX0'), pool.alloc_at(64, 4, 'TX1')]
    TM = pool.alloc_at(72, 4, 'TM')
    for t in range(2): k(f'v_mfma_f32_16x16x32_bf16 {TX[t]}, {KX[4*t:4*t+4]}, {X0}, 0')
    k(f'v_mfma_f32_16x16x32_bf16 {TM}, {X0}, {X0}, 0')
    rdX(X0, 3)
    k(f'v_mfma_f32_16x16x32_bf16 {TM}, {XR[0]}, {XR[0]}, {TM}')
    k(f'v_mfma_f32_16x16x32_bf16 {TM}, {XR[1]}, {XR[1]}, {TM}')
    V.emit(2)
    k(f'v_mfma_f32_16x16x32_bf16 {TM}, {X0}, {X0}, {TM}')
    for x_ in XR + [X0, KX]: x_.free()
    A[2].free()
    V.start_l()
    k(f's_mov_b64 vcc, {M_N2}')
    k(f'v_add_u32 {xa}, {S_TCW}, {v16l}')
    po[2]()
    for r in range(4):
        k(f'v_cndmask_b32_dpp {TX[0][r]}, {TX[1][r]}, {TX[0][r]}, vcc quad_perm:[2,3,2,3] row_mask:0xf bank_mask:0xf')
    k(f'ds_write_b128 {xa}, {TX[0]}')
    po[3](); pz.free()
    V.emit(2)
    k('s_waitcnt lgkmcnt(0)'); k('s_barrier'); k.drained(vm=False)
    bstamp(k, 2)
    S = TX[0]; S1 = TX[1]; S2 = pool.alloc_at(36, 4, 'S2'); S3 = pool.alloc_at(40, 4, 'S3')
    for m, dst in ((1, S1), (2, S2), (3, S3)):
        k(f'v_xor_b32 {dst[0]}, {m * 1024}, {xa}')
        k(f'ds_read_b128 {dst}, {dst[0]}')
    mx, t1 = TM[2], TM[3]
    k(f'v_mov_b32 {t1}, 0xff800000')
    k(f'v_cndmask_b32 {TM[0]}, {t1}, {TM[0]}, vcc')
    k(f'v_cndmask_b32 {TM[1]}, {t1}, {TM[1]}, vcc')
    k(f'v_max_f32 {mx}, {TM[0]}, {TM[1]}')
    V.emit(2)
    for r in range(4): k(f'v_add_f32 {S[r]}, {S[r]}, {S1[r]}')
    for r in range(4): k(f'v_add_f32 {S2[r]}, {S2[r]}, {S3[r]}')
    for r in range(4): k(f'v_add_f32 {S[r]}, {S[r]}, {S2[r]}')
    for r_ in (S1, S2, S3): r_.free()
    mark(k, 'adds')
    k(f'v_max3_f32 {mx}, {mx}, {S[0]}, {S[1]}'); k(f'v_max3_f32 {mx}, {mx}, {S[2]}, {S[3]}')
    V.emit(2)
    k(f'v_max_f32_dpp {mx}, {mx}, {mx} quad_perm:[2,3,0,1] row_mask:0xf bank_mask:0xf')
    k(f'v_mov_b32 {t1}, {mx}')
    k(f'v_permlane16_swap_b32 {mx}, {t1}'); k(f'v_max_f32 {mx}, {mx}, {t1}')
    k(f'v_mov_b32 {t1}, {mx}')
    k(f'v_permlane32_swap_b32 {mx}, {t1}'); k(f'v_max_f32 {mx}, {mx}, {t1}')
    k(f'v_mul_f32 {mx}, {S_C}, {mx}')
    mark(k, 'max')
    V.emit(2)
    for r in range(4): k(f'v_fma_f32 {S[r]}, {S[r]}, {S_C}, -{mx}')
    for r in range(2): k(f'v_fma_f32 {TM[r]}, {TM[r]}, {S_C}, -{mx}')
    for r in range(4): k(f'v_exp_f32 {S[r]}, {S[r]}')
    for r in range(2): k(f'v_exp_f32 {TM[r]}, {TM[r]}')
    mark(k, 'exp')
    V.finish()
    mark(k, 'vfin')
    A[0].free(); A[1].free()
    GOa = [pool.alloc_at(8, 8, 'GOa0'), pool.alloc_at(16, 8, 'GOa1')]
    gload1(k, GOa[0], 4, 0)
    P = pool.alloc_at(28, 4, 'P'); BM = pool.alloc_at(64, 2, 'BM')
    k(f'v_cvt_pk_bf16_f32 {P[0]}, {S[0]}, {S[1]}'); k(f'v_cvt_pk_bf16_f32 {P[1]}, {S[2]}, {S[3]}')
    k(f'v_mov_b32 {BM[0]}, 0'); k(f'v_cvt_pk_bf16_f32 {BM[1]}, {TM[0]}, {TM[1]}')
    k(f'v_mov_b32_dpp {P[2]}, {P[0]} quad_perm:[0,1,0,1] row_mask:0xf bank_mask:0xf')
    k(f'v_mov_b32_dpp {P[3]}, {P[1]} quad_perm:[0,1,0,1] row_mask:0xf bank_mask:0xf')
    O = [pool.alloc_at(32, 4, 'O0'), pool.alloc_at(36, 4, 'O1')]
    gload1(k, GOa[0], 4, 1)
    for t in range(2):
        k(f'v_add_f32 {accv[t][0]}, {accv[t][0]}, {accv[t][1]}'); k(f'v_add_f32 {accv[t][2]}, {accv[t][2]}, {accv[t][3]}')
        k(f'v_cvt_pk_bf16_f32 {KV4[2*t+1]}, {accv[t][0]}, {accv[t][2]}')
    for t in range(2): k(f'v_mfma_f32_16x16x32_bf16 {O[t]}, {VX[4*t:4*t+4]}, {P}, 0')
    mark(k, 'pvx')
    gload1(k, GOa[1], 5, 0)
    ls = S[0]
    k(f'v_add_f32 {S[0]}, {S[0]}, {S[1]}'); k(f'v_add_f32 {S[2]}, {S[2]}, {S[3]}'); k(f'v_add_f32 {t1}, {TM[0]}, {TM[1]}')
    for t in range(2): k(f'v_mfma_f32_16x16x16_bf16 {O[t]}, {KV4[2*t:2*t+2]}, {BM}, {O[t]}')
    k(f'v_add_f32 {ls}, {S[0]}, {S[2]}'); k(f'v_add_f32 {ls}, {ls}, {t1}')
    G2.free()
    LCONT = k.newlabel('CH_CONT')
    k(f's_cmp_lt_u32 {S_SEG}, 63'); k(f's_cbranch_scc1 {LCONT}')
    k.save()
    k(f'buffer_store_dwordx4 {KV4}, {v16l}, {SRD_WS}, {S_KVM} offen sc1')
    k('s_waitcnt vmcnt(0)'); k('s_barrier')
    flag_store(k, pool, S_FKVM, '64')
    k('s_waitcnt vmcnt(0)')
    k(f's_branch {LEND}')
    k.restore()
    k.label(LCONT)
    gload1(k, GOa[1], 5, 1)
    k(f'v_add_f32_dpp {ls}, {ls}, {ls} quad_perm:[2,3,0,1] row_mask:0xf bank_mask:0xf')
    k(f'v_mov_b32 {t1}, {ls}'); k(f'v_permlane16_swap_b32 {ls}, {t1}'); k(f'v_add_f32 {ls}, {ls}, {t1}')
    k(f'v_mov_b32 {t1}, {ls}'); k(f'v_permlane32_swap_b32 {ls}, {t1}'); k(f'v_add_f32 {ls}, {ls}, {t1}')
    k(f'v_rcp_f32 {ls}, {ls}')
    mark(k, 'rcp')
    G3.free()
    GOb = [pool.alloc_at(56, 8, 'GOb0'), None]
    gload1(k, GOb[0], 6, 0)
    for t in range(2):
        for r in range(4): k(f'v_mul_f32 {O[t][r]}, {O[t][r]}, {ls}')
        k(f'v_cvt_pk_bf16_f32 {P[2*t]}, {O[t][0]}, {O[t][1]}'); k(f'v_cvt_pk_bf16_f32 {P[2*t+1]}, {O[t][2]}, {O[t][3]}')
    k(f's_mov_b64 exec, {M_N2}')
    for t in range(2): k(f'ds_write_b64 {vOW}, {P[2*t:2*t+2]} offset:{OX + t * 256}')
    k('s_mov_b64 exec, -1')
    mark(k, 'oxw')
    gload1(k, GOb[0], 6, 1)
    for r in (S, TM, BM, O[0], O[1]): r.free()
    LS = [pool.alloc_at(32, 8, 'L0'), pool.alloc_at(48, 8, 'L1')]
    bl = pool.alloc_at(78, 1, 'blo')
    k(f'v_add_u32 {bl}, 81920, {vBL}')
    oops = [('O', i, c2) for i in range(10) for c2 in range(2)]
    lops = [op for op in oops if SRC[op][0] == 'L']
    li = {op: i for i, op in enumerate(lops)}
    def lload(n):
        op = lops[n]; base = (SRC[op][1] - 5) * 16384 + SRC[op][2] * 2048
        k(f'ds_read_b128 {LS[n % NLS_O][0:4]}, {bl} offset:{base}'); k(f'ds_read_b128 {LS[n % NLS_O][4:8]}, {bl} offset:{base + 1024}')
    for n in range(NLS_O): lload(n)
    P.free()
    GOb[1] = pool.alloc_at(24, 8, 'GOb1')
    AO = [pool.alloc_at(40, 4, 'AO0'), pool.alloc_at(44, 4, 'AO1')]
    acc = {0: pool.alloc_at(64, 4, 'o0'), 1: pool.alloc_at(72, 4, 'o1')}
    for i in range(2): zero(k, acc[i])
    mark(k, 'preb3')
    k('s_waitcnt lgkmcnt(0)'); k('s_barrier'); k.drained(vm=False)
    for c2 in range(2): k(f'ds_read_b128 {AO[c2]}, {v16l} offset:{OX + c2 * 1024}')
    bstamp(k, 3)
    if INTEGRATED:
        k(f'v_readfirstlane_b32 s6, {TCH[1]}'); k(f's_max_u32 {S_KVSEEN}, {S_KVSEEN}, s6')
    TCH.free()
    def epi(i):
        a = acc[i]; q = acc[i & ~3]
        k(f'v_add_f32 {a[0]}, {a[0]}, {a[1]}'); k(f'v_add_f32 {a[2]}, {a[2]}, {a[3]}')
        k(f'v_cvt_pk_bf16_f32 {q[i & 3]}, {a[0]}, {a[2]}')
        if i & 3: a.free()
        if i in (3, 7):
            k(f's_add_u32 s5, {S_PCUR}, {S_PST}')
            if i == 7: k(f's_add_u32 s5, s5, {16 * 8192}')
            k(f'buffer_store_dwordx4 {q}, {vPS}, {SRD_WS}, s5 offen' + stf()); q.free()
        if i == 9:
            h2 = pool.alloc(1, name='ps2'); k(f'v_lshrrev_b32 {h2}, 1, {vPS}')
            k(f's_add_u32 s5, {S_PCUR}, {S_PST2}')
            k(f'buffer_store_dwordx2 {q[0:2]}, {h2}, {SRD_WS}, s5 offen' + stf()); h2.free(); q.free()
    gmap = {('O', 0, 1): GOa[0], ('O', 1, 1): GOa[1], ('O', 8, 1): GOb[0], ('O', 9, 1): GOb[1]}
    def grab(nx):
        if nx < 10 and nx not in acc:
            try: acc[nx] = pool.alloc(4, name=f'o{nx}')
            except RuntimeError: return False
            zero(k, acc[nx])
        return True
    for i in range(10):
        assert grab(i), (i, sorted(pool.free), {r: pool.names.get(r) for r in sorted(pool.all - set(pool.free))})
        for c2 in range(2):
            op = ('O', i, c2); s = SRC[op]
            Bv = s[1] if s[0] == 'R' else (gmap[op] if s[0] == 'G' else LS[li[op] % NLS_O])
            smf(k, acc[i], AO[c2], Bv)
            if s[0] == 'L' and li[op] + NLS_O < len(lops): lload(li[op] + NLS_O)
        mark(k, 'r%d' % i)
        if i == 0: gload1(k, GOb[1], 7, 0)
        if i == 1: gload1(k, GOb[1], 7, 1)
        if i < 2: GOa[i].free()
        if i >= 2: epi(i - 2)
        for nx in (i + 1, i + 2, i + 3): grab(nx)
    epi(8); epi(9)
    for r in AO + LS + GOb + [bl]: r.free()
    KVP = pool.alloc_at(44, 4, 'KVprev')
    for i in range(4): k(f'v_mov_b32 {KVP[i]}, {KV4[i]}')
    KV4.free()
    bstamp(k, 4)
    hops(k, pool)
    KVP.free()
    bstamp(k, 5)
    k(f's_add_u32 {S_SEG}, {S_SEG}, 1')
    k(f's_add_u32 {S_KX}, {S_KX}, {32 * 16384}'); k(f's_add_u32 {S_KVM}, {S_KVM}, {32 * 4096}'); k(f's_add_u32 {S_VX}, {S_VX}, {32 * 16384}')
    k(f's_mov_b32 s5, {S_PCUR}'); k(f's_mov_b32 {S_PCUR}, {S_POTH}'); k(f's_mov_b32 {S_POTH}, s5')
    k(f's_mov_b32 {S_MPP}, {S_MPOI}')
    k(f's_mov_b32 {S_MPOI}, {S_MNEXT}')
    k(f's_add_u32 {S_MNEXT}, {S_MNEXT}, 16384'); k(f's_sub_u32 s5, {S_MNEXT}, {S_MB}'); k('s_cmp_eq_u32 s5, 49152')
    k(f's_cselect_b32 {S_MNEXT}, {S_MB}, {S_MNEXT}')
    if DBG_STEPS:
        k(f's_cmp_ge_u32 {S_SEG}, {DBG_STEPS}'); k(f's_cbranch_scc1 {LEND}')
    k(f's_branch {LOOP}')

KVM_EARLY = False
S_TOFF = 's97'
S_VX = 's15'
S_TCH = 's16'
def hops(k, pool):
    LPOLL, LNR = k.newlabel('HP_POLL'), k.newlabel('HP_NR')
    G2 = pool.alloc_at(G23, 8, 'G2')
    k.manual(True)
    k(f's_cmp_eq_u32 {S_RED}, 0'); k(f's_cbranch_scc1 {LNR}')
    G2.free()
    hop1(k, pool)
    G2 = pool.alloc_at(G23, 8, 'G2')
    k(f's_branch {LPOLL}')
    k.label(LNR)
    if INTEGRATED:
        LSEEN = k.newlabel('HP_SEEN')
        k(f's_cmp_lg_u32 {S_WAVE}, 3'); k(f's_cbranch_scc1 {LSEEN}')
        k(f's_add_u32 s61, {S_SEG}, 2'); k('s_min_u32 s61, s61, 64')
        k(f's_cmp_ge_u32 {S_KVSEEN}, s61'); k(f's_cbranch_scc1 {LSEEN}')
        vt = pool.alloc(2, name='kvp')
        poll_flag(k, S_FKVD, 's61', vt, 'CH_KV')
        k(f's_mov_b32 {S_KVSEEN}, s6')
        vt.free()
        k.label(LSEEN)
    if PRE_SLEEP: k(f's_sleep {PRE_SLEEP}')
    k.label(LPOLL)
    d = pool.alloc(12, align=2, name='mland'); t = pool.alloc(2, name='h2t')
    k(f's_lshl_b32 s4, {S_WAVE}, 1'); k(f's_cmp_eq_u32 {S_WAVE}, 3'); k('s_cselect_b32 s4, 7, s4'); k('s_lshl_b32 s4, s4, 10')
    k(f's_add_u32 s5, {S_MNEXT}, s4')
    k(f'v_add_u32 {t[1]}, s4, {v16l}')
    k('s_mov_b32 s7, 0')
    L3, L2, LD = k.newlabel('H2_3'), k.newlabel('H2_2'), k.newlabel('H2_D')
    k(f's_cmp_ge_u32 {S_WAVE}, 2'); k(f's_cbranch_scc1 {L3}')
    for n, L in ((2, L2), (3, L3)):
        LX = k.newlabel('H2_X')
        k.label(L)
        for j in range(n): k(f'buffer_load_dwordx4 {d[4*j:4*j+4]}, {v16l}, {SRD_WS}, s5 offen offset:{j * 1024} sc1')
        k('s_add_u32 s7, s7, 1'); k('s_cmp_gt_u32 s7, ' + hex(SPIN)); k(f's_cbranch_scc1 {LX}')
        k('s_waitcnt vmcnt(0)')
        k(f'v_max3_u32 {t[0]}, {d[0]}, {d[1]}, {d[2]}')
        rest = list(range(3, 4 * n))
        while rest:
            if len(rest) >= 2: k(f'v_max3_u32 {t[0]}, {t[0]}, {d[rest[0]]}, {d[rest[1]]}'); rest = rest[2:]
            else: k(f'v_max_u32 {t[0]}, {t[0]}, {d[rest[0]]}'); rest = rest[1:]
        k(f'v_cmp_eq_u32 vcc, -1, {t[0]}')
        k(f's_cbranch_vccnz {L}')
        k.label(LX)
        k('s_waitcnt vmcnt(0)')
        if TIMING and COUNT_POLLS: k('s_add_u32 s87, s87, s7')
        bstamp(k, 7)
        for j in range(n): k(f'ds_write_b128 {t[1]}, {d[4*j:4*j+4]} offset:{MEM + j * 1024}')
        if n == 2: k(f's_branch {LD}')
    k.label(LD)
    gload1(k, G2, 0, 0); gload1(k, G2, 0, 1)
    d.free(); t.free()
    k('s_waitcnt lgkmcnt(0)'); k('s_barrier')
    k.manual(False); k.drained()
    G2.free()

def flag_store(k, pool, s_off, val):
    f = pool.alloc(2, name='flag')
    k(f'v_mov_b32 {f[0]}, {val}'); k(f'v_mov_b32 {f[1]}, 0')
    k('s_mov_b64 exec, 1')
    k(f'buffer_store_dword {f[0]}, {f[1]}, {SRD_WS}, {s_off} offen sc1')
    k('s_mov_b64 exec, -1')
    f.free()

def pub_addr(k, dst, tmp):
    k(f'v_bfe_u32 {dst}, {vLN}, 1, 3'); k(f'v_lshlrev_b32 {dst}, 10, {dst}')
    k(f'v_lshrrev_b32 {tmp}, 4, {vLN}'); k(f'v_lshl_add_u32 {dst}, {tmp}, 6, {dst}')
    k(f'v_and_b32 {tmp}, 1, {vLN}'); k(f'v_lshl_add_u32 {dst}, {tmp}, 5, {dst}')

def hop1(k, pool):
    LFULL, LHALF, LPUB = k.newlabel('H1_F'), k.newlabel('H1_H'), k.newlabel('H1_P')
    dA = pool.alloc_at(8, 16, 'landA'); dB = pool.alloc_at(G23, 16, 'landB')
    class DD:
        def __getitem__(self, x):
            if isinstance(x, slice):
                a, b = x.start, x.stop
                return dA[a:b] if a < 16 else dB[a - 16:b - 16]
            return dA[x] if x < 16 else dB[x - 16]
        def free(self): dA.free(); dB.free()
    d = DD(); sel = pool.alloc(4, name='sel'); acc = pool.alloc(4, name='racc'); t = pool.alloc(3, name='h1t')
    def setup():
        k(f'v_and_b32 {t[0]}, 1, {vLN}'); k(f'v_lshlrev_b32 {t[0]}, 4, {t[0]}'); k(f'v_mov_b32 {t[1]}, 0x3f80'); k(f'v_lshlrev_b32 {t[0]}, {t[0]}, {t[1]}')
        k(f'v_bfe_u32 {t[1]}, {vLN}, 1, 3')
        for dd in range(4):
            k(f'v_cmp_eq_u32 vcc, {dd}, {t[1]}'); k('s_nop 1'); k(f'v_cndmask_b32 {sel[dd]}, 0, {t[0]}, vcc')
        pub_addr(k, t[0], t[1])
    k(f's_add_u32 s5, {S_PCUR}, {S_RLD}'); k('s_add_u32 s6, s5, 4096')
    k('s_mov_b32 s7, 0')
    k(f's_cmp_eq_u32 {S_RED}, 2'); k(f's_cbranch_scc1 {LHALF}')
    def check(L, n):
        LX = k.newlabel('H1_X')
        k('s_nop 7')
        k(f'v_cmp_u_f32 vcc, {acc[0]}, {acc[1]}'); k(f'v_cmp_u_f32 s[40:41], {acc[2]}, {acc[3]}'); k('s_nop 1'); k('s_or_b64 vcc, vcc, s[40:41]')
        k(f's_cbranch_vccz {LPUB}')
        k('s_add_u32 s7, s7, 1'); k('s_cmp_lt_u32 s7, 8'); k(f's_cbranch_scc1 {L}')
        k(f'v_max3_u32 {t[1]}, {d[0]}, {d[1]}, {d[2]}')
        rest = list(range(3, n))
        while rest:
            if len(rest) >= 2: k(f'v_max3_u32 {t[1]}, {t[1]}, {d[rest[0]]}, {d[rest[1]]}'); rest = rest[2:]
            else: k(f'v_max_u32 {t[1]}, {t[1]}, {d[rest[0]]}'); rest = rest[1:]
        k(f'v_cmp_eq_u32 vcc, -1, {t[1]}')
        k(f's_cbranch_vccz {LPUB}')
        k('s_cmp_gt_u32 s7, ' + hex(SPIN)); k(f's_cbranch_scc0 {L}')
        k(f's_branch {LPUB}')
    def loads_full():
        for m in range(8):
            k(f'buffer_load_dwordx4 {d[4*m:4*m+4]}, {v16l}, {SRD_WS}, {"s5" if m < 4 else "s6"} offen offset:{(m % 4) * 1024} sc1')
    setup()
    if RED_SLEEP: k(f's_sleep {RED_SLEEP}')
    k.label(LFULL); loads_full()
    for m in range(8):
        k(f's_waitcnt vmcnt({7 - m})')
        k(f'v_mfma_f32_16x16x32_bf16 {acc}, {d[4*m:4*m+4]}, {sel}, ' + ('0' if m == 0 else str(acc)))
    check(LFULL, 32)
    k.label(LHALF)
    k(f'v_lshrrev_b32 {t[2]}, 1, {v16l}')
    def loads_half():
        for m in range(8):
            k(f'buffer_load_dwordx2 {d[2*m:2*m+2]}, {t[2]}, {SRD_WS}, s5 offen offset:{m * 512} sc1')
    LH2 = k.newlabel('H1_H2')
    setup()
    if RED_SLEEP_H: k(f's_sleep {RED_SLEEP_H}')
    k.label(LH2); loads_half()
    for m in range(8):
        k(f's_waitcnt vmcnt({7 - m})')
        k(f'v_mfma_f32_16x16x16_bf16 {acc}, {d[2*m:2*m+2]}, {sel[0:2]}, ' + ('0' if m == 0 else str(acc)))
    check(LH2, 16)
    k.label(LPUB)
    bstamp(k, 6)
    if TIMING and COUNT_POLLS: k('s_add_u32 s86, s86, s7')
    k(f'v_cvt_pk_bf16_f32 {d[0]}, {acc[0]}, {acc[1]}'); k(f'v_cvt_pk_bf16_f32 {d[1]}, {acc[2]}, {acc[3]}')
    k(f'v_min_u32 {d[0]}, 0xfffffffe, {d[0]}'); k(f'v_min_u32 {d[1]}, 0xfffffffe, {d[1]}')
    k(f's_add_u32 s5, {S_MNEXT}, {S_RPUB}')
    k(f's_cmp_eq_u32 {S_RED}, 2'); k(f's_cselect_b64 exec, {M_N4}, {M_N8}')
    k(f'buffer_store_dwordx2 {d[0:2]}, {t[0]}, {SRD_WS}, s5 offen' + stf())
    k('s_mov_b64 exec, -1')
    for r in (sel, d, acc, t): r.free()
```

```python
from common import *
TIMING = False

def wfrag(f):
    return Reg('a', 4 * f, 4) if f < 64 else Reg('v', 192 + 4 * (f - 64), 4)

def emit_x_dma_setup(k, vL, vXD, t0, t1):
    k(f's_lshl_b32 s4, {S_WAVE}, 3')
    k(f'v_lshrrev_b32 {t0}, 3, {vL}')
    k(f'v_add_u32 {t0}, s4, {t0}')
    k(f'v_bfe_u32 {t1}, {t0}, 1, 3')
    k(f'v_and_b32 {vXD}, 7, {vL}')
    k(f'v_xor_b32 {t1}, {t1}, {vXD}')
    k(f'v_lshlrev_b32 {t1}, 4, {t1}')
    k(f'v_mul_u32_u24 {t0}, 1280, {t0}')
    k(f'v_add_u32 {vXD}, {t0}, {t1}')

def emit_x_frag_addr(k, vL, vXA, t0, t1, t2, perm):
    k(f'v_and_b32 {t0}, 31, {vL}')
    if perm:
        k(f'v_and_b32 {t1}, 3, {t0}')
        k(f'v_bfe_u32 {t2}, {t0}, 2, 2')
        k(f'v_lshl_or_b32 {t1}, {t2}, 3, {t1}')
        k(f'v_bfe_u32 {t2}, {t0}, 4, 1')
        k(f'v_lshl_or_b32 {t0}, {t2}, 2, {t1}')
    k(f'v_lshrrev_b32 {t1}, 3, {t0}')
    k(f'v_mul_u32_u24 {t1}, 10240, {t1}')
    k(f'v_and_b32 {t2}, 7, {t0}')
    k(f'v_lshl_add_u32 {t1}, {t2}, 7, {t1}')
    k(f'v_bfe_u32 {t2}, {t0}, 1, 3')
    k(f'v_lshrrev_b32 {t0}, 5, {vL}')
    k(f'v_xor_b32 {t2}, {t2}, {t0}')
    for u in range(4):
        k(f'v_xor_b32 {t0}, {2*u}, {t2}')
        k(f'v_lshl_add_u32 {vXA[u]}, {t0}, 4, {t1}')

def x_dma(k, vXD, srd_x, s_soff, s_m0base, nlines=10, tag='xdma', interleave=None):
    out = []
    for l in range(nlines):
        out.append([f's_add_u32 m0, {s_m0base}, {l*1024}',
                    f's_add_u32 s5, {s_soff}, {l*128}',
                    (f'buffer_load_dwordx4 {vXD}, {srd_x}, s5 offen lds', tag)])
    return out

def emit_group(k, grp):
    for x in grp:
        if isinstance(x, tuple): k(x[0], x[1])
        else: k(x)

def emit_w32_loader(k, vL, nmat_units, srd_w, s_colbase, kperm, frag_of, lds_unit_off, nsteps=10, tmp=None, wave_rows=None):
    pass

def role_kv(k, integrated=False):
    vL, vXD, vST, vW = 'v2', 'v3', 'v8', 'v9'
    vXA = ['v4', 'v5', 'v6', 'v7']
    vT = ['v10', 'v11']
    t0, t1, t2 = 'v12', 'v13', 'v14'
    SRD_X, SRD_W = 's[12:15]', 's[16:19]'
    inst_kernarg(k)
    if integrated:
        k(f's_lshl_b32 s4, {S_INST}, 5'); k(f's_add_u32 s4, s4, {S_IDX}'); k('s_lshl_b32 s4, s4, 7'); k(f's_add_u32 s4, s4, {F_KVD}')
        zero_flag(k, 's4', ['v12', 'v13']); init_arrive(k, ['v12', 'v13'])
    load_srd(k, 12, S_KA, 0, X_BYTES)
    k(f's_lshr_b32 s6, {S_WAVE}, 1')
    k(f's_lshl_b32 s6, s6, 3')
    k(f's_add_u32 s6, s30, s6')
    k(f's_addc_u32 s7, s31, 0')
    k(f's_load_dwordx2 s[4:5], s[6:7], 24')
    k('s_waitcnt lgkmcnt(0)')
    srd(k, 16, 4, 5, W_BYTES)
    k(f'v_lshrrev_b32 {t0}, 4, {vL}')
    k(f'v_lshlrev_b32 {t1}, 2, {t0}')
    k(f'v_and_b32 {t2}, 15, {vL}')
    k(f'v_xor_b32 {t1}, {t1}, {t2}')
    k(f'v_lshlrev_b32 {t1}, 4, {t1}')
    k(f'v_lshl_add_u32 {vW}, {t0}, 13, {t1}')
    k(f's_and_b32 s42, {S_WAVE}, 1')
    k(f's_lshl_b32 s40, {S_IDX}, 8')
    k(f's_lshl_b32 s43, s42, 18')
    k(f's_add_u32 s40, s40, s43')
    k(f's_lshr_b32 s41, {S_WAVE}, 1')
    k(f's_lshl_b32 s41, s41, 14')
    k(f's_lshl_b32 s43, s42, 13')
    k(f's_add_u32 s41, s41, s43')
    def wdma(c):
        for m in range(8):
            k(f's_add_u32 m0, s41, {(c % 4) * 32768 + m * 1024}')
            k(f's_add_u32 s5, s40, {(64 * c + 4 * m) * 8192}')
            k(f'buffer_load_dwordx4 {vW}, {SRD_W}, s5 offen' + WFL['kv'] + ' lds', tag=f'w{c}')
    for c in range(4): wdma(c)
    emit_x_dma_setup(k, vL, vXD, t0, t1)
    k(f'v_bfe_u32 {t0}, {vL}, 4, 1')
    k(f'v_lshlrev_b32 {t0}, 10, {t0}')
    k(f'v_lshrrev_b32 {t1}, 5, {vL}')
    k(f'v_lshl_add_u32 {t0}, {t1}, 9, {t0}')
    k(f'v_and_b32 {t1}, 15, {vL}')
    k(f'v_lshl_add_u32 {vST}, {t1}, 4, {t0}')
    LK, LV, LDONE = k.newlabel('KV_K'), k.newlabel('KV_V'), k.newlabel('KV_DONE')
    k(f's_cmp_ge_u32 {S_WAVE}, 2')
    k(f's_cbranch_scc1 {LV}')
    for isV in (False, True):
        if isV:
            k.label(LV)
            k.drained()
        path(k, isV, vL, vXD, vST, vW, vXA, vT, t0, t1, t2, SRD_X, SRD_W, wdma, LDONE)
    k.label(LDONE)

def path(k, isV, vL, vXD, vST, vW, vXA, vT, t0, t1, t2, SRD_X, SRD_W, wdma, LDONE):
    k(f'v_bfe_u32 {t0}, {vL}, 4, 1')
    k(f'v_and_b32 {t1}, 1, {vL}')
    k(f'v_bfe_u32 {t2}, {vL}, 1, 1')
    if isV:
        k(f'v_lshl_or_b32 {t0}, {t0}, 1, {t2}')
        k(f'v_lshlrev_b32 {t1}, 3, {t1}')
    else:
        k(f'v_lshl_or_b32 {t0}, {t1}, 1, {t0}')
        k(f'v_lshlrev_b32 {t1}, 3, {t2}')
    k(f's_and_b32 s42, {S_WAVE}, 1')
    k(f's_lshl_b32 s42, s42, 3')
    k(f'v_or_b32 {t0}, s42, {t0}')
    k(f'v_bfe_u32 {t2}, {vL}, 2, 2')
    k(f'v_lshlrev_b32 {vT[1]}, 2, {t2}')
    k(f'v_xor_b32 {t0}, {t0}, {vT[1]}')
    k(f'v_lshl_add_u32 {t1}, {t0}, 4, {t1}')
    k(f'v_lshl_add_u32 {t1}, {t2}, 8, {t1}')
    k(f'v_lshrrev_b32 {t2}, 5, {vL}')
    k(f'v_lshl_add_u32 {t1}, {t2}, 11, {t1}')
    k(f's_lshr_b32 s42, {S_WAVE}, 1')
    k(f's_lshl_b32 s42, s42, 14')
    k(f'v_add_u32 {vT[0]}, s42, {t1}')
    k(f'v_xor_b32 {vT[1]}, 64, {vT[0]}')
    k.manual(True)
    for c in range(10):
        outstanding_after = min(3, 9 - c) * 8 if c < 9 else 0
        n_after = (3 if c == 0 else min(c + 2, 9) - c) * 8
        k(f's_waitcnt vmcnt({n_after}) lgkmcnt(0)')
        k('s_barrier')
        if c >= 1 and c + 3 <= 9: wdma(c + 3)
        base = (c % 4) * 32768
        if c > 0:
            d = base - ((c - 1) % 4) * 32768
            for tl in range(2):
                k(f'v_add_u32 {vT[tl]}, {d}, {vT[tl]}' if d > 0 else f'v_subrev_u32 {vT[tl]}, {-d}, {vT[tl]}')
        for tt in range(4):
            for tl in range(2):
                fr = wfrag(tl * 40 + 4 * c + tt)
                k(f'ds_read_b64_tr_b16 {fr[0:2]}, {vT[tl]} offset:{tt*4096}')
                k(f'ds_read_b64_tr_b16 {fr[2:4]}, {vT[tl]} offset:{tt*4096+1024}')
    k('s_waitcnt vmcnt(0) lgkmcnt(0)')
    k('s_barrier')
    k.manual(False)
    k.drained()
    emit_x_frag_addr(k, vL, vXA, t0, t1, t2, isV)
    k(f's_mul_i32 s45, {S_WAVE}, 10240')
    k('s_mov_b32 s44, 0')
    for g in x_dma(k, vXD, SRD_X, 's44', 's45', tag='xa'): emit_group(k, g)
    k('s_add_u32 s44, s44, 40960'); k('s_add_u32 s45, s45, 40960')
    for g in x_dma(k, vXD, SRD_X, 's44', 's45', tag='xb'): emit_group(k, g)
    k('s_add_u32 s44, s44, 40960'); k('s_add_u32 s45, s45, 40960')
    k('s_mov_b32 s46, 0')
    k('s_mov_b32 s48, 2')
    k('s_mov_b32 s49, 0')
    k('s_mov_b32 s52, -81920')
    k('s_mov_b32 s53, 40960')
    k(f's_lshl_b32 s47, {S_INST}, 11')
    k(f's_add_u32 s47, s47, {S_IDX}')
    k(f's_lshl_b32 s47, s47, 14')
    k(f's_and_b32 s42, {S_WAVE}, 1')
    k(f's_lshl_b32 s42, s42, 12')
    k(f's_add_u32 s47, s47, s42')
    if isV: k('s_add_u32 s47, s47, 8192')
    if KVX: k(f's_add_u32 s47, s47, {KVX}')
    k(f's_lshl_b32 s50, {S_INST}, 5')
    k(f's_add_u32 s50, s50, {S_IDX}')
    k(f's_lshl_b32 s50, s50, 7')
    k(f's_add_u32 s50, s50, {F_KVD}')
    k('s_waitcnt vmcnt(10)')
    k('s_barrier')
    if TIMING:
        k('s_memtime s[60:61]'); k('s_memrealtime s[62:63]'); k('s_waitcnt lgkmcnt(0)')
    LOOP = k.newlabel('KV_LOOP')
    acc = [Reg('v', 128, 16), Reg('v', 144, 16)]
    xf = [Reg('v', 160 + 4 * i, 4) for i in range(4)]
    cv = Reg('v', 176, 16)
    k.manual(True)
    k.label(LOOP)
    dma = x_dma(k, vXD, SRD_X, 's44', 's45', tag='x')
    def rd(t):
        k(f'ds_read_b128 {xf[t % 4]}, {vXA[t % 4]} offset:{(t >> 2) * 1024}')
    for t in range(3): rd(t)
    for t in range(40):
        if t + 3 < 40: rd(t + 3)
        k(f's_waitcnt lgkmcnt({min(3, 39 - t)})')
        for tl in range(2):
            w = wfrag(tl * 40 + t)
            c = '0' if t == 0 else str(acc[tl])
            if isV: k(f'v_mfma_f32_32x32x16_bf16 {acc[tl]}, {xf[t % 4]}, {w}, {c}')
            else:   k(f'v_mfma_f32_32x32x16_bf16 {acc[tl]}, {w}, {xf[t % 4]}, {c}')
        if 2 <= t < 32 and (t - 2) % 3 == 0:
            emit_group(k, dma[(t - 2) // 3])
    k('s_add_u32 s49, s49, 1')
    k('s_cmp_eq_u32 s49, 3')
    k('s_cselect_b32 s51, s52, s53')
    k('s_cselect_b32 s49, 0, s49')
    for u in range(4): k(f'v_add_u32 {vXA[u]}, s51, {vXA[u]}')
    for tl in range(2):
        for d in range(8):
            k(f'v_cvt_pk_bf16_f32 {cv[8 * tl + d]}, {acc[tl][2 * d]}, {acc[tl][2 * d + 1]}')
    for tl in range(2):
        k(f'buffer_store_dwordx4 {cv[8*tl:8*tl+4]}, {vST}, {SRD_WS}, s47 offen offset:{tl*2048} sc1')
        k(f'buffer_store_dwordx4 {cv[8*tl+4:8*tl+8]}, {vST}, {SRD_WS}, s47 offen offset:{tl*2048+256} sc1')
    LW0, LW1 = k.newlabel('KV_W0'), k.newlabel('KV_W1')
    k('s_cmp_eq_u32 s46, 0'); k(f's_cbranch_scc1 {LW0}')
    k('s_waitcnt vmcnt(14)'); k('s_mov_b32 s54, s46'); k(f's_branch {LW1}')
    k.label(LW0)
    k('s_waitcnt vmcnt(0)'); k('s_mov_b32 s54, 1')
    k.label(LW1)
    k('s_barrier')
    LNF = k.newlabel('KV_NF')
    k(f's_cmp_lg_u32 {S_WAVE}, 0')
    k(f's_cbranch_scc1 {LNF}')
    k('v_mov_b32 v15, s54')
    k('v_mov_b32 v16, 0')
    k('s_mov_b64 exec, 1')
    k(f'buffer_store_dword v15, v16, {SRD_WS}, s50 offen sc1')
    k('s_mov_b64 exec, -1')
    k.label(LNF)
    k('s_add_u32 s44, s44, 40960')
    k('s_add_u32 s45, s45, 40960')
    k('s_add_u32 s48, s48, 1')
    k('s_cmp_eq_u32 s48, 3')
    k('s_cselect_b32 s48, 0, s48')
    k('s_cselect_b32 s51, 122880, 0')
    k('s_sub_u32 s45, s45, s51')
    k('s_add_u32 s47, s47, 524288')
    k('s_add_u32 s46, s46, 1')
    k('s_cmp_lt_u32 s46, 64')
    k(f's_cbranch_scc1 {LOOP}')
    if TIMING:
        k('s_memtime s[64:65]'); k('s_memrealtime s[66:67]'); k('s_waitcnt lgkmcnt(0)')
        k('s_sub_u32 s64, s64, s60'); k('s_sub_u32 s66, s66, s62')
        k('s_load_dwordx2 s[68:69], s[0:1], 120'); k('s_waitcnt lgkmcnt(0)')
        k(f's_lshl_b32 s70, {S_INST}, 5'); k(f's_add_u32 s70, s70, {S_IDX}'); k('s_lshl_b32 s70, s70, 4'); k('s_add_u32 s70, s70, 40960')
        k('v_mov_b32 v15, s70'); k('v_mov_b32 v20, s64'); k('v_mov_b32 v21, s66'); k('v_mov_b32 v22, s62'); k('v_mov_b32 v23, s100')
        k('global_store_dwordx4 v15, v[20:23], s[68:69]')
    k('s_waitcnt vmcnt(0)')
    k('s_barrier')
    LNF2 = k.newlabel('KV_NF2')
    k(f's_cmp_lg_u32 {S_WAVE}, 0')
    k(f's_cbranch_scc1 {LDONE}')
    k('v_mov_b32 v15, 64')
    k('v_mov_b32 v16, 0')
    k('s_mov_b64 exec, 1')
    k(f'buffer_store_dword v15, v16, {SRD_WS}, s50 offen sc1')
    k('s_mov_b64 exec, -1')
    k('s_waitcnt vmcnt(0)')
    k(f's_branch {LDONE}')
    k.manual(False)
```

```python
from common import *
from role_kv import emit_x_dma_setup, emit_x_frag_addr, x_dma, emit_group
import math, struct
TIMING = False
SPIN = 0x40000
def f32bits(x): return struct.unpack('<I', struct.pack('<f', x))[0]

XB = 0
QF = 81920
KVXB = 98304
KVMB = 131072
WRING = 0

def poll_flag(k, s_off, s_need, vt, label_base, sleep=1):
    L, LX = k.newlabel(label_base), k.newlabel(label_base + 'X')
    k(f'v_mov_b32 {vt[1]}, 0')
    k('s_mov_b32 s7, 0')
    k.label(L)
    k(f'buffer_load_dword {vt[0]}, {vt[1]}, {SRD_WS}, {s_off} offen sc1')
    k('s_add_u32 s7, s7, 1'); k(f's_cmp_gt_u32 s7, {hex(SPIN)}'); k(f's_cbranch_scc1 {LX}')
    k('s_waitcnt vmcnt(0)')
    k(f'v_readfirstlane_b32 s6, {vt[0]}')
    k(f's_cmp_ge_u32 s6, {s_need}')
    k(f's_cbranch_scc1 {LX}')
    if sleep: k(f's_sleep {sleep}')
    k(f's_branch {L}')
    k.label(LX)
    k('s_waitcnt vmcnt(0)')

def role_qatt(k, use_flags=True, integrated=False):
    vL, vXD, vST, vW, v16 = 'v2', 'v3', 'v8', 'v9', 'v1'
    vXA = ['v4', 'v5', 'v6', 'v7']
    vT = 'v10'
    t0, t1, t2 = 'v12', 'v13', 'v14'
    vKM = 'v11'
    SRD_X, SRD_W = 's[12:15]', 's[16:19]'
    wf = lambda t: Reg('a', 4 * t, 4)
    inst_kernarg(k)
    if integrated:
        k(f's_lshl_b32 s4, {S_INST}, 5'); k(f's_add_u32 s4, s4, {S_IDX}'); k('s_lshl_b32 s4, s4, 7'); k(f's_add_u32 s4, s4, {F_OD}')
        zero_flag(k, 's4', ['v12', 'v13']); init_arrive(k, ['v12', 'v13'])
        init_wait(k, ['v12', 'v13'])
        k(f's_lshl_b32 s4, {S_INST}, 5'); k(f's_add_u32 s4, s4, {S_IDX}'); k('s_lshl_b32 s4, s4, 7'); k(f's_add_u32 s59, s4, {F_KVD}')
        k('s_mov_b32 s55, 1'); poll_flag(k, 's59', 's55', ['v12', 'v13'], 'QA_PS', sleep=8)
    load_srd(k, 12, S_KA, 0, X_BYTES)
    load_srd(k, 16, S_KA, 16, W_BYTES)
    k(f'v_lshlrev_b32 {v16}, 4, {vL}')
    k(f'v_lshrrev_b32 {t0}, 4, {vL}'); k(f'v_lshlrev_b32 {t1}, 2, {t0}'); k(f'v_and_b32 {t2}, 15, {vL}')
    k(f'v_xor_b32 {t1}, {t1}, {t2}'); k(f'v_lshlrev_b32 {t1}, 4, {t1}'); k(f'v_lshl_add_u32 {vW}, {t0}, 13, {t1}')
    k(f's_lshl_b32 s40, {S_IDX}, 8'); k(f's_lshl_b32 s43, {S_WAVE}, 17'); k('s_add_u32 s40, s40, s43')
    k(f's_lshl_b32 s41, {S_WAVE}, 12')
    NS = 8
    def wdma(c):
        for m in range(4):
            k(f's_add_u32 m0, s41, {(c % NS) * 16384 + m * 1024}')
            k(f's_add_u32 s5, s40, {(64 * c + 4 * m) * 8192}')
            k(f'buffer_load_dwordx4 {vW}, {SRD_W}, s5 offen' + WFL['qatt'] + ' lds')
    for c in range(NS - 1): wdma(c)
    k(f'v_bfe_u32 {t0}, {vL}, 4, 1'); k(f'v_and_b32 {t1}, 1, {vL}'); k(f'v_bfe_u32 {t2}, {vL}, 1, 1')
    k(f'v_lshl_or_b32 {t0}, {t1}, 1, {t0}'); k(f'v_lshlrev_b32 {t1}, 3, {t2}')
    k(f's_lshl_b32 s42, {S_WAVE}, 2'); k(f'v_or_b32 {t0}, s42, {t0}')
    k(f'v_bfe_u32 {t2}, {vL}, 2, 2'); k(f'v_lshlrev_b32 {vT}, 2, {t2}'); k(f'v_xor_b32 {t0}, {t0}, {vT}')
    k(f'v_lshl_add_u32 {t1}, {t0}, 4, {t1}'); k(f'v_lshl_add_u32 {t1}, {t2}, 8, {t1}')
    k(f'v_lshrrev_b32 {t2}, 5, {vL}'); k(f'v_lshl_add_u32 {vT}, {t2}, 11, {t1}')
    k.manual(True)
    va = 'v15'
    for c in range(10):
        done_issue = min(9, NS - 2 if c == 0 else NS - 2 + c - 1)
        k(f's_waitcnt vmcnt({(done_issue - c) * 4}) lgkmcnt(0)')
        k('s_barrier')
        if c >= 1 and c + NS - 2 <= 9: wdma(c + NS - 2)
        k(f'v_add_u32 {va}, {(c % NS) * 16384}, {vT}')
        for tt in range(4):
            fr = wf(4 * c + tt)
            k(f'ds_read_b64_tr_b16 {fr[0:2]}, {va} offset:{tt*4096}')
            k(f'ds_read_b64_tr_b16 {fr[2:4]}, {va} offset:{tt*4096+1024}')
    k('s_waitcnt vmcnt(0) lgkmcnt(0)'); k('s_barrier')
    emit_x_dma_setup(k, vL, vXD, t0, t1)
    emit_x_frag_addr(k, vL, vXA, t0, t1, t2, False)
    k(f'v_bfe_u32 {t0}, {vL}, 4, 1'); k(f'v_lshlrev_b32 {t0}, 10, {t0}'); k(f'v_lshrrev_b32 {t1}, 5, {vL}')
    k(f'v_lshl_add_u32 {t0}, {t1}, 9, {t0}'); k(f'v_and_b32 {t1}, 15, {vL}'); k(f'v_lshl_add_u32 {t0}, {t1}, 4, {t0}')
    k(f's_lshl_b32 s4, {S_WAVE}, 11'); k(f's_add_u32 s4, s4, {QF}'); k(f'v_add_u32 {vST}, s4, {t0}')
    k(f'v_and_b32 {t0}, 3, {vL}'); k(f'v_lshlrev_b32 {t0}, 4, {t0}'); k(f'v_bfe_u32 {t1}, {vL}, 4, 1'); k(f'v_lshl_add_u32 {t0}, {t1}, 3, {t0}')
    k(f'v_bfe_u32 {t1}, {vL}, 2, 2'); k(f'v_add_u32 {t0}, {t0}, {t1}'); k(f'v_lshlrev_b32 {t0}, 4, {t0}')
    k(f'v_lshrrev_b32 {t1}, 5, {vL}'); k(f'v_lshl_add_u32 {vKM}, {t1}, 3, {t0}')
    k(f'v_and_b32 {t0}, 15, {vL}'); k(f'v_lshrrev_b32 {t1}, 4, {vL}'); k(f'v_lshlrev_b32 {t1}, 2, {t1}')
    for r in range(4):
        k(f'v_add_u32 {t2}, {r}, {t1}'); k(f'v_cmp_le_u32 s[{64+2*r}:{65+2*r}], {t2}, {t0}')
    k(f's_and_b32 s4, {S_WAVE}, 1'); k('s_cmp_eq_u32 s4, 1')
    for r in range(4):
        k(f's_cselect_b64 s[{72+2*r}:{73+2*r}], s[{64+2*r}:{65+2*r}], 0')
    for r in range(4):
        k(f's_cselect_b64 s[{64+2*r}:{65+2*r}], -1, s[{64+2*r}:{65+2*r}]')
    k(f's_mov_b32 s50, {hex(f32bits(128 ** -0.5 * math.log2(math.e)))}')
    k(f's_lshl_b32 s4, {S_INST}, 11'); k(f's_add_u32 s4, s4, {S_IDX}')
    k(f's_lshl_b32 s33, s4, 14'); k(f's_lshl_b32 s5, {S_WAVE}, 12'); k('s_add_u32 s33, s33, s5')
    if KVX: k(f's_add_u32 s33, s33, {KVX}')
    k(f's_lshl_b32 s34, s4, 12'); k(f's_lshl_b32 s5, {S_WAVE}, 10'); k('s_add_u32 s34, s34, s5'); k(f's_add_u32 s34, s34, {KVM}')
    k(f's_lshl_b32 s35, s4, 13'); k(f's_and_b32 s5, {S_WAVE}, 1'); k('s_lshl_b32 s5, s5, 12'); k('s_add_u32 s35, s35, s5')
    k(f's_lshr_b32 s5, {S_WAVE}, 1'); k('s_lshl_b32 s5, s5, 11'); k('s_add_u32 s35, s35, s5'); k(f's_add_u32 s35, s35, {OF}')
    k(f's_lshl_b32 s4, {S_INST}, 5'); k(f's_add_u32 s4, s4, {S_IDX}'); k('s_lshl_b32 s4, s4, 7')
    k(f's_add_u32 s58, s4, {F_KVM}'); k(f's_add_u32 s59, s4, {F_KVD}'); k(f's_add_u32 s57, s4, {F_OD}')
    k(f's_mul_i32 s45, {S_WAVE}, 10240')
    k('s_mov_b32 s44, 0')
    k('s_mov_b32 s32, 0'); k('s_mov_b32 s60, 0')
    vt = ['v16', 'v17']
    for g in x_dma(k, vXD, SRD_X, 's44', 's45'): emit_group(k, g)
    k('s_add_u32 s44, s44, 40960'); k('s_add_u32 s45, s45, 40960')
    for g in x_dma(k, vXD, SRD_X, 's44', 's45'): emit_group(k, g)
    k('s_add_u32 s44, s44, 40960'); k('s_sub_u32 s45, s45, 40960')
    if use_flags:
        k('s_mov_b32 s55, 1'); poll_flag(k, 's59', 's55', vt, 'QA_P0')
    def kvx_dma(s_src, s_dst):
        for m in range(4):
            k(f's_add_u32 m0, {s_dst}, {m * 1024}'); k(f's_add_u32 s5, {s_src}, {m * 1024}')
            k(f'buffer_load_dwordx4 {v16}, {SRD_WS}, s5 offen sc1 lds')
    k(f's_lshl_b32 s36, {S_WAVE}, 12'); k(f's_add_u32 s36, s36, {KVXB}')
    kvx_dma('s33', 's36')
    k('s_waitcnt vmcnt(0)'); k('s_barrier')
    acc = Reg('v', 128, 16); xf = [Reg('v', 144 + 4 * i, 4) for i in range(4)]; cv = Reg('v', 160, 8)
    def qproj(interleave=()):
        il = list(interleave)
        def rd(t): k(f'ds_read_b128 {xf[t % 4]}, {vXA[t % 4]} offset:{(t >> 2) * 1024}')
        for t in range(3): rd(t)
        for t in range(40):
            if t + 3 < 40: rd(t + 3)
            k(f's_waitcnt lgkmcnt({min(3, 39 - t)})')
            k(f'v_mfma_f32_32x32x16_bf16 {acc}, {wf(t)}, {xf[t % 4]}, ' + ('0' if t == 0 else str(acc)))
            if il and t >= 1 and t % 2 == 1: emit_group(k, il.pop(0))
        for g in il: emit_group(k, g)
        k('s_nop 7'); k('s_nop 3')
        for d in range(8): k(f'v_cvt_pk_bf16_f32 {cv[d]}, {acc[2*d]}, {acc[2*d+1]}')
        k(f'ds_write_b128 {vST}, {cv[0:4]}'); k(f'ds_write_b128 {vST}, {cv[4:8]} offset:256')
    qproj()
    for u in range(4): k(f'v_add_u32 {vXA[u]}, 40960, {vXA[u]}')
    k(f'v_add_u32 {vST}, 8192, {vST}')
    k('s_mov_b32 s37, 0')
    k('s_waitcnt lgkmcnt(0)'); k('s_barrier')
    if TIMING:
        k('s_memtime s[84:85]'); k('s_memrealtime s[86:87]'); k('s_waitcnt lgkmcnt(0)')
    LOOP, LEND = k.newlabel('QA_LOOP'), k.newlabel('QA_END')
    k.label(LOOP)
    if use_flags:
        k('s_add_u32 s55, s32, 1'); poll_flag(k, 's58', 's55', vt, 'QA_P1')
    k('s_lshl_b32 s4, s37, 12'); k(f's_lshl_b32 s5, {S_WAVE}, 10'); k('s_add_u32 s4, s4, s5'); k(f's_add_u32 m0, s4, {KVMB}')
    k('s_nop 0')
    k(f'buffer_load_dwordx4 {v16}, {SRD_WS}, s34 offen sc1 lds')
    LNK = k.newlabel('QA_NK')
    k('s_cmp_ge_u32 s32, 63'); k(f's_cbranch_scc1 {LNK}')
    if use_flags:
        LSEEN = k.newlabel('QA_SEEN')
        k('s_add_u32 s55, s32, 2'); k('s_cmp_ge_u32 s60, s55'); k(f's_cbranch_scc1 {LSEEN}')
        poll_flag(k, 's59', 's55', vt, 'QA_P2'); k('s_mov_b32 s60, s6')
        k.label(LSEEN)
    k(f's_add_u32 s38, s33, {32 * 16384}')
    k('s_xor_b32 s4, s37, 1'); k('s_lshl_b32 s4, s4, 14'); k(f's_lshl_b32 s5, {S_WAVE}, 12'); k('s_add_u32 s4, s4, s5'); k(f's_add_u32 s39, s4, {KVXB}')
    kvx_dma('s38', 's39')
    k.label(LNK)
    k('s_mul_i32 s4, s37, 40960'); k(f's_mul_i32 s5, {S_WAVE}, 10240'); k('s_add_u32 s45, s4, s5')
    dma = x_dma(k, vXD, SRD_X, 's44', 's45')
    qproj(dma)
    k('s_cmp_eq_u32 s37, 0'); k('s_cselect_b32 s5, -1, 1')
    k('s_mul_i32 s4, s5, 40960')
    for u in range(4): k(f'v_add_u32 {vXA[u]}, s4, {vXA[u]}')
    k('s_lshl_b32 s4, s5, 13'); k(f'v_add_u32 {vST}, s4, {vST}')
    LW1, LW2 = k.newlabel('QA_W1'), k.newlabel('QA_W2')
    k('s_cmp_ge_u32 s32, 63'); k(f's_cbranch_scc1 {LW1}')
    k('s_waitcnt vmcnt(14) lgkmcnt(0)'); k(f's_branch {LW2}')
    k.label(LW1); k('s_waitcnt vmcnt(10) lgkmcnt(0)')
    k.label(LW2)
    k('s_barrier')
    LNF0 = k.newlabel('QA_NF0')
    k(f's_cmp_lg_u32 {S_WAVE}, 0'); k(f's_cbranch_scc1 {LNF0}')
    k('v_mov_b32 v16, s32'); k('v_mov_b32 v17, 0'); k('s_mov_b64 exec, 1')
    k(f'buffer_store_dword v16, v17, {SRD_WS}, s57 offen sc1'); k('s_mov_b64 exec, -1')
    k.label(LNF0)
    k.manual(False); k.drained()
    pool = Pool('qatt', 'v', range(20, 128))
    ad = pool.alloc(4, name='ad')
    k(f's_and_b32 s4, {S_WAVE}, 1'); k('s_lshl_b32 s4, s4, 10'); k('s_lshl_b32 s5, s37, 13'); k('s_add_u32 s4, s4, s5'); k(f's_add_u32 s4, s4, {QF}')
    k(f'v_add_u32 {ad[0]}, s4, {v16}')
    k('s_lshl_b32 s5, s37, 14'); k(f's_add_u32 s5, s5, {KVXB}'); k(f'v_add_u32 {ad[1]}, s5, {v16}')
    k('s_lshl_b32 s5, s37, 12'); k(f's_add_u32 s5, s5, {KVMB}'); k(f'v_add_u32 {ad[2]}, s5, {vKM}')
    k(f'v_add_u32 {ad[3]}, s5, {v16}')
    QB = [pool.alloc(4, name=f'Q{u}') for u in range(4)]
    KA = [[pool.alloc(4, name=f'K{t}{u}') for u in range(4)] for t in range(2)]
    KM = [pool.alloc(4, name=f'M{u}') for u in range(4)]
    T = [pool.alloc(4, name='T0'), pool.alloc(4, name='T1')]; TM = pool.alloc(4, name='TM')
    for u in range(4):
        k(f'ds_read_b128 {QB[u]}, {ad[0]} offset:{u * 2048}')
        k(f'ds_read_b128 {KA[0][u]}, {ad[1]} offset:{u * 2048}')
        k(f'ds_read_b128 {KA[1][u]}, {ad[1]} offset:{u * 2048 + 1024}')
        k(f'ds_read_b64_tr_b16 {KM[u][0:2]}, {ad[2]} offset:{u * 1024}')
        k(f'ds_read_b64_tr_b16 {KM[u][2:4]}, {ad[2]} offset:{u * 1024 + 64}')
    for u in range(4):
        c = lambda r: '0' if u == 0 else str(r)
        k(f'v_mfma_f32_16x16x32_bf16 {T[0]}, {KA[0][u]}, {QB[u]}, {c(T[0])}')
        k(f'v_mfma_f32_16x16x32_bf16 {T[1]}, {KA[1][u]}, {QB[u]}, {c(T[1])}')
        k(f'v_mfma_f32_16x16x32_bf16 {TM}, {KM[u]}, {QB[u]}, {c(TM)}')
    for r_ in QB + KA[0] + KA[1] + KM: r_.free()
    wc0 = pool.alloc(1, name='wc')
    k(f's_lshr_b32 s4, {S_WAVE}, 1'); k('s_lshl_b32 s5, s4, 12'); k(f'v_add_u32 {wc0}, s5, {ad[1]}')
    VA = [[pool.alloc(4, name=f'V{a}{t}') for t in range(2)] for a in range(2)]
    for a in range(2):
        for t in range(2): k(f'ds_read_b128 {VA[a][t]}, {wc0} offset:{8192 + a * 2048 + t * 1024}')
    k('s_lshl_b32 s5, s4, 11'); k(f'v_add_u32 {wc0}, s5, {ad[3]}')
    MA = [pool.alloc(4, name=f'MA{a}') for a in range(2)]
    for a in range(2): k(f'ds_read_b128 {MA[a]}, {wc0} offset:{a * 1024}')
    wc0.free()
    ninf, mx, t1_ = pool.alloc(1), pool.alloc(1), pool.alloc(1)
    k(f'v_mov_b32 {ninf}, 0xff800000')
    for t in range(2):
        for r in range(4):
            m = 64 + 8 * t + 2 * r
            k(f'v_cndmask_b32 {T[t][r]}, {ninf}, {T[t][r]}, s[{m}:{m+1}]')
    k(f'v_max3_f32 {mx}, {T[0][0]}, {T[0][1]}, {T[0][2]}'); k(f'v_max3_f32 {mx}, {mx}, {T[0][3]}, {T[1][0]}')
    k(f'v_max3_f32 {mx}, {mx}, {T[1][1]}, {T[1][2]}'); k(f'v_max3_f32 {mx}, {mx}, {T[1][3]}, {TM[0]}'); k(f'v_max_f32 {mx}, {mx}, {TM[1]}')
    k(f'v_mov_b32 {t1_}, {mx}'); k(f'v_permlane16_swap_b32 {mx}, {t1_}'); k(f'v_max_f32 {mx}, {mx}, {t1_}')
    k(f'v_mov_b32 {t1_}, {mx}'); k(f'v_permlane32_swap_b32 {mx}, {t1_}'); k(f'v_max_f32 {mx}, {mx}, {t1_}')
    k(f'v_mul_f32 {mx}, s50, {mx}')
    vals = [T[0][r] for r in range(4)] + [T[1][r] for r in range(4)] + [TM[0], TM[1]]
    for v in vals: k(f'v_fma_f32 {v}, {v}, s50, -{mx}')
    for v in vals: k(f'v_exp_f32 {v}, {v}')
    P = pool.alloc(4, name='P'); BM = pool.alloc(2, name='BM')
    for t in range(2):
        k(f'v_cvt_pk_bf16_f32 {P[2*t]}, {T[t][0]}, {T[t][1]}'); k(f'v_cvt_pk_bf16_f32 {P[2*t+1]}, {T[t][2]}, {T[t][3]}')
    k(f'v_mov_b32 {BM[0]}, 0'); k(f'v_cvt_pk_bf16_f32 {BM[1]}, {TM[0]}, {TM[1]}')
    O = [[pool.alloc(4, name=f'O{a}{t}') for t in range(2)] for a in range(2)]
    for a in range(2):
        for t in range(2): k(f'v_mfma_f32_16x16x32_bf16 {O[a][t]}, {VA[a][t]}, {P}, 0')
    for a in range(2):
        for t in range(2): k(f'v_mfma_f32_16x16x16_bf16 {O[a][t]}, {MA[a][2*t:2*t+2]}, {BM}, {O[a][t]}')
    ls = T[0][0]
    k(f'v_add_f32 {T[0][0]}, {T[0][0]}, {T[0][1]}'); k(f'v_add_f32 {T[0][2]}, {T[0][2]}, {T[0][3]}')
    k(f'v_add_f32 {T[1][0]}, {T[1][0]}, {T[1][1]}'); k(f'v_add_f32 {T[1][2]}, {T[1][2]}, {T[1][3]}'); k(f'v_add_f32 {TM[0]}, {TM[0]}, {TM[1]}')
    k(f'v_add_f32 {ls}, {T[0][0]}, {T[0][2]}'); k(f'v_add_f32 {T[1][0]}, {T[1][0]}, {T[1][2]}')
    k(f'v_add_f32 {ls}, {ls}, {T[1][0]}'); k(f'v_add_f32 {ls}, {ls}, {TM[0]}')
    k(f'v_mov_b32 {t1_}, {ls}'); k(f'v_permlane16_swap_b32 {ls}, {t1_}'); k(f'v_add_f32 {ls}, {ls}, {t1_}')
    k(f'v_mov_b32 {t1_}, {ls}'); k(f'v_permlane32_swap_b32 {ls}, {t1_}'); k(f'v_add_f32 {ls}, {ls}, {t1_}')
    k(f'v_rcp_f32 {ls}, {ls}')
    OS = [pool.alloc(4, name='OS0'), pool.alloc(4, name='OS1')]
    for a in range(2):
        for t in range(2):
            for r in range(4): k(f'v_mul_f32 {O[a][t][r]}, {O[a][t][r]}, {ls}')
            k(f'v_cvt_pk_bf16_f32 {OS[a][2*t]}, {O[a][t][0]}, {O[a][t][1]}'); k(f'v_cvt_pk_bf16_f32 {OS[a][2*t+1]}, {O[a][t][2]}, {O[a][t][3]}')
        k(f'buffer_store_dwordx4 {OS[a]}, {v16}, {SRD_WS}, s35 offen offset:{a * 1024} sc1')
    k.manual(True)
    k('s_waitcnt vmcnt(2) lgkmcnt(0)'); k('s_barrier')
    k('s_add_u32 s32, s32, 1'); k('s_xor_b32 s37, s37, 1')
    k(f's_add_u32 s33, s33, {32 * 16384}'); k(f's_add_u32 s34, s34, {32 * 4096}'); k(f's_add_u32 s35, s35, {32 * 8192}')
    k('s_add_u32 s44, s44, 40960')
    k('s_cmp_lt_u32 s32, 64'); k(f's_cbranch_scc1 {LOOP}')
    k('s_waitcnt vmcnt(0)'); k('s_barrier')
    LNFE = k.newlabel('QA_NFE')
    k(f's_cmp_lg_u32 {S_WAVE}, 0'); k(f's_cbranch_scc1 {LNFE}')
    k('v_mov_b32 v16, 64'); k('v_mov_b32 v17, 0'); k('s_mov_b64 exec, 1')
    k(f'buffer_store_dword v16, v17, {SRD_WS}, s57 offen sc1'); k('s_mov_b64 exec, -1')
    k.label(LNFE)
    if TIMING:
        k('s_memtime s[88:89]'); k('s_memrealtime s[90:91]'); k('s_waitcnt lgkmcnt(0)')
        k('s_sub_u32 s88, s88, s84'); k('s_sub_u32 s90, s90, s86')
        k('s_load_dwordx2 s[92:93], s[0:1], 120'); k('s_waitcnt lgkmcnt(0)')
        k(f's_lshl_b32 s94, {S_INST}, 5'); k(f's_add_u32 s94, s94, {S_IDX}'); k('s_lshl_b32 s94, s94, 4')
        k('v_mov_b32 v15, s94'); k('v_add_u32 v15, 32768, v15'); k('v_mov_b32 v20, s88'); k('v_mov_b32 v21, s90'); k('v_mov_b32 v22, s86'); k('v_mov_b32 v23, s100')
        k('global_store_dwordx4 v15, v[20:23], s[92:93]')
    k('s_waitcnt vmcnt(0)')
    k.manual(False); k.drained()
```

```python
from common import *
from role_qatt import poll_flag
TIMING = False
SPIN = 0x40000

def poll_multi(k, s_off, n, s_need, vt, vstride, base):
    L, LX = k.newlabel(base), k.newlabel(base + 'X')
    k('s_mov_b32 s7, 0')
    k(f's_mov_b64 exec, {hex((1 << n) - 1)}')
    k.label(L)
    k(f'buffer_load_dword {vt}, {vstride}, {SRD_WS}, {s_off} offen sc1')
    k('s_add_u32 s7, s7, 1'); k(f's_cmp_gt_u32 s7, {hex(SPIN)}'); k(f's_cbranch_scc1 {LX}')
    k('s_waitcnt vmcnt(0)')
    k(f'v_cmp_gt_u32 vcc, {s_need}, {vt}')
    k(f's_cbranch_vccz {LX}')
    k('s_sleep 1')
    k(f's_branch {L}')
    k.label(LX)
    k('s_waitcnt vmcnt(0)')
    k('s_mov_b64 exec, -1')

def role_wo(k, LEXIT, use_flags=True, integrated=False):
    vL, v16, vW, vT0, vT1, vF, vOut = 'v2', 'v1', 'v3', 'v4', 'v5', 'v6', 'v7'
    t0, t1, t2 = 'v12', 'v13', 'v14'
    SRD_W, SRD_O = 's[16:19]', 's[12:15]'
    if integrated:
        k(f's_mul_i32 s4, {S_INST}, 20'); k(f's_add_u32 s4, s4, {S_IDX}'); k('s_lshl_b32 s4, s4, 7'); k(f's_add_u32 s4, s4, {F_WOP}')
        LZ = k.newlabel('WO_Z')
        k(f's_cmp_ge_u32 {S_IDX}, 20'); k(f's_cbranch_scc1 {LZ}')
        zero_flag(k, 's4', ['v12', 'v13'])
        k.label(LZ)
        init_arrive(k, ['v12', 'v13'])
    k(f's_cmp_ge_u32 {S_IDX}, 20'); k(f's_cbranch_scc1 {LEXIT}')
    if integrated:
        init_wait(k, ['v12', 'v13'])
        k(f's_lshl_b32 s4, {S_INST}, 5'); k(f's_add_u32 s4, s4, {S_IDX}'); k('s_lshl_b32 s4, s4, 7'); k(f's_add_u32 s59, s4, {F_KVD}')
        k('s_mov_b32 s55, 1'); poll_flag(k, 's59', 's55', ['v12', 'v13'], 'WO_PS', sleep=8)
    inst_kernarg(k)
    load_srd(k, 16, S_KA, 40, W_BYTES)
    load_srd(k, 12, 's[0:1]', KA_OUT, OUT_BYTES)
    k(f'v_lshlrev_b32 {v16}, 4, {vL}')
    k(f's_mul_i32 s4, {S_IDX}, 52429'); k('s_lshr_b32 s38, s4, 18'); k('s_mul_i32 s4, s38, 5'); k(f's_sub_u32 s39, {S_IDX}, s4')
    k(f'v_lshrrev_b32 {t0}, 4, {vL}'); k(f's_and_b32 s4, {S_WAVE}, 1'); k('s_lshl_b32 s4, s4, 2'); k(f'v_add_u32 {t1}, s4, {t0}')
    k(f'v_lshlrev_b32 {t1}, 1, {t1}'); k(f'v_and_b32 {t2}, 15, {vL}'); k(f'v_xor_b32 {t1}, {t1}, {t2}'); k(f'v_lshlrev_b32 {t1}, 4, {t1}')
    k(f's_lshl_b32 s4, {S_WAVE}, 2'); k(f'v_add_u32 {t0}, s4, {t0}'); k(f'v_mul_u32_u24 {t0}, 1280, {t0}'); k(f'v_add_u32 {vW}, {t0}, {t1}')
    k(f's_mul_i32 s40, s38, {1024 * 1280}'); k('s_lshl_b32 s4, s39, 8'); k('s_add_u32 s40, s40, s4')
    k(f's_lshl_b32 s41, {S_WAVE}, 10')
    def wdma(hh):
        for mm in range(8):
            k(f's_add_u32 m0, s41, {(hh % 4) * 32768 + mm * 4096}')
            k(f's_add_u32 s5, s40, {(128 * hh + 16 * mm) * 1280}')
            k(f'buffer_load_dwordx4 {vW}, {SRD_W}, s5 offen' + WFL['wo'] + ' lds')
    for hh in range(4): wdma(hh)
    k(f'v_lshrrev_b32 {t0}, 4, {vL}'); k(f'v_bfe_u32 {t1}, {vL}, 2, 2'); k(f'v_lshl_add_u32 {t0}, {t0}, 2, {t1}')
    k(f'v_and_b32 {t1}, 7, {t0}'); k(f's_lshl_b32 s4, {S_WAVE}, 1'); k(f'v_xor_b32 {t1}, s4, {t1}'); k(f'v_lshlrev_b32 {t1}, 5, {t1}')
    k(f'v_lshl_add_u32 {t0}, {t0}, 8, {t1}'); k(f'v_and_b32 {t1}, 3, {vL}'); k(f'v_lshl_add_u32 {vT0}, {t1}, 3, {t0}')
    k(f'v_xor_b32 {vT1}, 32, {vT0}')
    wf = lambda hh, v, nt: Reg('a', 4 * ((hh * 4 + v) * 2 + nt), 4)
    k.manual(True)
    for hh in range(8):
        n_after = (3 if hh == 0 else min(hh + 2, 7) - hh) * 8
        k(f's_waitcnt vmcnt({n_after}) lgkmcnt(0)'); k('s_barrier')
        if hh >= 1 and hh + 3 <= 7: wdma(hh + 3)
        k(f'v_add_u32 v8, {(hh % 4) * 32768}, {vT0}'); k(f'v_add_u32 v9, {(hh % 4) * 32768}, {vT1}')
        for v in range(4):
            for nt in range(2):
                fr = wf(hh, v, nt); ad = 'v8' if nt == 0 else 'v9'
                k(f'ds_read_b64_tr_b16 {fr[0:2]}, {ad} offset:{v * 8192}')
                k(f'ds_read_b64_tr_b16 {fr[2:4]}, {ad} offset:{v * 8192 + 4096}')
    k('s_waitcnt vmcnt(0) lgkmcnt(0)'); k('s_barrier')
    k(f'v_lshlrev_b32 {vF}, 7, {vL}')
    k(f's_lshl_b32 s4, {S_INST}, 11'); k('s_lshl_b32 s5, s38, 3'); k('s_add_u32 s4, s4, s5'); k('s_lshl_b32 s33, s4, 13')
    k(f's_lshl_b32 s5, {S_WAVE}, 10'); k('s_add_u32 s33, s33, s5'); k(f's_add_u32 s33, s33, {OF}')
    k(f's_lshl_b32 s4, {S_INST}, 5'); k('s_lshl_b32 s5, s38, 3'); k('s_add_u32 s4, s4, s5'); k('s_lshl_b32 s4, s4, 7'); k(f's_add_u32 s57, s4, {F_OD}')
    k(f's_mul_i32 s4, {S_INST}, 320'); k('s_add_u32 s4, s4, s39'); k('s_lshl_b32 s4, s4, 2'); k(f's_add_u32 s4, s4, {S_WAVE}'); k('s_lshl_b32 s4, s4, 14')
    k(f's_add_u32 s34, s4, {WOP}')
    k('s_lshl_b32 s5, s38, 10'); k('s_add_u32 s35, s34, s5')
    k('s_lshl_b32 s5, s38, 12'); k('s_add_u32 s36, s34, s5')
    k(f's_mul_i32 s4, {S_INST}, 20'); k('s_lshl_b32 s5, s39, 2'); k('s_add_u32 s4, s4, s5'); k('s_lshl_b32 s4, s4, 7'); k(f's_add_u32 s58, s4, {F_WOP}')
    k('s_lshl_b32 s5, s38, 7'); k('s_add_u32 s59, s58, s5')
    k(f'v_and_b32 {t0}, 15, {vL}'); k(f'v_mul_u32_u24 {t0}, 2560, {t0}'); k(f'v_lshrrev_b32 {t1}, 4, {vL}'); k(f'v_lshl_add_u32 {vOut}, {t1}, 3, {t0}')
    k(f's_mul_i32 s37, {S_INST}, 1280'); k('s_lshl_b32 s4, s39, 8'); k('s_add_u32 s37, s37, s4'); k(f's_lshl_b32 s4, {S_WAVE}, 6'); k('s_add_u32 s37, s37, s4')
    k('s_lshr_b32 s4, s38, 1'); k('s_lshl_b32 s4, s4, 5'); k('s_add_u32 s37, s37, s4')
    k('s_and_b32 s4, s38, 1'); k(f's_mul_i32 s4, s4, {16 * 2560}'); k('s_add_u32 s37, s37, s4')
    k('s_mov_b32 s32, 0')
    if TIMING:
        k('s_memtime s[84:85]'); k('s_memrealtime s[86:87]'); k('s_waitcnt lgkmcnt(0)')
    vP = 'v10'
    k(f'v_lshlrev_b32 {vP}, 7, {vL}'); k(f'v_add_u32 {vP}, s57, {vP}')
    k(f'v_subrev_u32 {t0}, 8, {vL}'); k(f'v_lshlrev_b32 {t0}, 7, {t0}'); k(f'v_add_u32 {t0}, s58, {t0}')
    k(f'v_cmp_gt_u32 vcc, 8, {vL}'); k('s_nop 1'); k(f'v_cndmask_b32 {vP}, {t0}, {vP}, vcc')
    k('s_mov_b64 s[60:61], vcc')
    acc = [[Reg('v', 128 + 4 * (2 * nt + qt), 4) for qt in range(2)] for nt in range(2)]
    bf = [Reg('v', 144 + 4 * i, 4) for i in range(8)]
    pr = [Reg('v', 176 + 4 * i, 4) for i in range(4)]
    vN = 'v11'
    def poll(need_o, need_p, base):
        L, LX = k.newlabel(base), k.newlabel(base + 'X')
        k(f'v_mov_b32 {vN}, {need_p}'); k(f'v_mov_b32 v16, {need_o}'); k(f'v_cndmask_b32 {vN}, {vN}, v16, s[60:61]')
        k('s_mov_b32 s7, 0'); k('s_mov_b64 exec, 0xfff')
        k.label(L)
        k(f'buffer_load_dword v15, {vP}, {SRD_WS}, 0 offen sc1')
        k('s_add_u32 s7, s7, 1'); k(f's_cmp_gt_u32 s7, {hex(SPIN)}'); k(f's_cbranch_scc1 {LX}')
        k('s_waitcnt vmcnt(0)')
        k(f'v_cmp_gt_u32 vcc, {vN}, v15')
        k(f's_cbranch_vccz {LX}')
        k('s_sleep 1'); k(f's_branch {L}')
        k.label(LX)
        k('s_waitcnt vmcnt(0)'); k('s_mov_b64 exec, -1')
    def part_loads():
        for i in range(4): k(f'buffer_load_dwordx4 {pr[i]}, {v16}, {SRD_WS}, s36 offen offset:{i * 1024} sc1')
    def finalize():
        for r in range(4):
            k(f'v_add_f32 {pr[0][r]}, {pr[0][r]}, {pr[1][r]}'); k(f'v_add_f32 {pr[2][r]}, {pr[2][r]}, {pr[3][r]}')
        for r in range(4): k(f'v_add_f32 {pr[0][r]}, {pr[0][r]}, {pr[2][r]}')
        k(f'v_cvt_pk_bf16_f32 {pr[1][0]}, {pr[0][0]}, {pr[0][1]}'); k(f'v_cvt_pk_bf16_f32 {pr[1][1]}, {pr[0][2]}, {pr[0][3]}')
        k(f'buffer_store_dwordx2 {pr[1][0:2]}, {vOut}, {SRD_O}, s37 offen')
        k(f's_add_u32 s36, s36, {5 * 4 * 16384}'); k(f's_add_u32 s37, s37, {32 * 2560}')
    def own_flag(val):
        LNF = k.newlabel('WO_NF')
        k(f's_cmp_lg_u32 {S_WAVE}, 0'); k(f's_cbranch_scc1 {LNF}')
        k(f'v_mov_b32 v16, {val}'); k('v_mov_b32 v17, 0'); k('s_mov_b64 exec, 1')
        k(f'buffer_store_dword v16, v17, {SRD_WS}, s59 offen sc1'); k('s_mov_b64 exec, -1')
        k.label(LNF)
    LOOP = k.newlabel('WO_LOOP')
    k.label(LOOP)
    k('s_add_u32 s55, s32, 1')
    k('s_sub_u32 s56, s32, 1'); k('s_cmp_lt_u32 s32, 2'); k('s_cselect_b32 s56, 0, s56')
    if use_flags is not True: k('s_mov_b32 s55, 0')
    poll('s55', 's56', 'WO_P0')
    for m in range(16):
        k(f's_add_u32 m0, s41, {m * 4096}'); k(f's_add_u32 s5, s33, {m * 4096}')
        k(f'buffer_load_dwordx4 {v16}, {SRD_WS}, s5 offen sc1 lds')
    part_loads()
    for st in range(4):
        k(f's_waitcnt vmcnt({16 - 4 * st})'); k('s_barrier')
        if st == 0: own_flag('s32')
        seq = [(hh, v) for hh in (2 * st, 2 * st + 1) for v in range(4)]
        def rd(i):
            hh, v = seq[i]
            for qt in range(2): k(f'ds_read_b128 {bf[(2 * i + qt) % 8]}, {v16} offset:{hh * 8192 + qt * 4096 + v * 1024}')
        for i in range(3): rd(i)
        for i, (hh, v) in enumerate(seq):
            if i + 3 < 8: rd(i + 3)
            k(f's_waitcnt lgkmcnt({2 * min(3, 7 - i)})')
            for qt in range(2):
                for nt in range(2):
                    c = '0' if (st == 0 and i == 0) else str(acc[nt][qt])
                    k(f'v_mfma_f32_16x16x32_bf16 {acc[nt][qt]}, {wf(hh, v, nt)}, {bf[(2 * i + qt) % 8]}, {c}')
    LNFIN = k.newlabel('WO_NFIN')
    k('s_waitcnt vmcnt(0)')
    k('s_cmp_lt_u32 s32, 2'); k(f's_cbranch_scc1 {LNFIN}')
    finalize()
    k.label(LNFIN)
    k('s_nop 7')
    for nt in range(2):
        for qt in range(2):
            T = 2 * nt + qt
            k(f's_add_u32 s5, s35, {T * 4096}')
            k(f'buffer_store_dwordx4 {acc[nt][qt]}, {v16}, {SRD_WS}, s5 offen sc1')
    k('s_barrier')
    k('s_add_u32 s32, s32, 1')
    k(f's_add_u32 s33, s33, {32 * 8192}'); k(f's_add_u32 s35, s35, {5 * 4 * 16384}')
    k('s_cmp_lt_u32 s32, 64'); k(f's_cbranch_scc1 {LOOP}')
    k('s_waitcnt vmcnt(0)'); k('s_barrier')
    own_flag('64')
    k('s_mov_b32 s55, 0'); k('s_mov_b32 s56, 63')
    poll('s55', 's56', 'WO_P1'); part_loads(); k('s_waitcnt vmcnt(0)'); finalize()
    k('s_mov_b32 s56, 64')
    poll('s55', 's56', 'WO_P2'); part_loads(); k('s_waitcnt vmcnt(0)'); finalize()
    if TIMING:
        k('s_memtime s[88:89]'); k('s_memrealtime s[90:91]'); k('s_waitcnt lgkmcnt(0)')
        k('s_sub_u32 s88, s88, s84'); k('s_sub_u32 s90, s90, s86')
        k('s_load_dwordx2 s[92:93], s[0:1], 120'); k('s_waitcnt lgkmcnt(0)')
        k(f's_lshl_b32 s94, {S_INST}, 5'); k(f's_add_u32 s94, s94, {S_IDX}'); k('s_lshl_b32 s94, s94, 4')
        k('v_mov_b32 v15, s94'); k('v_add_u32 v15, 36864, v15'); k('v_mov_b32 v20, s88'); k('v_mov_b32 v21, s90'); k('v_mov_b32 v22, s86'); k('v_mov_b32 v23, s100')
        k('global_store_dwordx4 v15, v[20:23], s[92:93]')
    k('s_waitcnt vmcnt(0)')
    k.manual(False); k.drained()
```

```python
import sys
from common import *
import common
import role_kv, role_chain, role_qatt, role_wo
NAME = 'concat_heads__memory_aug_recurrent_mem_tr__memory_aug_recurrent_mem_tr__prompt'
KNAME = NAME + '_kernel'

def prologue(k, LEND):
    k(f's_cmp_ge_u32 s2, 256'); k(f's_cbranch_scc1 {LEND}')
    k(f's_load_dwordx2 {DBG_PTR}, s[0:1], {KA_DBG}')
    k('s_getreg_b32 s12, hwreg(HW_REG_XCC_ID, 0, 4)')
    k('s_waitcnt lgkmcnt(0)')
    k('s_and_b32 s12, s12, 7')
    k('s_lshl_b32 s13, s12, 2')
    k('v_mov_b32 v3, s13'); k('v_mov_b32 v4, 1')
    L = k.newlabel('NA')
    k('v_cmp_eq_u32 vcc, 0, v0'); k('s_and_saveexec_b64 s[14:15], vcc'); k(f's_cbranch_execz {L}')
    k(f'global_atomic_add v5, v3, v4, {DBG_PTR} sc0'); k('s_waitcnt vmcnt(0)')
    k('v_mov_b32 v6, 0'); k('ds_write_b32 v6, v5'); k('s_waitcnt lgkmcnt(0)')
    k.label(L)
    k('s_mov_b64 exec, s[14:15]'); k('s_barrier')
    k('v_mov_b32 v6, 0'); k('ds_read_b32 v5, v6'); k('s_waitcnt lgkmcnt(0)')
    k('v_readfirstlane_b32 s16, v5'); k('s_barrier')
    LOK, LOV, LOVX = k.newlabel('SLOT'), k.newlabel('OV'), k.newlabel('OVX')
    k('s_lshl_b32 s17, s12, 5'); k('s_add_u32 s17, s17, s16')
    k('s_cmp_lt_u32 s16, 32'); k(f's_cbranch_scc1 {LOK}')
    k('v_and_b32 v6, 7, v0'); k('v_lshlrev_b32 v6, 2, v6')
    k('s_mov_b32 s7, 0')
    k.label(LOV)
    k(f'global_load_dword v5, v6, {DBG_PTR} sc1')
    k('s_add_u32 s7, s7, 1'); k('s_cmp_gt_u32 s7, 0x400000'); k(f's_cbranch_scc1 {LOVX}')
    k('s_waitcnt vmcnt(0)')
    k('s_mov_b32 s18, 0')
    for x in range(8):
        k(f'v_readlane_b32 s{40+x}, v5, {x}');
    k('s_nop 1')
    for x in range(8): k(f's_add_u32 s18, s18, s{40+x}')
    k('s_cmp_ge_u32 s18, 256'); k(f's_cbranch_scc1 {LOVX}')
    k('s_sleep 2'); k(f's_branch {LOV}')
    k.label(LOVX)
    k('s_waitcnt vmcnt(0)')
    L2 = k.newlabel('NB')
    k('v_mov_b32 v3, 36'); k('v_mov_b32 v4, 1')
    k('v_cmp_eq_u32 vcc, 0, v0'); k('s_and_saveexec_b64 s[14:15], vcc'); k(f's_cbranch_execz {L2}')
    k(f'global_atomic_add v5, v3, v4, {DBG_PTR} sc0'); k('s_waitcnt vmcnt(0)')
    k('v_mov_b32 v6, 0'); k('ds_write_b32 v6, v5'); k('s_waitcnt lgkmcnt(0)')
    k.label(L2)
    k('s_mov_b64 exec, s[14:15]'); k('s_barrier')
    k('v_mov_b32 v6, 0'); k('ds_read_b32 v5, v6'); k('s_waitcnt lgkmcnt(0)')
    k('v_readfirstlane_b32 s19, v5'); k('s_barrier')
    k('s_mov_b32 s17, 255')
    for x in range(8):
        k(f's_min_u32 s20, s{40+x}, 32'); k('s_sub_u32 s21, 32, s20')
        k(f's_add_u32 s22, s20, {32 * x}'); k('s_add_u32 s22, s22, s19')
        k('s_cmp_lt_u32 s19, s21'); k('s_cselect_b32 s17, s22, s17')
        k('s_cselect_b32 s19, 0x10000, s19'); k('s_cselect_b32 s21, 0, s21'); k('s_sub_u32 s19, s19, s21')
    k.label(LOK)
    k(f's_and_b32 {S_IDX}, s17, 31'); k('s_lshr_b32 s29, s17, 5'); k(f's_and_b32 {S_INST}, s29, 1')
    prologue_common(k, 'v2')

def build(timing=False):
    k = Builder()
    LEND = 'L_END'
    if timing:
        k('s_memrealtime s[100:101]'); k('s_waitcnt lgkmcnt(0)')
    prologue(k, LEND)
    role_chain.INTEGRATED = True
    for m in (role_kv, role_chain, role_qatt, role_wo): m.TIMING = timing
    role_chain.STAMPS_ON = False
    LKV, LQA, LWO = 'L_KV', 'L_QA', 'L_WO'
    k('s_lshr_b32 s4, s29, 1')
    k('s_cmp_eq_u32 s4, 1'); k(f's_cbranch_scc1 {LKV}')
    k('s_cmp_eq_u32 s4, 2'); k(f's_cbranch_scc1 {LQA}')
    k('s_cmp_eq_u32 s4, 3'); k(f's_cbranch_scc1 {LWO}')
    role_chain.role_chain(k); k(f's_branch {LEND}')
    k.label(LKV); k.drained(); role_kv.role_kv(k, integrated=True); k(f's_branch {LEND}')
    k.label(LQA); k.drained(); role_qatt.role_qatt(k, True, integrated=True); k(f's_branch {LEND}')
    k.label(LWO); k.drained(); role_wo.role_wo(k, LEND, True, integrated=True)
    k.label(LEND); k('s_endpgm')
    body = k.finalize()
    print(k.stats, file=sys.stderr)
    head = open('cdna_kernels/' + NAME + '.s.ref').read().split('; Override launch')[0]
    src = head + '; Single persistent launch: 256 workgroups (one per CU), roles picked at run time from the XCD id.\n'
    src += '; @launch grid=(256,1,1) block=(256,1,1) lds=163840\n'
    src += '.amdgcn_target "amdgcn-amd-amdhsa--gfx950"\n.text\n' + kernel_head(KNAME) + body
    src += KD.format(name=KNAME).replace('\n.text\n', '\n')
    return src
if __name__ == '__main__':
    timing = len(sys.argv) > 2 and sys.argv[2] == 'timing'
    if len(sys.argv) > 3: exec(sys.argv[3])
    out = sys.argv[1] if len(sys.argv) > 1 else 'cdna_kernels/' + NAME + '.s'
    open(out, 'w').write(build(timing))
```

```python
import sys
from common import *
import role_kv, role_chain, role_qatt, role_wo
def standalone(name, role_fn, nwg, idx_bits=5):
    k = Builder()
    k(f's_cmp_ge_u32 s2, {nwg}')
    k(f's_cbranch_scc1 END_{name}')
    k(f's_lshr_b32 {S_INST}, s2, {idx_bits}')
    k(f's_and_b32 {S_IDX}, s2, {(1<<idx_bits)-1}')
    prologue_common(k, 'v2')
    role_fn(k)
    k.label(f'END_{name}')
    k('s_endpgm')
    body = k.finalize()
    print(name, k.stats, file=sys.stderr)
    return kernel_head(name) + body + KD.format(name=name)
def xcd_standalone(name, role_fn, xcc_list):
    k = Builder()
    k(f's_cmp_ge_u32 s2, 256'); k(f's_cbranch_scc1 END_{name}')
    k('s_load_dwordx2 s[6:7], s[0:1], 120')
    k('s_getreg_b32 s12, hwreg(HW_REG_XCC_ID, 0, 4)')
    k('s_waitcnt lgkmcnt(0)')
    k('s_lshl_b32 s13, s12, 2')
    k('v_mov_b32 v3, s13'); k('v_mov_b32 v4, 1')
    L = k.newlabel('NA')
    k('v_cmp_eq_u32 vcc, 0, v0'); k('s_and_saveexec_b64 s[14:15], vcc'); k(f's_cbranch_execz {L}')
    k('global_atomic_add v5, v3, v4, s[6:7] sc0'); k('s_waitcnt vmcnt(0)')
    k('v_mov_b32 v6, 0'); k('ds_write_b32 v6, v5'); k('s_waitcnt lgkmcnt(0)')
    k.label(L)
    k('s_mov_b64 exec, s[14:15]'); k('s_barrier')
    k('v_mov_b32 v6, 0'); k('ds_read_b32 v5, v6'); k('s_waitcnt lgkmcnt(0)')
    k(f'v_readfirstlane_b32 {S_IDX}, v5'); k('s_barrier')
    k(f's_cmp_ge_u32 {S_IDX}, 32'); k(f's_cbranch_scc1 END_{name}')
    k(f's_cmp_eq_u32 s12, {xcc_list[0]}'); k(f's_cselect_b32 {S_INST}, 0, 1')
    LOK = k.newlabel('OK')
    k(f's_cbranch_scc1 {LOK}')
    k(f's_cmp_eq_u32 s12, {xcc_list[1]}'); k(f's_cbranch_scc0 END_{name}')
    k.label(LOK)
    prologue_common(k, 'v2')
    role_fn(k)
    k.label(f'END_{name}')
    k('s_endpgm')
    body = k.finalize()
    print(name, k.stats, file=sys.stderr)
    return kernel_head(name) + body + KD.format(name=name)
if __name__ == '__main__':
    src = '.amdgcn_target "amdgcn-amd-amdhsa--gfx950"\n.text\n'
    role_kv.TIMING = True
    src += standalone('kv_kernel', role_kv.role_kv, 64)
    open('test_kv.s', 'w').write(src)
    role_chain.TIMING = True
    src += xcd_standalone('chain_kernel', role_chain.role_chain, [0, 1])
    role_qatt.TIMING = True
    src += standalone('qatt_kernel', lambda k: role_qatt.role_qatt(k, use_flags=False), 64)
    role_wo.TIMING = True
    src += standalone('wo_kernel', lambda k: role_wo.role_wo(k, 'END_wo_kernel', use_flags='wop'), 64)
    open('test_all.s', 'w').write(src)
    role_chain.DBG_STEPS = 3; role_chain.NOPOISON = False; role_chain.SPIN = 0x2000
    src = '.amdgcn_target "amdgcn-amd-amdhsa--gfx950"\n.text\n' + xcd_standalone('chain_kernel', role_chain.role_chain, [0, 1])
    open('test_dbg1.s', 'w').write(src)
```

```python
from common import *
from role_qatt import poll_flag
import math
TIMING = False
DBG_STEPS = 0
NOPOISON = False
SPIN = 0x40000
SAFE_FLAG = 's25'

XQK = 0; OX = 0; TC = 4096; MEM = 6144; WL = 16384

def ops_list():
    ops = []
    for M in 'QKV':
        for c in range(10):
            for t in range(2): ops.append((M, t, c))
    for i in range(10):
        for c2 in range(2): ops.append(('O', i, c2))
    return ops
G_UNITS = [('K', 9), ('Q', 9), ('O', 0, 1), ('O', 4, 1)]
L_UNITS = [('V', 1), ('V', 2), ('V', 3), ('V', 4), ('V', 5), ('O', 1, 0), ('O', 2, 1), ('O', 3, 0), ('O', 4, 0)]
G23 = 48
G01 = 64
def unit_of(op):
    if op[0] == 'O': return ('O', op[1] >> 1, op[2]), op[1] & 1
    return (op[0], op[2]), op[1]
def all_units():
    u = []
    for M in 'QKV':
        for c in range(10): u.append((M, c))
    for ip in range(5):
        for c2 in range(2): u.append(('O', ip, c2))
    return u
def classify():
    src = {}; nR = 0
    for op in ops_list():
        u, o = unit_of(op)
        if u in G_UNITS: src[op] = ('G', G_UNITS.index(u) * 2 + o)
        elif u in L_UNITS: src[op] = ('L', L_UNITS.index(u), o)
        else:
            reg = Reg('a', 8 * nR, 8) if nR < 32 else Reg('v', 80 + 8 * (nR - 32), 8)
            src[op] = ('R', reg); nR += 1
    assert nR == 54
    return src
SRC = classify()
def unit_ops(u):
    if u[0] == 'O': return [('O', 2 * u[1], u[2]), ('O', 2 * u[1] + 1, u[2])]
    return [(u[0], 0, u[1]), (u[0], 1, u[1])]

v16l, vBL, vIDX, vXW, vXR, vOW, vPS, vLN = 'v0', 'v1', 'v2', 'v3', 'v4', 'v5', 'v6', 'v7'
S_SEG, S_KX, S_KVM, S_PCUR, S_POTH, S_MNEXT, S_MPOI, S_WSTR = 's32', 's33', 's34', 's35', 's36', 's37', 's38', 's39'
M_N2, M_N8, M_N4 = 's[44:45]', 's[46:47]', 's[48:49]'
S_C = 's50'
S_RED = 's51'
S_RLD, S_RPUB = 's52', 's53'
S_PST = 's54'
S_PST2 = 's55'
S_PB, S_MB = 's56', 's57'
S_FKVM, S_FKVD = 's58', 's59'

def startup_weights(k, pool):
    units = [u for u in all_units() if u not in L_UNITS]
    assert len(units) == 31
    for n in range(31, 40): units.append(L_UNITS[n % 9])
    load_srd(k, 12, S_KA, 16, W_BYTES); load_srd(k, 16, S_KA, 24, W_BYTES)
    load_srd(k, 20, S_KA, 32, W_BYTES); load_srd(k, 60, S_KA, 40, W_BYTES)
    SR = {'Q': 's[12:15]', 'K': 's[16:19]', 'V': 's[20:23]', 'O': 's[60:63]'}
    t = pool.alloc(8, name='st')
    vWq, vWo, vTq0, vTq1, vTo0, vTo1 = [t[i] for i in range(6)]
    a, b = t[6], t[7]
    k(f's_and_b32 s4, {S_WAVE}, 1'); k('s_lshl_b32 s4, s4, 1')
    k(f's_lshr_b32 s5, {S_WAVE}, 1'); k('s_lshl_b32 s5, s5, 2'); k('s_or_b32 s4, s4, s5')
    k(f'v_bfe_u32 {a}, {vLN}, 4, 1'); k(f'v_or_b32 {a}, s4, {a}'); k(f'v_lshlrev_b32 {a}, 1, {a}')
    k(f'v_and_b32 {b}, 15, {vLN}'); k(f'v_xor_b32 {a}, {a}, {b}'); k(f'v_lshlrev_b32 {a}, 4, {a}')
    k(f's_lshl_b32 s4, {S_WAVE}, 2')
    k(f'v_lshrrev_b32 {b}, 4, {vLN}'); k(f'v_add_u32 {b}, s4, {b}')
    k(f'v_lshl_add_u32 {vWq}, {b}, 13, {a}')
    k(f'v_mul_u32_u24 {b}, 1280, {b}'); k(f'v_add_u32 {vWo}, {b}, {a}')
    x = pool.alloc(4, name='st2')
    k(f'v_bfe_u32 {x[0]}, {vLN}, 2, 1')
    k(f'v_bfe_u32 {x[1]}, {vLN}, 3, 1')
    k(f'v_bfe_u32 {x[2]}, {vLN}, 4, 1')
    k(f'v_lshrrev_b32 {x[3]}, 5, {vLN}')
    k(f'v_lshl_or_b32 {a}, {x[2]}, 1, {x[0]}'); k(f'v_lshl_or_b32 {a}, {x[1]}, 2, {a}')
    k(f'v_lshl_or_b32 {b}, {x[1]}, 3, {x[0]}'); k(f'v_lshl_or_b32 {b}, {x[2]}, 2, {b}'); k(f'v_lshl_or_b32 {b}, {x[3]}, 4, {b}')
    k(f'v_lshlrev_b32 {b}, 8, {b}')
    k(f'v_and_b32 {x[0]}, 3, {vLN}'); k(f'v_lshl_add_u32 {b}, {x[0]}, 3, {b}')
    k(f's_lshl_b32 s4, {S_WAVE}, 1')
    k(f'v_xor_b32 {x[0]}, s4, {a}'); k(f'v_lshl_add_u32 {vTq0}, {x[0]}, 5, {b}')
    k(f'v_xor_b32 {vTq1}, 32, {vTq0}')
    k(f'v_xor_b32 {x[0]}, {S_WAVE}, {a}'); k(f'v_lshl_add_u32 {vTo0}, {x[0]}, 5, {b}')
    k(f'v_xor_b32 {vTo1}, 128, {vTo0}')
    x.free()
    k(f's_lshl_b32 s40, {S_IDX}, 8'); k(f's_mul_i32 s41, {S_IDX}, {128*1280}'); k(f's_lshl_b32 s42, {S_WAVE}, 10')
    def dma(n):
        u = units[n]; slot = n % 9
        for mm in range(4):
            k(f's_add_u32 m0, s42, {WL + slot * 16384 + mm * 4096}')
            if u[0] == 'O':
                k(f's_add_u32 s5, s41, {(64 * u[2] + 16 * mm) * 1280 + u[1] * 256}')
                k(f'buffer_load_dwordx4 {vWo}, {SR["O"]}, s5 offen' + WFL['chain'] + ' lds')
            else:
                k(f's_add_u32 s5, s40, {(64 * u[1] + 16 * mm) * 8192}')
                k(f'buffer_load_dwordx4 {vWq}, {SR[u[0]]}, s5 offen' + WFL['chain'] + ' lds')
    tmp = pool.alloc(16, align=2, name='wtmp')
    ad = pool.alloc(2, name='wad')
    k.manual(True)
    DEPTH = 8
    q = []
    def issue(n):
        dma(n); q.extend([n] * 4)
    for n in range(DEPTH): issue(n)
    for n in range(40):
        u = units[n]; slot = n % 9
        last = max(i for i, e in enumerate(q) if e == n)
        k(f's_waitcnt vmcnt({min(63, len(q) - 1 - last)}) lgkmcnt(0)'); del q[:last + 1]
        k('s_barrier')
        if n + DEPTH < 40 and n >= 0:
            issue(n + DEPTH)
        a0, a1 = (vTo0, vTo1) if u[0] == 'O' else (vTq0, vTq1)
        k(f'v_add_u32 {ad[0]}, {WL + slot * 16384}, {a0}')
        k(f'v_add_u32 {ad[1]}, {WL + slot * 16384}, {a1}')
        dsts = []
        for o, op in enumerate(unit_ops(u)):
            s = SRC[op]
            dst = s[1] if s[0] == 'R' else tmp[8 * o:8 * o + 8]
            dsts.append((s, dst))
            for p in range(4):
                off = (32 * (p >> 1) + 2 * (p & 1)) * 256
                k(f'ds_read_b64_tr_b16 {dst[2*p:2*p+2]}, {ad[o]} offset:{off}')
        kind = dsts[0][0][0]
        if kind == 'G':
            k('s_waitcnt lgkmcnt(0)')
            for s, dst in dsts:
                for hh in range(2):
                    k(f's_add_u32 s5, {S_WSTR}, {s[1] * 2048 + hh * 1024}')
                    k(f'buffer_store_dwordx4 {dst[4*hh:4*hh+4]}, {v16l}, {SRD_WS}, s5 offen'); q.append('st')
            k('s_waitcnt vmcnt(%d)' % 0 if False else 's_nop 1')
        if kind == 'L':
            k('s_waitcnt lgkmcnt(0)')
            k('s_barrier')
            k(f's_lshl_b32 s4, {S_WAVE}, 12')
            k(f'v_add_u32 {ad[0]}, s4, {v16l}')
            k(f'v_add_u32 {ad[0]}, {WL + slot * 16384}, {ad[0]}')
            for o, (s, dst) in enumerate(dsts):
                for hh in range(2):
                    k(f'ds_write_b128 {ad[0]}, {dst[4*hh:4*hh+4]} offset:{o*2048 + hh*1024}')
    k('s_waitcnt vmcnt(0) lgkmcnt(0)')
    k('s_barrier')
    k.manual(False); k.drained()
    t.free(); tmp.free(); ad.free()

def smf(k, acc, A, B): k(f'v_smfmac_f32_16x16x64_bf16 {acc}, {A}, {B}, {vIDX}')

INTEGRATED = False
SAFE = [False]
def stf(): return ' sc1' if SAFE[0] else ''

def role_chain(k):
    pool = Pool('chain', 'v', range(8, 80))
    k(f'v_mov_b32 {vLN}, v2')
    inst_kernarg(k)
    k(f'v_lshlrev_b32 {v16l}, 4, {vLN}')
    k(f's_lshl_b32 s4, {S_INST}, 5'); k(f's_add_u32 s4, s4, {S_IDX}'); k('s_lshl_b32 s4, s4, 2'); k(f's_add_u32 s4, s4, {S_WAVE}')
    k(f's_lshl_b32 s4, s4, 14'); k(f's_add_u32 {S_WSTR}, s4, {WSTR}')
    startup_weights(k, pool)
    if TIMING:
        k('s_memrealtime s[98:99]'); k('s_waitcnt lgkmcnt(0)')
    t = pool.alloc(6, name='init')
    a, b, c_, d = t[0], t[1], t[2], t[3]
    k(f'v_and_b32 {a}, 15, {vLN}'); k(f'v_lshrrev_b32 {b}, 4, {vLN}')
    k(f'v_and_b32 {c_}, 2, {vLN}'); k(f'v_cmp_ne_u32 {M_N2}, 0, {c_}')
    k(f'v_cmp_gt_u32 {M_N8}, 8, {a}'); k(f'v_cmp_gt_u32 {M_N4}, 4, {a}')
    k(f'v_and_b32 {c_}, 1, {vLN}'); k(f'v_cmp_ne_u32 vcc, 0, {c_}')
    k(f'v_mov_b32 {d}, 0x44444444'); k(f'v_mov_b32 {vIDX}, 0xeeeeeeee'); k(f'v_cndmask_b32 {vIDX}, {d}, {vIDX}, vcc')
    k(f's_lshl_b32 s4, {S_WAVE}, 12'); k(f's_add_u32 s4, s4, {WL}'); k(f'v_add_u32 {vBL}, s4, {v16l}')
    k(f's_lshl_b32 s4, {S_WAVE}, 10'); k(f'v_lshlrev_b32 {c_}, 5, {a}'); k(f'v_lshl_add_u32 {c_}, {b}, 3, {c_}'); k(f'v_add_u32 {vXW}, s4, {c_}')
    k(f'v_bfe_u32 {c_}, {vLN}, 2, 2'); k(f'v_lshl_add_u32 {c_}, {b}, 3, {c_}'); k(f'v_lshlrev_b32 {c_}, 5, {c_}')
    k(f'v_and_b32 {d}, 3, {vLN}'); k(f'v_lshl_add_u32 {c_}, {d}, 3, {c_}'); k(f'v_add_u32 {vXR}, s4, {c_}')
    k(f'v_lshrrev_b32 {c_}, 2, {a}'); k(f'v_lshlrev_b32 {c_}, 1, {c_}'); k(f'v_and_b32 {d}, 1, {a}'); k(f'v_or_b32 {c_}, {c_}, {d}')
    k(f'v_lshlrev_b32 {c_}, 1, {c_}'); k(f'v_lshrrev_b32 {d}, 1, {b}'); k(f'v_or_b32 {c_}, {c_}, {d}')
    k(f'v_lshlrev_b32 {c_}, 4, {c_}'); k(f'v_and_b32 {d}, 1, {b}'); k(f'v_lshl_add_u32 {c_}, {d}, 3, {c_}')
    k(f's_lshr_b32 s4, {S_WAVE}, 1'); k('s_lshl_b32 s4, s4, 10'); k(f's_and_b32 s5, {S_WAVE}, 1'); k('s_lshl_b32 s5, s5, 9'); k('s_add_u32 s4, s4, s5')
    k(f'v_add_u32 {vOW}, s4, {c_}')
    k(f'v_lshrrev_b32 {c_}, 2, {a}'); k(f'v_lshlrev_b32 {c_}, 13, {c_}'); k(f'v_and_b32 {d}, 3, {a}'); k(f'v_lshl_add_u32 {d}, {b}, 2, {d}')
    k(f'v_lshl_add_u32 {vPS}, {d}, 4, {c_}')
    k(f's_mov_b32 {S_C}, {hex(f32bits(128 ** -0.5 * math.log2(math.e)))}')
    k(f's_mul_i32 {S_PB}, {S_INST}, {2*PART_BUF}'); k(f's_add_u32 {S_PB}, {S_PB}, {PART}')
    k(f's_mul_i32 {S_MB}, {S_INST}, {3*16384}'); k(f's_add_u32 {S_MB}, {S_MB}, {MEMR}')
    k(f's_lshl_b32 s4, {S_WAVE}, 15'); k(f's_lshl_b32 s5, {S_IDX}, 8'); k(f's_add_u32 {S_PST}, s4, s5')
    k(f's_lshl_b32 s4, {S_WAVE}, 14'); k(f's_lshl_b32 s5, {S_IDX}, 7'); k(f's_add_u32 {S_PST2}, s4, s5'); k(f's_add_u32 {S_PST2}, {S_PST2}, 262144')
    k(f's_mov_b32 {S_RED}, 0')
    k(f's_cmp_eq_u32 {S_WAVE}, 0'); k(f's_cselect_b32 {S_RED}, 1, 0')
    k(f's_cmp_lt_u32 {S_IDX}, 16'); k('s_cselect_b32 s4, 2, 0'); k(f's_cmp_eq_u32 {S_WAVE}, 1'); k(f's_cselect_b32 {S_RED}, s4, {S_RED}')
    k(f's_bfe_u32 s4, {S_IDX}, 0x20002'); k('s_lshl_b32 s4, s4, 8')
    k(f's_bfe_u32 s5, {S_IDX}, 0x10001'); k('s_lshl_b32 s5, s5, 4'); k('s_add_u32 s4, s4, s5')
    k(f's_and_b32 s5, {S_IDX}, 1'); k('s_lshl_b32 s5, s5, 3'); k('s_add_u32 s4, s4, s5')
    k(f's_lshr_b32 s5, {S_IDX}, 4'); k('s_lshl_b32 s5, s5, 12'); k('s_add_u32 s5, s5, s4')
    k('s_add_u32 s4, s4, 8192')
    k(f's_cmp_eq_u32 {S_RED}, 2'); k(f's_cselect_b32 {S_RPUB}, s4, s5')
    k(f's_lshl_b32 s4, {S_IDX}, 12'); k('s_add_u32 s4, s4, 262144'); k(f's_lshl_b32 s5, {S_IDX}, 13')
    k(f's_cmp_eq_u32 {S_RED}, 2'); k(f's_cselect_b32 {S_RLD}, s4, s5')
    k(f's_cmp_eq_u32 {S_RED}, 2'); k(f's_cselect_b64 {M_PUB}, {M_N4}, {M_N8}')
    k(f's_cmp_eq_u32 {S_RED}, 0'); k(f's_cselect_b64 {M_PUB}, 0, {M_PUB}')
    k(f's_cmp_lt_u32 {S_IDX}, 16'); k(f's_cselect_b64 {M_HALFCU}, -1, 0')
    k(f's_cmp_eq_u32 {S_WAVE}, 3'); k(f's_cselect_b64 {M_W3}, 1, 0')
    k(f's_mov_b32 {S_TAG}, 0')
    sl = pool.alloc(1, name='sl'); k(f'v_bfe_u32 {sl}, {vLN}, 1, 3')
    for dd in range(4): k(f'v_cmp_eq_u32 {M_SEL[dd]}, {dd}, {sl}')
    sl.free()
    k(f's_lshl_b32 s4, {S_IDX}, 13'); k(f's_lshl_b32 s5, {S_WAVE}, 11'); k(f's_add_u32 {S_POIF}, s4, s5')
    k(f's_lshl_b32 s4, {S_IDX}, 12'); k(f's_lshl_b32 s5, {S_WAVE}, 10'); k('s_add_u32 s4, s4, s5'); k(f's_add_u32 {S_POIH}, s4, 262144')
    k(f's_lshl_b32 s4, {S_WAVE}, 11'); k(f's_add_u32 {S_TOFF}, s4, {32 * 16384}')
    k('s_mov_b32 s18, -1'); k('s_mov_b32 s19, 0')
    k(f's_lshl_b32 s4, {S_INST}, 11'); k(f's_add_u32 s4, s4, {S_IDX}')
    k(f's_lshl_b32 {S_KX}, s4, 14'); k(f's_lshl_b32 s5, {S_WAVE}, 11'); k(f's_add_u32 {S_KX}, {S_KX}, s5')
    if KVX: k(f's_add_u32 {S_KX}, {S_KX}, {KVX}')
    k(f's_lshl_b32 {S_KVM}, s4, 12'); k(f's_lshl_b32 s5, {S_WAVE}, 10'); k(f's_add_u32 {S_KVM}, {S_KVM}, s5'); k(f's_add_u32 {S_KVM}, {S_KVM}, {KVM}')
    k(f's_lshl_b32 s4, {S_INST}, 5'); k(f's_add_u32 s4, s4, {S_IDX}'); k('s_lshl_b32 s4, s4, 7')
    k(f's_add_u32 {S_FKVM}, s4, {F_KVM}'); k(f's_add_u32 {S_FKVD}, s4, {F_KVD}')
    k(f's_mov_b32 {S_SEG}, 0'); k(f's_mov_b32 {S_KVSEEN}, 0')
    k(f's_lshl_b32 s4, {S_WAVE}, 10'); k(f's_add_u32 {S_TCW}, s4, {MEM + 6144}')
    k(f's_mov_b32 {S_PCUR}, {S_PB}'); k(f's_add_u32 {S_POTH}, {S_PB}, {PART_BUF}')
    k(f's_add_u32 {S_MNEXT}, {S_MB}, 16384'); k(f's_mov_b32 {S_MPOI}, {S_MB}'); k(f's_mov_b32 {S_MPP}, {S_MB}')
    if INTEGRATED:
        chain_init(k, pool)
    load_srd(k, 12, S_KA, 8, MEM0_BYTES)
    k(f'v_bfe_u32 {c_}, {vLN}, 1, 3'); k(f'v_mul_u32_u24 {c_}, 1280, {c_}')
    k(f'v_lshl_add_u32 {c_}, {b}, 5, {c_}'); k(f'v_and_b32 {d}, 1, {vLN}'); k(f'v_lshl_add_u32 {c_}, {d}, 4, {c_}')
    m0r = pool.alloc(12, align=2, name='m0')
    k(f's_lshl_b32 s4, {S_WAVE}, 7')
    for j in range(3):
        k(f's_add_u32 s5, s4, {j * 512}')
        k(f'buffer_load_dwordx4 {m0r[4*j:4*j+4]}, {c_}, s[12:15], s5 offen')
    k(f's_lshl_b32 s4, {S_WAVE}, 10'); k(f'v_add_u32 {d}, s4, {v16l}')
    k(f'ds_write_b128 {d}, {m0r[0:4]} offset:{MEM}')
    k(f'ds_write_b128 {d}, {m0r[4:8]} offset:{MEM + 4096}')
    L1 = k.newlabel('CH_M0')
    k(f's_cmp_ge_u32 {S_WAVE}, 2'); k(f's_cbranch_scc1 {L1}')
    k(f'ds_write_b128 {d}, {m0r[8:12]} offset:{MEM + 8192}')
    k.label(L1)
    z = m0r
    k('s_waitcnt vmcnt(0) lgkmcnt(0)')
    for i in range(4): k(f'v_mov_b32 {z[i]}, 0')
    k(f'ds_write_b128 {v16l}, {z[0:4]} offset:{TC}')
    k('s_waitcnt lgkmcnt(0)')
    k('s_barrier')
    k.drained()
    m0r.free(); t.free()
    for i in range(1, 4): k(f's_add_u32 {S_WS4[i]}, {S_WSTR}, {4096 * i}')
    k(f's_add_u32 {S_VX}, {S_KX}, 8192')
    gload(k, Reg('v', G23, 8), 0)
    k('s_waitcnt vmcnt(0)'); k.drained()
    if TIMING:
        k('s_memtime s[64:65]'); k('s_memrealtime s[66:67]'); k('s_waitcnt lgkmcnt(0)')
        for i in range(8): k(f's_mov_b32 s{80+i}, 0')
    LEND = k.newlabel('CH_END')
    if INTEGRATED:
        vt = pool.alloc(2, name='iw')
        init_wait(k, vt)
        k(f's_lshl_b32 s4, {S_INST}, 2'); k(f'v_mov_b32 {vt[1]}, s4')
        k(f'global_load_dword {vt[0]}, {vt[1]}, {DBG_PTR} sc1'); k('s_waitcnt vmcnt(0)')
        k(f'v_readfirstlane_b32 s6, {vt[0]}')
        k('s_mov_b32 s60, s6')
        k('s_mov_b32 s61, 1'); poll_flag(k, S_FKVD, 's61', vt, 'CH_KV0'); k(f's_mov_b32 {S_KVSEEN}, s6')
        vt.free()
        k.drained()
        LSAFE = k.newlabel('CH_SAFE')
        k('s_cmp_lt_u32 s60, 32'); k(f's_cbranch_scc1 {LSAFE}')
        for safe in (False, True):
            SAFE[0] = safe
            if safe: k.label(LSAFE); k.drained()
            LOOP = k.newlabel('CH_LOOP'); k.label(LOOP)
            step(k, pool, LOOP, LEND)
        SAFE[0] = False
    else:
        LOOP = k.newlabel('CH_LOOP')
        k.label(LOOP)
        step(k, pool, LOOP, LEND)
    k.label(LEND)
    if TIMING:
        k('s_memtime s[68:69]'); k('s_memrealtime s[70:71]'); k('s_waitcnt lgkmcnt(0)')
        k('s_sub_u32 s68, s68, s64'); k('s_sub_u32 s70, s70, s66')
        k('s_load_dwordx2 s[72:73], s[0:1], 120'); k('s_waitcnt lgkmcnt(0)')
        k(f's_lshl_b32 s74, {S_INST}, 5'); k(f's_add_u32 s74, s74, {S_IDX}'); k('s_lshl_b32 s74, s74, 2'); k(f's_add_u32 s74, s74, {S_WAVE}'); k('s_lshl_b32 s74, s74, 6')
        k('v_mov_b32 v8, s74'); k('v_add_u32 v8, 1024, v8')
        k('v_mov_b32 v12, s68'); k('v_mov_b32 v13, s70'); k('v_mov_b32 v14, s66'); k('v_mov_b32 v15, s100')
        k('global_store_dwordx4 v8, v[12:15], s[72:73]')
        for j in range(2):
            for i in range(4): k(f'v_mov_b32 v{16+4*j+i}, ' + ('s98' if (j == 0 and i == 0 and not STAMPS_ON and not TRACE) else f's{80+4*j+i}'))
            k(f'global_store_dwordx4 v8, v[{16+4*j}:{19+4*j}], s[72:73] offset:{16+16*j}')
        k('s_waitcnt vmcnt(0)')

def chain_init(k, pool):
    p = pool.alloc(4, name='ip'); a = pool.alloc(2, name='ia')
    zero_flag(k, S_FKVM, a)
    L = k.newlabel('CI')
    k(f's_cmp_eq_u32 {S_RED}, 0'); k(f's_cbranch_scc1 {L}')
    for i in range(4): k(f'v_mov_b32 {p[i]}, -1')
    for b in range(1):
        k(f's_add_u32 s5, {S_PB}, {S_RLD}')
        if b: k(f's_add_u32 s5, s5, {PART_BUF}')
        for m in range(4): k(f'buffer_store_dwordx4 {p}, {v16l}, {SRD_WS}, s5 offen offset:{m * 1024} sc1')
        L2 = k.newlabel('CI2')
        k(f's_cmp_eq_u32 {S_RED}, 2'); k(f's_cbranch_scc1 {L2}')
        k('s_add_u32 s5, s5, 4096')
        for m in range(4): k(f'buffer_store_dwordx4 {p}, {v16l}, {SRD_WS}, s5 offen offset:{m * 1024} sc1')
        k.label(L2)
    pub_addr(k, a[0], a[1])
    k(f's_cmp_eq_u32 {S_RED}, 2'); k(f's_cselect_b64 exec, {M_N4}, {M_N8}')
    for b in range(3):
        k(f's_add_u32 s5, {S_MB}, {S_RPUB}')
        if b: k(f's_add_u32 s5, s5, {b * 16384}')
        k(f'buffer_store_dwordx2 {p[0:2]}, {a[0]}, {SRD_WS}, s5 offen sc1')
    k('s_mov_b64 exec, -1')
    k.label(L)
    init_arrive(k, a)
    k.drained()
    p.free(); a.free()

def f32bits(x):
    import struct
    return struct.unpack('<I', struct.pack('<f', x))[0]

STAMP = [0]
def stamp(k, i):
    if not TIMING: return
    k('s_memtime s[76:77]'); k('s_waitcnt lgkmcnt(0)')
    k('s_sub_u32 s78, s76, s79'); k(f's_add_u32 s{80+i}, s{80+i}, s78'); k('s_mov_b32 s79, s76')

def gload(k, dst, gi):
    k(f's_add_u32 s5, {S_WSTR}, {gi * 2048}')
    k(f'buffer_load_dwordx4 {dst[0:4]}, {v16l}, {SRD_WS}, s5 offen')
    k(f'buffer_load_dwordx4 {dst[4:8]}, {v16l}, {SRD_WS}, s5 offen offset:1024')

def zero(k, r):
    for i in range(0, r.n, 2): k(f'v_mov_b64 {r[i:i+2]}, 0')

KVF = ' nt'
S_KVSEEN = 's62'
S_TCW = 's63'
S_MPP = 's88'
S_POIF, S_POIH = 's89', 's96'
M_PUB, M_HALFCU, M_W3 = 's[90:91]', 's[92:93]', 's[94:95]'
NLS_O = 2
NPRE = 4
RED_SLEEP = 3
RED_SLEEP_H = 4
PIPE_POLL = True
POLL_GAP = 2
PRE_SLEEP = 0
TOUCH_ON = True
STAMPS_ON = True
COUNT_POLLS = False
FAILHIST = None
ONLY = None
P1_AT = -1
MARK = None
def mark(k, name):
    if TIMING and MARK == name: stamp(k, 0)
    if TIMING and TRACE == name:
        k('s_memrealtime s[76:77]'); k('s_waitcnt lgkmcnt(0)')
        for j in range(8):
            k(f's_cmp_eq_u32 {S_SEG}, {20 + j}'); k(f's_cselect_b32 s{80+j}, s76, s{80+j}')
TRACE = None

def bstamp(k, i):
    if TIMING and STAMPS_ON and (ONLY is None or ONLY == i): stamp(k, i)

S_WS4 = [S_WSTR, 's12', 's13', 's14']
def gload1(k, dst, gi, half):
    off = (gi & 1) * 2048 + half * 1024
    k(f'buffer_load_dwordx4 {dst[4*half:4*half+4]}, {v16l}, {SRD_WS}, {S_WS4[gi >> 1]} offen offset:{off}')

class VStream:
    def __init__(self, k, pool, slot, accv, G):
        self.k, self.pool, self.accv, self.G = k, pool, accv, G
        self.order = [9, 8, 7, 6, 0, 1, 2, 3, 4, 5]
        self.slot = {9: slot[9], 8: slot[8], 7: slot[7]}
        self.slot[6] = slot[9]; self.slot[0] = slot[8]; self.slot[1] = slot[7]
        self.slot[2] = slot[9]; self.slot[3] = slot[7]; self.slot[4] = slot[9]; self.slot[5] = slot[7]
        self.after = {}
        for j, p in {3: 0, 4: 1, 5: 2, 6: 3, 7: 5, 8: 6, 9: 7}.items(): self.after.setdefault(p, []).append(j)
        self.ops = [('V', t, c) for c in self.order for t in range(2)]
        self.lops = [op for op in self.ops if SRC[op][0] == 'L']
        self.li = {op: i for i, op in enumerate(self.lops)}
        self.i = 0; self.LS = None; self.bl = None
    def start_l(self):
        self.LS = [self.pool.alloc_at(8, 8, 'L0'), self.pool.alloc_at(16, 8, 'L1')]
        self.lload(0); self.lload(1)
    def lload(self, n):
        op = self.lops[n]; off = SRC[op][1] * 16384 + SRC[op][2] * 2048
        d = self.LS[n % 2]; ad = vBL
        if off >= 65536:
            if self.bl is None:
                self.bl = self.pool.alloc(1, name='blv'); self.k(f'v_add_u32 {self.bl}, 65536, {vBL}')
            ad = str(self.bl); off -= 65536
        self.k(f'ds_read_b128 {d[0:4]}, {ad} offset:{off}'); self.k(f'ds_read_b128 {d[4:8]}, {ad} offset:{off + 1024}')
    def emit(self, n=1):
        k = self.k
        for _ in range(n):
            if self.i >= len(self.ops): return
            op = self.ops[self.i]; s = SRC[op]; c = op[2]
            Bv = s[1] if s[0] == 'R' else (self.G[op[1]] if s[0] == 'G' else self.LS[self.li[op] % 2])
            smf(k, self.accv[op[1]], self.slot[c], Bv)
            if s[0] == 'L' and self.li[op] + 2 < len(self.lops): self.lload(self.li[op] + 2)
            j = self.i // 2
            if op[1] == 1:
                for jn in self.after.get(j, []):
                    cn = self.order[jn]
                    k(f'ds_read_b128 {self.slot[cn]}, {v16l} offset:{MEM + cn * 1024}')
            self.i += 1
    def finish(self):
        self.emit(100)
        for l_ in self.LS: l_.free()
        if self.bl is not None: self.bl.free()

def poison_ops(k, pz, tag=None):
    def p0():
        k(f'v_mov_b32 {pz[0]}, -1'); k(f'v_mov_b32 {pz[1]}, -1')
        pub_addr(k, pz[2], pz[3])
        k(f's_add_u32 s6, {S_MPP}, {S_RPUB}'); k(f's_mov_b64 exec, {M_PUB}')
        k(f'buffer_store_dwordx2 {pz[0:2]}, {pz[2]}, {SRD_WS}, s6 offen' + stf(), tag=tag)
        k('s_mov_b64 exec, -1')
    def p1():
        k(f's_add_u32 s6, {S_POTH}, {S_POIF}')
        k(f'buffer_store_dwordx4 {pz}, {v16l}, {SRD_WS}, s6 offen' + stf(), tag=tag)
    def p2():
        k(f's_add_u32 s6, {S_POTH}, {S_POIF}')
        k(f'buffer_store_dwordx4 {pz}, {v16l}, {SRD_WS}, s6 offen offset:1024' + stf(), tag=tag)
    def p3():
        k(f's_add_u32 s6, {S_POTH}, {S_POIH}'); k(f's_mov_b64 exec, {M_HALFCU}')
        k(f'buffer_store_dwordx4 {pz}, {v16l}, {SRD_WS}, s6 offen' + stf(), tag=tag)
        k('s_mov_b64 exec, -1')
    return [p0]

def step(k, pool, LOOP, LEND):
    if TIMING and STAMPS_ON:
        k('s_memtime s[76:77]'); k('s_waitcnt lgkmcnt(0)'); k('s_mov_b32 s79, s76')
    G0, G1 = pool.alloc_at(G01, 8, 'G0'), pool.alloc_at(G01 + 8, 8, 'G1')
    G2, G3 = pool.alloc_at(G23, 8, 'G2'), pool.alloc_at(G23 + 8, 8, 'G3')
    k.pending_vm([G2[0:4], G2[4:8]])
    pz = pool.alloc_at(44, 4, 'pz')
    accq = [pool.alloc_at(8, 4, 'q0'), pool.alloc_at(12, 4, 'q1')]
    acck = [pool.alloc_at(16, 4, 'k0'), pool.alloc_at(24, 4, 'k1')]
    A = [pool.alloc_at(28, 4, 'A0'), pool.alloc_at(32, 4, 'A1'), pool.alloc_at(20, 4, 'A2')]
    KX = pool.alloc_at(36, 8, 'KX')
    slot = {c: A[c % 3] for c in range(10)}
    def rdA(c): k(f'ds_read_b128 {slot[c]}, {v16l} offset:{MEM + c * 1024}')
    rdA(0); rdA(1)
    for r in accq + acck: zero(k, r)
    gmap = {('K', 0, 9): G2, ('K', 1, 9): G3, ('Q', 0, 9): G0, ('Q', 1, 9): G1}
    def B(op):
        s = SRC[op]
        return s[1] if s[0] == 'R' else gmap[op]
    def kx(h): k(f'buffer_load_dwordx4 {KX[4*h:4*h+4]}, {v16l}, {SRD_WS}, {S_KX} offen offset:{1024*h}' + KVF)
    vm = {0: lambda: gload1(k, G3, 1, 0), 1: lambda: gload1(k, G3, 1, 1), 2: lambda: gload1(k, G0, 2, 0), 3: lambda: gload1(k, G0, 2, 1),
          4: lambda: gload1(k, G1, 3, 0), 5: lambda: gload1(k, G1, 3, 1), 6: lambda: None, 7: lambda: kx(0), 8: lambda: kx(1)}
    for c in range(9):
        if c + 2 < 10: rdA(c + 2)
        if TIMING and P1_AT == c: stamp(k, 0)
        for t in range(2): smf(k, acck[t], slot[c], B(('K', t, c)))
        vm[c]()
        for t in range(2): smf(k, accq[t], slot[c], B(('Q', t, c)))
    for t in range(2): smf(k, acck[t], slot[9], B(('K', t, 9)))
    accv = [G2[0:4], G2[4:8]]
    zero(k, G2)
    VX = G3
    k(f'buffer_load_dwordx4 {VX[0:4]}, {v16l}, {SRD_WS}, {S_VX} offen' + KVF)
    for t in range(2): smf(k, accq[t], slot[9], B(('Q', t, 9)))
    G0.free(); G1.free()
    bstamp(k, 0)
    V = VStream(k, pool, slot, accv, None)
    V.emit(2)
    W = pool.alloc_at(64, 4, 'W')
    KV4 = pool.alloc_at(68, 4, 'KV4')
    TCH = pool.alloc_at(76, 2, 'touch')
    for t in range(2):
        a = acck[t]
        k(f'v_add_f32 {a[0]}, {a[0]}, {a[1]}'); k(f'v_add_f32 {a[2]}, {a[2]}, {a[3]}')
        k(f'v_cvt_pk_bf16_f32 {W[2*t]}, {a[0]}, {a[2]}')
    k(f'buffer_load_dwordx4 {VX[4:8]}, {v16l}, {SRD_WS}, {S_VX} offen offset:1024' + KVF)
    V.emit(2)
    for t in range(2):
        a = accq[t]
        k(f'v_add_f32 {a[0]}, {a[0]}, {a[1]}'); k(f'v_add_f32 {a[2]}, {a[2]}, {a[3]}')
        k(f'v_cvt_pk_bf16_f32 {W[2*t+1]}, {a[0]}, {a[2]}')
        k(f'ds_write_b64 {vXW}, {W[2*t:2*t+2]} offset:{XQK + t * 512}')
    for r in accq + acck: r.free()
    if TOUCH_ON:
        k(f'v_lshlrev_b32 {TCH[1]}, 3, {v16l}')
        k(f's_add_u32 s5, {S_KX}, {S_TOFF}')
        if INTEGRATED:
            k(f's_add_u32 s6, {S_SEG}, 2'); k(f's_cmp_ge_u32 {S_KVSEEN}, s6'); k('s_cselect_b64 exec, s[18:19], 0')
        else:
            k('s_mov_b64 exec, 0xffffffff')
        k(f'buffer_load_dword {TCH[0]}, {TCH[1]}, {SRD_WS}, s5 offen')
        k('s_mov_b64 exec, -1')
    V.emit(2)
    for t in range(2): k(f'v_mov_b32 {KV4[2*t]}, {W[2*t]}')
    if INTEGRATED:
        k(f'buffer_load_dword {TCH[1]}, off, {SRD_WS}, {S_FKVD} sc1')
    k('s_waitcnt lgkmcnt(0)'); k('s_barrier'); k.drained(vm=False)
    bstamp(k, 1)
    X0 = pool.alloc_at(8, 4, 'X0'); XR = [pool.alloc_at(12, 4, 'Xa'), pool.alloc_at(16, 4, 'Xb')]
    xa = KV4[1]
    def rdX(dst, m):
        ad = vXR
        if m:
            k(f'v_xor_b32 {xa}, {m * 1024}, {vXR}'); ad = str(xa)
        k(f'ds_read_b64_tr_b16 {dst[0:2]}, {ad} offset:{XQK}')
        k(f'ds_read_b64_tr_b16 {dst[2:4]}, {ad} offset:{XQK + 128}')
    rdX(X0, 0); rdX(XR[0], 1); rdX(XR[1], 2)
    k(f's_sub_u32 s5, {S_KVM}, {32 * 4096}')
    k(f's_cmp_lg_u32 {S_SEG}, 0'); k('s_cselect_b64 exec, -1, 0')
    k(f'buffer_store_dwordx4 {pz}, {v16l}, {SRD_WS}, s5 offen sc1')
    k('s_mov_b64 exec, -1')
    X3 = W
    rdX(X3, 3)
    V.emit(2)
    k(f's_sub_u32 s6, {S_SEG}, 1'); k(f's_max_i32 s6, s6, 0')
    k(f'v_mov_b32 {xa}, s6')
    k(f's_mov_b64 exec, {M_W3}')
    k(f'buffer_store_dword {xa}, {v16l}, {SRD_WS}, {S_FKVM} offen sc1')
    k('s_mov_b64 exec, -1')
    TX = [pool.alloc_at(24, 4, 'TX0'), pz]
    TM = pool.alloc_at(72, 4, 'TM')
    for t in range(2): k(f'v_mfma_f32_16x16x32_bf16 {TX[t]}, {KX[4*t:4*t+4]}, {X0}, 0')
    k(f'v_mfma_f32_16x16x32_bf16 {TM}, {X0}, {X0}, 0')
    k(f'v_mfma_f32_16x16x32_bf16 {TM}, {XR[0]}, {XR[0]}, {TM}')
    k(f'v_mfma_f32_16x16x32_bf16 {TM}, {XR[1]}, {XR[1]}, {TM}')
    k(f'v_mfma_f32_16x16x32_bf16 {TM}, {X3}, {X3}, {TM}')
    V.emit(2)
    for x_ in XR + [X0, KX, X3]: x_.free()
    A[2].free()
    V.start_l()
    k(f's_mov_b64 vcc, {M_N2}')
    k(f'v_add_u32 {xa}, {S_TCW}, {v16l}')
    for r in range(4):
        k(f'v_cndmask_b32_dpp {TX[0][r]}, {TX[1][r]}, {TX[0][r]}, vcc quad_perm:[2,3,2,3] row_mask:0xf bank_mask:0xf')
    k(f'ds_write_b128 {xa}, {TX[0]}')
    V.emit(2)
    k('s_waitcnt lgkmcnt(0)'); k('s_barrier'); k.drained(vm=False)
    bstamp(k, 2)
    S = TX[0]; S1 = TX[1]; S2 = pool.alloc_at(36, 4, 'S2'); S3 = pool.alloc_at(40, 4, 'S3')
    for m, dst in ((1, S1), (2, S2), (3, S3)):
        k(f'v_xor_b32 {dst[0]}, {m * 1024}, {xa}')
        k(f'ds_read_b128 {dst}, {dst[0]}')
    mx, t1 = TM[2], TM[3]
    k(f'v_mov_b32 {t1}, 0xff800000')
    k(f'v_cndmask_b32 {TM[0]}, {t1}, {TM[0]}, vcc')
    k(f'v_cndmask_b32 {TM[1]}, {t1}, {TM[1]}, vcc')
    k(f'v_max_f32 {mx}, {TM[0]}, {TM[1]}')
    pz2 = pool.alloc_at(64, 4, 'pz2')
    po = poison_ops(k, pz2, tag='poison')
    po[0](); pz2.free()
    V.emit(2)
    for h_ in range(2): k(f'v_pk_add_f32 {S[2*h_:2*h_+2]}, {S[2*h_:2*h_+2]}, {S1[2*h_:2*h_+2]}')
    for h_ in range(2): k(f'v_pk_add_f32 {S2[2*h_:2*h_+2]}, {S2[2*h_:2*h_+2]}, {S3[2*h_:2*h_+2]}')
    for h_ in range(2): k(f'v_pk_add_f32 {S[2*h_:2*h_+2]}, {S[2*h_:2*h_+2]}, {S2[2*h_:2*h_+2]}')
    for r_ in (S1, S2, S3): r_.free()
    mark(k, 'adds')
    k(f'v_max3_f32 {mx}, {mx}, {S[0]}, {S[1]}'); k(f'v_max3_f32 {mx}, {mx}, {S[2]}, {S[3]}')
    V.emit(2)
    k(f'v_max_f32_dpp {mx}, {mx}, {mx} quad_perm:[2,3,0,1] row_mask:0xf bank_mask:0xf')
    k(f'v_mov_b32 {t1}, {mx}')
    k(f'v_permlane16_swap_b32 {mx}, {t1}'); k(f'v_max_f32 {mx}, {mx}, {t1}')
    k(f'v_mov_b32 {t1}, {mx}')
    V.emit(1)
    k(f'v_permlane32_swap_b32 {mx}, {t1}'); k(f'v_max_f32 {mx}, {mx}, {t1}')
    k(f'v_mul_f32 {mx}, {S_C}, {mx}')
    mark(k, 'max')
    V.emit(1)
    for r in range(4): k(f'v_fma_f32 {S[r]}, {S[r]}, {S_C}, -{mx}')
    for r in range(2): k(f'v_fma_f32 {TM[r]}, {TM[r]}, {S_C}, -{mx}')
    for r in range(4): k(f'v_exp_f32 {S[r]}, {S[r]}')
    for r in range(2): k(f'v_exp_f32 {TM[r]}, {TM[r]}')
    mark(k, 'exp')
    V.finish()
    mark(k, 'vfin')
    A[0].free(); A[1].free()
    GOa = [pool.alloc_at(8, 8, 'GOa0'), pool.alloc_at(16, 8, 'GOa1')]
    gload1(k, GOa[0], 4, 0)
    P = pool.alloc_at(28, 4, 'P'); BM = pool.alloc_at(64, 2, 'BM')
    ONE = pool.alloc_at(40, 4, 'one'); L4 = pool.alloc_at(44, 4, 'L4')
    k(f'v_cvt_pk_bf16_f32 {P[0]}, {S[0]}, {S[1]}'); k(f'v_cvt_pk_bf16_f32 {P[1]}, {S[2]}, {S[3]}')
    k(f'v_mov_b32 {BM[0]}, 0'); k(f'v_cvt_pk_bf16_f32 {BM[1]}, {TM[0]}, {TM[1]}')
    k(f'v_mov_b32_dpp {P[2]}, {P[0]} quad_perm:[0,1,0,1] row_mask:0xf bank_mask:0xf')
    k(f'v_mov_b32_dpp {P[3]}, {P[1]} quad_perm:[0,1,0,1] row_mask:0xf bank_mask:0xf')
    O = [pool.alloc_at(32, 4, 'O0'), pool.alloc_at(36, 4, 'O1')]
    for i in range(4): k(f'v_mov_b32 {ONE[i]}, 0x3f803f80')
    gload1(k, GOa[0], 4, 1)
    for t in range(2): k(f'v_mfma_f32_16x16x32_bf16 {O[t]}, {VX[4*t:4*t+4]}, {P}, 0')
    k(f'v_mfma_f32_16x16x32_bf16 {L4}, {ONE}, {P}, 0')
    for t in range(2):
        k(f'v_add_f32 {accv[t][0]}, {accv[t][0]}, {accv[t][1]}'); k(f'v_add_f32 {accv[t][2]}, {accv[t][2]}, {accv[t][3]}')
        k(f'v_cvt_pk_bf16_f32 {KV4[2*t+1]}, {accv[t][0]}, {accv[t][2]}')
    k(f'v_mfma_f32_16x16x16_bf16 {L4}, {ONE[0:2]}, {BM}, {L4}')
    mark(k, 'pvx')
    gload1(k, GOa[1], 5, 0)
    for t in range(2): k(f'v_mfma_f32_16x16x16_bf16 {O[t]}, {KV4[2*t:2*t+2]}, {BM}, {O[t]}')
    ONE.free()
    ls = L4[0]
    G2.free()
    LCONT = k.newlabel('CH_CONT')
    k(f's_cmp_lt_u32 {S_SEG}, 63'); k(f's_cbranch_scc1 {LCONT}')
    k.save()
    k(f'buffer_store_dwordx4 {KV4}, {v16l}, {SRD_WS}, {S_KVM} offen sc1')
    k('s_waitcnt vmcnt(0)'); k('s_barrier')
    flag_store(k, pool, S_FKVM, '64')
    k('s_waitcnt vmcnt(0)')
    k(f's_branch {LEND}')
    k.restore()
    k.label(LCONT)
    gload1(k, GOa[1], 5, 1)
    k(f'v_rcp_f32 {ls}, {ls}')
    mark(k, 'rcp')
    G3.free()
    GOb = [pool.alloc_at(56, 8, 'GOb0'), None]
    gload1(k, GOb[0], 6, 0)
    for t in range(2):
        for h_ in range(2): k(f'v_pk_mul_f32 {O[t][2*h_:2*h_+2]}, {O[t][2*h_:2*h_+2]}, {L4[0:2]} op_sel_hi:[1,0]')
        k(f'v_cvt_pk_bf16_f32 {P[2*t]}, {O[t][0]}, {O[t][1]}'); k(f'v_cvt_pk_bf16_f32 {P[2*t+1]}, {O[t][2]}, {O[t][3]}')
    k(f's_mov_b64 exec, {M_N2}')
    for t in range(2): k(f'ds_write_b64 {vOW}, {P[2*t:2*t+2]} offset:{OX + t * 256}')
    k('s_mov_b64 exec, -1')
    mark(k, 'oxw')
    gload1(k, GOb[0], 6, 1)
    for r in (S, TM, BM, O[0], O[1], L4): r.free()
    LS = [pool.alloc_at(32, 8, 'L0'), pool.alloc_at(48, 8, 'L1')]
    bl = pool.alloc_at(78, 1, 'blo')
    k(f'v_add_u32 {bl}, 81920, {vBL}')
    oops = [('O', i, c2) for i in range(10) for c2 in range(2)]
    lops = [op for op in oops if SRC[op][0] == 'L']
    li = {op: i for i, op in enumerate(lops)}
    def lload(n):
        op = lops[n]; base = (SRC[op][1] - 5) * 16384 + SRC[op][2] * 2048
        k(f'ds_read_b128 {LS[n % NLS_O][0:4]}, {bl} offset:{base}'); k(f'ds_read_b128 {LS[n % NLS_O][4:8]}, {bl} offset:{base + 1024}')
    for n in range(NLS_O): lload(n)
    P.free()
    GOb[1] = pool.alloc_at(24, 8, 'GOb1')
    AO = [pool.alloc_at(40, 4, 'AO0'), pool.alloc_at(44, 4, 'AO1')]
    acc = {0: pool.alloc_at(64, 4, 'o0'), 1: pool.alloc_at(72, 4, 'o1')}
    for i in range(2): zero(k, acc[i])
    mark(k, 'preb3')
    k('s_waitcnt lgkmcnt(0)'); k('s_barrier'); k.drained(vm=False)
    for c2 in range(2): k(f'ds_read_b128 {AO[c2]}, {v16l} offset:{OX + c2 * 1024}')
    bstamp(k, 3)
    mark(k, 'b3')
    if INTEGRATED:
        k(f'v_readfirstlane_b32 s6, {TCH[1]}'); k(f's_max_u32 {S_KVSEEN}, {S_KVSEEN}, s6')
    TCH.free()
    def epi(i):
        a = acc[i]; q = acc[i & ~3]
        k(f'v_add_f32 {a[0]}, {a[0]}, {a[1]}'); k(f'v_add_f32 {a[2]}, {a[2]}, {a[3]}')
        k(f'v_cvt_pk_bf16_f32 {q[i & 3]}, {a[0]}, {a[2]}')
        k(f'v_bfi_b32 {q[i & 3]}, 1, {S_TAG}, {q[i & 3]}')
        if i & 3: a.free()
        if i in (3, 7):
            k(f's_add_u32 s5, {S_PCUR}, {S_PST}')
            if i == 7: k(f's_add_u32 s5, s5, {16 * 8192}')
            k(f'buffer_store_dwordx4 {q}, {vPS}, {SRD_WS}, s5 offen' + stf()); q.free()
        if i == 9:
            h2 = pool.alloc(1, name='ps2'); k(f'v_lshrrev_b32 {h2}, 1, {vPS}')
            k(f's_add_u32 s5, {S_PCUR}, {S_PST2}')
            k(f'buffer_store_dwordx2 {q[0:2]}, {h2}, {SRD_WS}, s5 offen' + stf()); h2.free(); q.free()
    gmap = {('O', 0, 1): GOa[0], ('O', 1, 1): GOa[1], ('O', 8, 1): GOb[0], ('O', 9, 1): GOb[1]}
    def grab(nx):
        if nx < 10 and nx not in acc:
            try: acc[nx] = pool.alloc(4, name=f'o{nx}')
            except RuntimeError: return False
            zero(k, acc[nx])
        return True
    for i in range(10):
        assert grab(i), (i, sorted(pool.free), {r: pool.names.get(r) for r in sorted(pool.all - set(pool.free))})
        for c2 in range(2):
            op = ('O', i, c2); s = SRC[op]
            Bv = s[1] if s[0] == 'R' else (gmap[op] if s[0] == 'G' else LS[li[op] % NLS_O])
            smf(k, acc[i], AO[c2], Bv)
            if s[0] == 'L' and li[op] + NLS_O < len(lops): lload(li[op] + NLS_O)
        mark(k, 'r%d' % i)
        if i == 0: gload1(k, GOb[1], 7, 0)
        if i == 1: gload1(k, GOb[1], 7, 1)
        if i < 2: GOa[i].free()
        if i >= 2: epi(i - 2)
        for nx in (i + 1, i + 2, i + 3): grab(nx)
    epi(8); epi(9)
    for r in AO + LS + GOb + [bl]: r.free()
    KVP = pool.alloc_at(44, 4, 'KVprev')
    for i in range(4): k(f'v_mov_b32 {KVP[i]}, {KV4[i]}')
    KV4.free()
    bstamp(k, 4)
    mark(k, 'oend')
    hops(k, pool)
    KVP.free()
    mark(k, 'b0')
    bstamp(k, 5)
    k(f's_add_u32 {S_SEG}, {S_SEG}, 1')
    k(f's_add_u32 {S_KX}, {S_KX}, {32 * 16384}'); k(f's_add_u32 {S_KVM}, {S_KVM}, {32 * 4096}'); k(f's_add_u32 {S_VX}, {S_VX}, {32 * 16384}')
    k(f's_xor_b32 {S_TAG}, {S_TAG}, 1')
    k(f's_mov_b32 {S_MPP}, {S_MPOI}')
    k(f's_mov_b32 {S_MPOI}, {S_MNEXT}')
    k(f's_add_u32 {S_MNEXT}, {S_MNEXT}, 16384'); k(f's_sub_u32 s5, {S_MNEXT}, {S_MB}'); k('s_cmp_eq_u32 s5, 49152')
    k(f's_cselect_b32 {S_MNEXT}, {S_MB}, {S_MNEXT}')
    if DBG_STEPS:
        k(f's_cmp_ge_u32 {S_SEG}, {DBG_STEPS}'); k(f's_cbranch_scc1 {LEND}')
    k(f's_branch {LOOP}')

KVM_EARLY = False
S_TOFF = 's97'
S_VX = 's15'
S_TCH = 's16'
def hops(k, pool):
    LPOLL, LNR = k.newlabel('HP_POLL'), k.newlabel('HP_NR')
    G2 = pool.alloc_at(G23, 8, 'G2')
    k.manual(True)
    k(f's_cmp_eq_u32 {S_RED}, 0'); k(f's_cbranch_scc1 {LNR}')
    G2.free()
    hop1(k, pool)
    G2 = pool.alloc_at(G23, 8, 'G2')
    k(f's_branch {LPOLL}')
    k.label(LNR)
    if INTEGRATED:
        LSEEN = k.newlabel('HP_SEEN')
        k(f's_cmp_lg_u32 {S_WAVE}, 3'); k(f's_cbranch_scc1 {LSEEN}')
        k(f's_add_u32 s61, {S_SEG}, 2'); k('s_min_u32 s61, s61, 64')
        k(f's_cmp_ge_u32 {S_KVSEEN}, s61'); k(f's_cbranch_scc1 {LSEEN}')
        vt = pool.alloc(2, name='kvp')
        poll_flag(k, S_FKVD, 's61', vt, 'CH_KV')
        k(f's_mov_b32 {S_KVSEEN}, s6')
        vt.free()
        k.label(LSEEN)
    k.label(LPOLL)
    k('s_barrier')
    if PRE_SLEEP: k(f's_sleep {PRE_SLEEP}')
    dS = [pool.alloc_at(56, 12, 'mlandA'), pool.alloc_at(68, 12, 'mlandB')]; t = pool.alloc(2, name='h2t')
    k(f's_lshl_b32 s4, {S_WAVE}, 1'); k(f's_cmp_eq_u32 {S_WAVE}, 3'); k('s_cselect_b32 s4, 7, s4'); k('s_lshl_b32 s4, s4, 10')
    k(f's_add_u32 s5, {S_MNEXT}, s4')
    k(f'v_add_u32 {t[1]}, s4, {v16l}')
    k('s_mov_b32 s7, 0')
    L3, L2, LD = k.newlabel('H2_3'), k.newlabel('H2_2'), k.newlabel('H2_D')
    k(f's_cmp_ge_u32 {S_WAVE}, 2'); k(f's_cbranch_scc1 {L3}')
    for n, L in ((2, L2), (3, L3)):
        k.label(L)
        def issue(d):
            for j in range(n): k(f'buffer_load_dwordx4 {d[4*j:4*j+4]}, {v16l}, {SRD_WS}, s5 offen offset:{j * 1024} sc1')
        def check(d, LOK):
            k(f'v_max3_u32 {t[0]}, {d[0]}, {d[1]}, {d[2]}')
            rest = list(range(3, 4 * n))
            while rest:
                if len(rest) >= 2: k(f'v_max3_u32 {t[0]}, {t[0]}, {d[rest[0]]}, {d[rest[1]]}'); rest = rest[2:]
                else: k(f'v_max_u32 {t[0]}, {t[0]}, {d[rest[0]]}'); rest = rest[1:]
            k(f'v_cmp_eq_u32 vcc, -1, {t[0]}')
            k(f's_cbranch_vccz {LOK}')
        LL, LA, LB = k.newlabel('H2_L'), k.newlabel('H2_A'), k.newlabel('H2_B')
        if PIPE_POLL:
            issue(dS[0])
            if POLL_GAP: k(f's_sleep {POLL_GAP}')
            k.label(LL)
            issue(dS[1])
            k(f's_waitcnt vmcnt({n})'); check(dS[0], LA)
            issue(dS[0])
            k(f's_waitcnt vmcnt({n})'); check(dS[1], LB)
            k('s_add_u32 s7, s7, 1'); k('s_cmp_gt_u32 s7, ' + hex(SPIN)); k(f's_cbranch_scc0 {LL}')
            k('s_waitcnt vmcnt(0)')
        else:
            k.label(LL)
            issue(dS[0])
            k('s_waitcnt vmcnt(0)'); check(dS[0], LA)
            k('s_add_u32 s7, s7, 1'); k('s_cmp_gt_u32 s7, ' + hex(SPIN)); k(f's_cbranch_scc0 {LL}')
        for d, LX in ((dS[0], LA), (dS[1], LB)):
            k.label(LX)
            mark(k, 'memok')
            for j in range(n): k(f'ds_write_b128 {t[1]}, {d[4*j:4*j+4]} offset:{MEM + j * 1024}')
            k(f's_branch {LD}')
    k.label(LD)
    gload1(k, G2, 0, 0); gload1(k, G2, 0, 1)
    dS[0].free(); dS[1].free(); t.free()
    k('s_waitcnt lgkmcnt(0)'); k('s_barrier')
    k.manual(False); k.drained()
    G2.free()

def flag_store(k, pool, s_off, val):
    f = pool.alloc(2, name='flag')
    k(f'v_mov_b32 {f[0]}, {val}'); k(f'v_mov_b32 {f[1]}, 0')
    k('s_mov_b64 exec, 1')
    k(f'buffer_store_dword {f[0]}, {f[1]}, {SRD_WS}, {s_off} offen sc1')
    k('s_mov_b64 exec, -1')
    f.free()

def pub_addr(k, dst, tmp):
    k(f'v_bfe_u32 {dst}, {vLN}, 1, 3'); k(f'v_lshlrev_b32 {dst}, 10, {dst}')
    k(f'v_lshrrev_b32 {tmp}, 4, {vLN}'); k(f'v_lshl_add_u32 {dst}, {tmp}, 6, {dst}')
    k(f'v_and_b32 {tmp}, 1, {vLN}'); k(f'v_lshl_add_u32 {dst}, {tmp}, 5, {dst}')

S_TAG = 's17'
M_SEL = ['s[20:21]', 's[22:23]', 's[40:41]', 's[42:43]']
def hop1(k, pool):
    LFULL, LHALF, LPUB = k.newlabel('H1_F'), k.newlabel('H1_H'), k.newlabel('H1_P')
    dA = pool.alloc_at(8, 16, 'landA'); dB = pool.alloc_at(G23, 16, 'landB')
    class DD:
        def __getitem__(self, x):
            if isinstance(x, slice):
                a, b = x.start, x.stop
                return dA[a:b] if a < 16 else dB[a - 16:b - 16]
            return dA[x] if x < 16 else dB[x - 16]
        def free(self): dA.free(); dB.free()
    d = DD(); sel = pool.alloc(4, name='sel'); acc = pool.alloc(4, name='racc'); t = pool.alloc(3, name='h1t')
    def setup():
        k(f'v_and_b32 {t[0]}, 1, {vLN}'); k(f'v_lshlrev_b32 {t[0]}, 4, {t[0]}'); k(f'v_mov_b32 {t[1]}, 0x3f80'); k(f'v_lshlrev_b32 {t[0]}, {t[0]}, {t[1]}')
        for dd in range(4): k(f'v_cndmask_b32 {sel[dd]}, 0, {t[0]}, {M_SEL[dd]}')
        pub_addr(k, t[0], t[1])
    k(f's_add_u32 s5, {S_PCUR}, {S_RLD}'); k('s_add_u32 s6, s5, 4096')
    k('s_mov_b32 s7, 0')
    setup()
    k(f's_cmp_eq_u32 {S_RED}, 2'); k(f's_cbranch_scc1 {LHALF}')
    def poll(L, nload, width, op, mf, slp):
        L0, L1 = k.newlabel(L + '0'), k.newlabel(L + '1')
        if slp: k(f's_sleep {slp}')
        k(f's_cmp_eq_u32 {S_TAG}, 1'); k(f's_cbranch_scc1 {L1}')
        for tag, LL in ((0, L0), (1, L1)):
            k.label(LL)
            for m in range(nload):
                if width == 4:
                    k(f'buffer_load_dwordx4 {d[4*m:4*m+4]}, {v16l}, {SRD_WS}, {"s5" if m < 4 else "s6"} offen offset:{(m % 4) * 1024} sc1')
                else:
                    k(f'buffer_load_dwordx2 {d[2*m:2*m+2]}, {t[2]}, {SRD_WS}, s5 offen offset:{m * 512} sc1')
            k('s_add_u32 s7, s7, 1')
            red = 'bitop3:0x80' if tag else 'bitop3:0xfe'
            for m in range(nload):
                k(f's_waitcnt vmcnt({nload - 1 - m})')
                dm = d[width*m:width*m+width]
                k(f'{mf} {acc}, {dm}, {sel[0:width]}, ' + ('0' if m == 0 else str(acc)))
                for h_ in range(width // 2):
                    if m == 0 and h_ == 0:
                        k(f'v_and_b32 {t[1]}, {dm[0]}, {dm[1]}' if tag else f'v_or_b32 {t[1]}, {dm[0]}, {dm[1]}')
                    else:
                        k(f'v_bitop3_b32 {t[1]}, {t[1]}, {dm[2*h_]}, {dm[2*h_+1]} {red}')
            k(f'v_and_b32 {t[1]}, 1, {t[1]}')
            k(f'v_cmp_ne_u32 vcc, {tag}, {t[1]}')
            k(f's_cbranch_vccz {LPUB}')
            if TIMING and FAILHIST and width == 4:
                for m in range(nload):
                    dm = d[4*m:4*m+4]
                    opn = 'v_and_b32' if tag else 'v_or_b32'
                    k(f'{opn} {t[1]}, {dm[0]}, {dm[1]}'); k(f'{opn} {t[1]}, {t[1]}, {dm[2]}'); k(f'{opn} {t[1]}, {t[1]}, {dm[3]}')
                    k(f'v_and_b32 {t[1]}, 1, {t[1]}'); k(f'v_cmp_ne_u32 vcc, {tag}, {t[1]}'); k('s_nop 4')
                    if FAILHIST == 'm':
                        k('s_cmp_lg_u64 vcc, 0'); k('s_cselect_b32 s78, 1, 0'); k(f's_add_u32 s{80+m}, s{80+m}, s78')
                    else:
                        for G in range(4):
                            k(f's_lshr_b64 s[78:79], vcc, {16*G}'); k('s_and_b32 s78, s78, 0xffff'); k('s_cmp_lg_u32 s78, 0'); k('s_cselect_b32 s78, 1, 0'); k(f's_add_u32 s{80+G}, s{80+G}, s78')
                        k('s_bcnt1_i32_b64 s78, vcc'); k('s_add_u32 s84, s84, s78')
            k('s_cmp_gt_u32 s7, ' + hex(SPIN)); k(f's_cbranch_scc0 {LL}')
            k(f's_branch {LPUB}')
    poll('H1_F', 8, 4, None, 'v_mfma_f32_16x16x32_bf16', RED_SLEEP)
    k.label(LHALF)
    k(f'v_lshrrev_b32 {t[2]}, 1, {v16l}')
    poll('H1_H', 8, 2, None, 'v_mfma_f32_16x16x16_bf16', RED_SLEEP_H)
    k.label(LPUB)
    mark(k, 'lpub')
    bstamp(k, 6)
    if TIMING and COUNT_POLLS: k('s_add_u32 s86, s86, s7')
    k('s_nop 4')
    k(f'v_cvt_pk_bf16_f32 {d[0]}, {acc[0]}, {acc[1]}'); k(f'v_cvt_pk_bf16_f32 {d[1]}, {acc[2]}, {acc[3]}')
    k(f'v_min_u32 {d[0]}, 0xfffffffe, {d[0]}'); k(f'v_min_u32 {d[1]}, 0xfffffffe, {d[1]}')
    k(f's_add_u32 s5, {S_MNEXT}, {S_RPUB}')
    k(f's_mov_b64 exec, {M_PUB}')
    k(f'buffer_store_dwordx2 {d[0:2]}, {t[0]}, {SRD_WS}, s5 offen' + stf())
    k('s_mov_b64 exec, -1')
    for r in (sel, d, acc, t): r.free()
```

```python
import sys
from build_test import *
import role_chain as rc
src = '.amdgcn_target "amdgcn-amd-amdhsa--gfx950"\n.text\n'
role_kv.TIMING = False
src += standalone('kv_kernel', role_kv.role_kv, 64)
rc.TIMING = True; rc.DBG_STEPS = 0; rc.NOPOISON = False; rc.SPIN = 0x40000
variants = eval(sys.argv[1])
for name, opts in variants.items():
    saved = {kk: getattr(rc, kk) for kk in opts}
    for kk, vv in opts.items(): setattr(rc, kk, vv)
    src += xcd_standalone(name + '_kernel', rc.role_chain, [0, 1])
    for kk, vv in saved.items(): setattr(rc, kk, vv)
open('test_var.s', 'w').write(src)
```

```python
from common import *
from role_qatt import poll_flag
import math
TIMING = False
KV_FIRST = False
DBG_STEPS = 0
NOPOISON = False
SPIN = 0x40000
SAFE_FLAG = 's25'

XQK = 0; OX = 0; TC = 4096; MEM = 6144; WL = 16384

def ops_list():
    ops = []
    for M in 'QKV':
        for c in range(10):
            for t in range(2): ops.append((M, t, c))
    for i in range(10):
        for c2 in range(2): ops.append(('O', i, c2))
    return ops
G_UNITS = [('K', 9), ('Q', 9), ('O', 0, 1), ('O', 4, 1)]
L_UNITS = [('V', 1), ('V', 2), ('V', 3), ('V', 4), ('V', 5), ('O', 1, 0), ('O', 2, 1), ('O', 3, 0), ('O', 4, 0)]
G23 = 48
G01 = 64
def unit_of(op):
    if op[0] == 'O': return ('O', op[1] >> 1, op[2]), op[1] & 1
    return (op[0], op[2]), op[1]
def all_units():
    u = []
    for M in 'QKV':
        for c in range(10): u.append((M, c))
    for ip in range(5):
        for c2 in range(2): u.append(('O', ip, c2))
    return u
def classify():
    src = {}; nR = 0
    for op in ops_list():
        u, o = unit_of(op)
        if u in G_UNITS: src[op] = ('G', G_UNITS.index(u) * 2 + o)
        elif u in L_UNITS: src[op] = ('L', L_UNITS.index(u), o)
        else:
            reg = Reg('a', 8 * nR, 8) if nR < 32 else Reg('v', 80 + 8 * (nR - 32), 8)
            src[op] = ('R', reg); nR += 1
    assert nR == 54
    return src
SRC = classify()
def unit_ops(u):
    if u[0] == 'O': return [('O', 2 * u[1], u[2]), ('O', 2 * u[1] + 1, u[2])]
    return [(u[0], 0, u[1]), (u[0], 1, u[1])]

v16l, vBL, vIDX, vXW, vXR, vOW, vPS, vLN = 'v0', 'v1', 'v2', 'v3', 'v4', 'v5', 'v6', 'v7'
S_SEG, S_KX, S_KVM, S_PCUR, S_POTH, S_MNEXT, S_MPOI, S_WSTR = 's32', 's33', 's34', 's35', 's36', 's37', 's38', 's39'
M_N2, M_N8, M_N4 = 's[44:45]', 's[46:47]', 's[48:49]'
S_C = 's50'
S_RED = 's51'
S_RLD, S_RPUB = 's52', 's53'
S_PST = 's54'
S_PST2 = 's55'
S_PB, S_MB = 's56', 's57'
S_FKVM, S_FKVD = 's58', 's59'

def startup_weights(k, pool):
    units = [u for u in all_units() if u not in L_UNITS]
    if KV_FIRST:
        kv = sorted([u for u in units if u[0] in 'KV'], key=lambda u: (u[1], u[0]))
        units = kv + [u for u in units if u[0] not in 'KV']
    assert len(units) == 31
    for n in range(31, 40): units.append(L_UNITS[n % 9])
    load_srd(k, 12, S_KA, 16, W_BYTES); load_srd(k, 16, S_KA, 24, W_BYTES)
    load_srd(k, 20, S_KA, 32, W_BYTES); load_srd(k, 60, S_KA, 40, W_BYTES)
    SR = {'Q': 's[12:15]', 'K': 's[16:19]', 'V': 's[20:23]', 'O': 's[60:63]'}
    t = pool.alloc(8, name='st')
    vWq, vWo, vTq0, vTq1, vTo0, vTo1 = [t[i] for i in range(6)]
    a, b = t[6], t[7]
    k(f's_and_b32 s4, {S_WAVE}, 1'); k('s_lshl_b32 s4, s4, 1')
    k(f's_lshr_b32 s5, {S_WAVE}, 1'); k('s_lshl_b32 s5, s5, 2'); k('s_or_b32 s4, s4, s5')
    k(f'v_bfe_u32 {a}, {vLN}, 4, 1'); k(f'v_or_b32 {a}, s4, {a}'); k(f'v_lshlrev_b32 {a}, 1, {a}')
    k(f'v_and_b32 {b}, 15, {vLN}'); k(f'v_xor_b32 {a}, {a}, {b}'); k(f'v_lshlrev_b32 {a}, 4, {a}')
    k(f's_lshl_b32 s4, {S_WAVE}, 2')
    k(f'v_lshrrev_b32 {b}, 4, {vLN}'); k(f'v_add_u32 {b}, s4, {b}')
    k(f'v_lshl_add_u32 {vWq}, {b}, 13, {a}')
    k(f'v_mul_u32_u24 {b}, 1280, {b}'); k(f'v_add_u32 {vWo}, {b}, {a}')
    x = pool.alloc(4, name='st2')
    k(f'v_bfe_u32 {x[0]}, {vLN}, 2, 1')
    k(f'v_bfe_u32 {x[1]}, {vLN}, 3, 1')
    k(f'v_bfe_u32 {x[2]}, {vLN}, 4, 1')
    k(f'v_lshrrev_b32 {x[3]}, 5, {vLN}')
    k(f'v_lshl_or_b32 {a}, {x[2]}, 1, {x[0]}'); k(f'v_lshl_or_b32 {a}, {x[1]}, 2, {a}')
    k(f'v_lshl_or_b32 {b}, {x[1]}, 3, {x[0]}'); k(f'v_lshl_or_b32 {b}, {x[2]}, 2, {b}'); k(f'v_lshl_or_b32 {b}, {x[3]}, 4, {b}')
    k(f'v_lshlrev_b32 {b}, 8, {b}')
    k(f'v_and_b32 {x[0]}, 3, {vLN}'); k(f'v_lshl_add_u32 {b}, {x[0]}, 3, {b}')
    k(f's_lshl_b32 s4, {S_WAVE}, 1')
    k(f'v_xor_b32 {x[0]}, s4, {a}'); k(f'v_lshl_add_u32 {vTq0}, {x[0]}, 5, {b}')
    k(f'v_xor_b32 {vTq1}, 32, {vTq0}')
    k(f'v_xor_b32 {x[0]}, {S_WAVE}, {a}'); k(f'v_lshl_add_u32 {vTo0}, {x[0]}, 5, {b}')
    k(f'v_xor_b32 {vTo1}, 128, {vTo0}')
    x.free()
    k(f's_lshl_b32 s40, {S_IDX}, 8'); k(f's_mul_i32 s41, {S_IDX}, {128*1280}'); k(f's_lshl_b32 s42, {S_WAVE}, 10')
    def dma(n):
        u = units[n]; slot = n % 9
        for mm in range(4):
            k(f's_add_u32 m0, s42, {WL + slot * 16384 + mm * 4096}')
            if u[0] == 'O':
                k(f's_add_u32 s5, s41, {(64 * u[2] + 16 * mm) * 1280 + u[1] * 256}')
                k(f'buffer_load_dwordx4 {vWo}, {SR["O"]}, s5 offen' + WFL['chain'] + ' lds')
            else:
                k(f's_add_u32 s5, s40, {(64 * u[1] + 16 * mm) * 8192}')
                k(f'buffer_load_dwordx4 {vWq}, {SR[u[0]]}, s5 offen' + (WFL['chain'] if u[0] == 'Q' else WFL['chainkv']) + ' lds')
    tmp = pool.alloc(16, align=2, name='wtmp')
    ad = pool.alloc(2, name='wad')
    k.manual(True)
    DEPTH = 8
    q = []
    def issue(n):
        dma(n); q.extend([n] * 4)
    for n in range(DEPTH): issue(n)
    for n in range(40):
        u = units[n]; slot = n % 9
        last = max(i for i, e in enumerate(q) if e == n)
        k(f's_waitcnt vmcnt({min(63, len(q) - 1 - last)}) lgkmcnt(0)'); del q[:last + 1]
        k('s_barrier')
        if n + DEPTH < 40 and n >= 0:
            issue(n + DEPTH)
        a0, a1 = (vTo0, vTo1) if u[0] == 'O' else (vTq0, vTq1)
        k(f'v_add_u32 {ad[0]}, {WL + slot * 16384}, {a0}')
        k(f'v_add_u32 {ad[1]}, {WL + slot * 16384}, {a1}')
        dsts = []
        for o, op in enumerate(unit_ops(u)):
            s = SRC[op]
            dst = s[1] if s[0] == 'R' else tmp[8 * o:8 * o + 8]
            dsts.append((s, dst))
            for p in range(4):
                off = (32 * (p >> 1) + 2 * (p & 1)) * 256
                k(f'ds_read_b64_tr_b16 {dst[2*p:2*p+2]}, {ad[o]} offset:{off}')
        kind = dsts[0][0][0]
        if kind == 'G':
            k('s_waitcnt lgkmcnt(0)')
            for s, dst in dsts:
                for hh in range(2):
                    k(f's_add_u32 s5, {S_WSTR}, {s[1] * 2048 + hh * 1024}')
                    k(f'buffer_store_dwordx4 {dst[4*hh:4*hh+4]}, {v16l}, {SRD_WS}, s5 offen'); q.append('st')
            k('s_waitcnt vmcnt(%d)' % 0 if False else 's_nop 1')
        if kind == 'L':
            k('s_waitcnt lgkmcnt(0)')
            k('s_barrier')
            k(f's_lshl_b32 s4, {S_WAVE}, 12')
            k(f'v_add_u32 {ad[0]}, s4, {v16l}')
            k(f'v_add_u32 {ad[0]}, {WL + slot * 16384}, {ad[0]}')
            for o, (s, dst) in enumerate(dsts):
                for hh in range(2):
                    k(f'ds_write_b128 {ad[0]}, {dst[4*hh:4*hh+4]} offset:{o*2048 + hh*1024}')
    k('s_waitcnt vmcnt(0) lgkmcnt(0)')
    k('s_barrier')
    k.manual(False); k.drained()
    t.free(); tmp.free(); ad.free()

def smf(k, acc, A, B): k(f'v_smfmac_f32_16x16x64_bf16 {acc}, {A}, {B}, {vIDX}')

INTEGRATED = False
SAFE = [False]
def stf(): return ' sc1' if SAFE[0] else ''

def role_chain(k):
    pool = Pool('chain', 'v', range(8, 80))
    k(f'v_mov_b32 {vLN}, v2')
    inst_kernarg(k)
    k(f'v_lshlrev_b32 {v16l}, 4, {vLN}')
    k(f's_lshl_b32 s4, {S_INST}, 5'); k(f's_add_u32 s4, s4, {S_IDX}'); k('s_lshl_b32 s4, s4, 2'); k(f's_add_u32 s4, s4, {S_WAVE}')
    k(f's_lshl_b32 s4, s4, 14'); k(f's_add_u32 {S_WSTR}, s4, {WSTR}')
    startup_weights(k, pool)
    if TIMING:
        k('s_memrealtime s[98:99]'); k('s_waitcnt lgkmcnt(0)')
    t = pool.alloc(6, name='init')
    a, b, c_, d = t[0], t[1], t[2], t[3]
    k(f'v_and_b32 {a}, 15, {vLN}'); k(f'v_lshrrev_b32 {b}, 4, {vLN}')
    k(f'v_and_b32 {c_}, 2, {vLN}'); k(f'v_cmp_ne_u32 {M_N2}, 0, {c_}')
    k(f'v_cmp_gt_u32 {M_N8}, 8, {a}'); k(f'v_cmp_gt_u32 {M_N4}, 4, {a}')
    k(f'v_and_b32 {c_}, 1, {vLN}'); k(f'v_cmp_ne_u32 vcc, 0, {c_}')
    k(f'v_mov_b32 {d}, 0x44444444'); k(f'v_mov_b32 {vIDX}, 0xeeeeeeee'); k(f'v_cndmask_b32 {vIDX}, {d}, {vIDX}, vcc')
    k(f's_lshl_b32 s4, {S_WAVE}, 12'); k(f's_add_u32 s4, s4, {WL}'); k(f'v_add_u32 {vBL}, s4, {v16l}')
    k(f's_lshl_b32 s4, {S_WAVE}, 10'); k(f'v_lshlrev_b32 {c_}, 5, {a}'); k(f'v_lshl_add_u32 {c_}, {b}, 3, {c_}'); k(f'v_add_u32 {vXW}, s4, {c_}')
    k(f'v_bfe_u32 {c_}, {vLN}, 2, 2'); k(f'v_lshl_add_u32 {c_}, {b}, 3, {c_}'); k(f'v_lshlrev_b32 {c_}, 5, {c_}')
    k(f'v_and_b32 {d}, 3, {vLN}'); k(f'v_lshl_add_u32 {c_}, {d}, 3, {c_}'); k(f'v_add_u32 {vXR}, s4, {c_}')
    k(f'v_lshrrev_b32 {c_}, 2, {a}'); k(f'v_lshlrev_b32 {c_}, 1, {c_}'); k(f'v_and_b32 {d}, 1, {a}'); k(f'v_or_b32 {c_}, {c_}, {d}')
    k(f'v_lshlrev_b32 {c_}, 1, {c_}'); k(f'v_lshrrev_b32 {d}, 1, {b}'); k(f'v_or_b32 {c_}, {c_}, {d}')
    k(f'v_lshlrev_b32 {c_}, 4, {c_}'); k(f'v_and_b32 {d}, 1, {b}'); k(f'v_lshl_add_u32 {c_}, {d}, 3, {c_}')
    k(f's_lshr_b32 s4, {S_WAVE}, 1'); k('s_lshl_b32 s4, s4, 10'); k(f's_and_b32 s5, {S_WAVE}, 1'); k('s_lshl_b32 s5, s5, 9'); k('s_add_u32 s4, s4, s5')
    k(f'v_add_u32 {vOW}, s4, {c_}')
    k(f'v_lshrrev_b32 {c_}, 2, {a}'); k(f'v_lshlrev_b32 {c_}, 13, {c_}'); k(f'v_and_b32 {d}, 3, {a}'); k(f'v_lshl_add_u32 {d}, {b}, 2, {d}')
    k(f'v_lshl_add_u32 {vPS}, {d}, 4, {c_}')
    k(f's_mov_b32 {S_C}, {hex(f32bits(128 ** -0.5 * math.log2(math.e)))}')
    k(f's_mul_i32 {S_PB}, {S_INST}, {2*PART_BUF}'); k(f's_add_u32 {S_PB}, {S_PB}, {PART}')
    k(f's_mul_i32 {S_MB}, {S_INST}, {3*16384}'); k(f's_add_u32 {S_MB}, {S_MB}, {MEMR}')
    k(f's_lshl_b32 s4, {S_WAVE}, 15'); k(f's_lshl_b32 s5, {S_IDX}, 8'); k(f's_add_u32 {S_PST}, s4, s5')
    k(f's_lshl_b32 s4, {S_WAVE}, 14'); k(f's_lshl_b32 s5, {S_IDX}, 7'); k(f's_add_u32 {S_PST2}, s4, s5'); k(f's_add_u32 {S_PST2}, {S_PST2}, 262144')
    k(f's_mov_b32 {S_RED}, 0')
    k(f's_cmp_eq_u32 {S_WAVE}, 0'); k(f's_cselect_b32 {S_RED}, 1, 0')
    k(f's_cmp_lt_u32 {S_IDX}, 16'); k('s_cselect_b32 s4, 2, 0'); k(f's_cmp_eq_u32 {S_WAVE}, 1'); k(f's_cselect_b32 {S_RED}, s4, {S_RED}')
    k(f's_bfe_u32 s4, {S_IDX}, 0x20002'); k('s_lshl_b32 s4, s4, 8')
    k(f's_bfe_u32 s5, {S_IDX}, 0x10001'); k('s_lshl_b32 s5, s5, 4'); k('s_add_u32 s4, s4, s5')
    k(f's_and_b32 s5, {S_IDX}, 1'); k('s_lshl_b32 s5, s5, 3'); k('s_add_u32 s4, s4, s5')
    k(f's_lshr_b32 s5, {S_IDX}, 4'); k('s_lshl_b32 s5, s5, 12'); k('s_add_u32 s5, s5, s4')
    k('s_add_u32 s4, s4, 8192')
    k(f's_cmp_eq_u32 {S_RED}, 2'); k(f's_cselect_b32 {S_RPUB}, s4, s5')
    k(f's_lshl_b32 s4, {S_IDX}, 12'); k('s_add_u32 s4, s4, 262144'); k(f's_lshl_b32 s5, {S_IDX}, 13')
    k(f's_cmp_eq_u32 {S_RED}, 2'); k(f's_cselect_b32 {S_RLD}, s4, s5')
    k(f's_cmp_eq_u32 {S_RED}, 2'); k(f's_cselect_b64 {M_PUB}, {M_N4}, {M_N8}')
    k(f's_cmp_eq_u32 {S_RED}, 0'); k(f's_cselect_b64 {M_PUB}, 0, {M_PUB}')
    k(f's_cmp_lt_u32 {S_IDX}, 16'); k(f's_cselect_b64 {M_HALFCU}, -1, 0')
    k(f's_cmp_eq_u32 {S_WAVE}, 3'); k(f's_cselect_b64 {M_W3}, 1, 0')
    k(f's_mov_b32 {S_TAG}, 0')
    sl = pool.alloc(1, name='sl'); k(f'v_bfe_u32 {sl}, {vLN}, 1, 3')
    for dd in range(4): k(f'v_cmp_eq_u32 {M_SEL[dd]}, {dd}, {sl}')
    sl.free()
    k(f's_lshl_b32 s4, {S_IDX}, 13'); k(f's_lshl_b32 s5, {S_WAVE}, 11'); k(f's_add_u32 {S_POIF}, s4, s5')
    k(f's_lshl_b32 s4, {S_IDX}, 12'); k(f's_lshl_b32 s5, {S_WAVE}, 10'); k('s_add_u32 s4, s4, s5'); k(f's_add_u32 {S_POIH}, s4, 262144')
    k(f's_lshl_b32 s4, {S_WAVE}, 11'); k(f's_add_u32 {S_TOFF}, s4, {32 * 16384}')
    k('s_mov_b32 s18, -1'); k('s_mov_b32 s19, 0')
    k(f's_lshl_b32 s4, {S_INST}, 11'); k(f's_add_u32 s4, s4, {S_IDX}')
    k(f's_lshl_b32 {S_KX}, s4, 14'); k(f's_lshl_b32 s5, {S_WAVE}, 11'); k(f's_add_u32 {S_KX}, {S_KX}, s5')
    if KVX: k(f's_add_u32 {S_KX}, {S_KX}, {KVX}')
    k(f's_lshl_b32 {S_KVM}, s4, 12'); k(f's_lshl_b32 s5, {S_WAVE}, 10'); k(f's_add_u32 {S_KVM}, {S_KVM}, s5'); k(f's_add_u32 {S_KVM}, {S_KVM}, {KVM}')
    k(f's_lshl_b32 s4, {S_INST}, 5'); k(f's_add_u32 s4, s4, {S_IDX}'); k('s_lshl_b32 s4, s4, 7')
    k(f's_add_u32 {S_FKVM}, s4, {F_KVM}'); k(f's_add_u32 {S_FKVD}, s4, {F_KVD}')
    k(f's_mov_b32 {S_SEG}, 0'); k(f's_mov_b32 {S_KVSEEN}, 0')
    k(f's_lshl_b32 s4, {S_WAVE}, 10'); k(f's_add_u32 {S_TCW}, s4, {MEM + 6144}')
    k(f's_mov_b32 {S_PCUR}, {S_PB}'); k(f's_add_u32 {S_POTH}, {S_PB}, {PART_BUF}')
    k(f's_add_u32 {S_MNEXT}, {S_MB}, 16384'); k(f's_mov_b32 {S_MPOI}, {S_MB}'); k(f's_mov_b32 {S_MPP}, {S_MB}')
    if INTEGRATED:
        chain_init(k, pool)
    load_srd(k, 12, S_KA, 8, MEM0_BYTES)
    k(f'v_bfe_u32 {c_}, {vLN}, 1, 3'); k(f'v_mul_u32_u24 {c_}, 1280, {c_}')
    k(f'v_lshl_add_u32 {c_}, {b}, 5, {c_}'); k(f'v_and_b32 {d}, 1, {vLN}'); k(f'v_lshl_add_u32 {c_}, {d}, 4, {c_}')
    m0r = pool.alloc(12, align=2, name='m0')
    k(f's_lshl_b32 s4, {S_WAVE}, 7')
    for j in range(3):
        k(f's_add_u32 s5, s4, {j * 512}')
        k(f'buffer_load_dwordx4 {m0r[4*j:4*j+4]}, {c_}, s[12:15], s5 offen')
    k(f's_lshl_b32 s4, {S_WAVE}, 10'); k(f'v_add_u32 {d}, s4, {v16l}')
    k(f'ds_write_b128 {d}, {m0r[0:4]} offset:{MEM}')
    k(f'ds_write_b128 {d}, {m0r[4:8]} offset:{MEM + 4096}')
    L1 = k.newlabel('CH_M0')
    k(f's_cmp_ge_u32 {S_WAVE}, 2'); k(f's_cbranch_scc1 {L1}')
    k(f'ds_write_b128 {d}, {m0r[8:12]} offset:{MEM + 8192}')
    k.label(L1)
    z = m0r
    k('s_waitcnt vmcnt(0) lgkmcnt(0)')
    for i in range(4): k(f'v_mov_b32 {z[i]}, 0')
    k(f'ds_write_b128 {v16l}, {z[0:4]} offset:{TC}')
    k('s_waitcnt lgkmcnt(0)')
    k('s_barrier')
    k.drained()
    m0r.free(); t.free()
    for i in range(1, 4): k(f's_add_u32 {S_WS4[i]}, {S_WSTR}, {4096 * i}')
    k(f's_add_u32 {S_VX}, {S_KX}, 8192')
    gload(k, Reg('v', G23, 8), 0)
    k('s_waitcnt vmcnt(0)'); k.drained()
    if TIMING:
        k('s_memtime s[64:65]'); k('s_memrealtime s[66:67]'); k('s_waitcnt lgkmcnt(0)')
        for i in range(8): k(f's_mov_b32 s{80+i}, 0')
    LEND = k.newlabel('CH_END')
    if INTEGRATED:
        vt = pool.alloc(2, name='iw')
        init_wait(k, vt)
        k(f's_lshl_b32 s4, {S_INST}, 2'); k(f'v_mov_b32 {vt[1]}, s4')
        k(f'global_load_dword {vt[0]}, {vt[1]}, {DBG_PTR} sc1'); k('s_waitcnt vmcnt(0)')
        k(f'v_readfirstlane_b32 s6, {vt[0]}')
        k('s_mov_b32 s60, s6')
        k('s_mov_b32 s61, 1'); poll_flag(k, S_FKVD, 's61', vt, 'CH_KV0'); k(f's_mov_b32 {S_KVSEEN}, s6')
        vt.free()
        k.drained()
        LSAFE = k.newlabel('CH_SAFE')
        k('s_cmp_lt_u32 s60, 32'); k(f's_cbranch_scc1 {LSAFE}')
        for safe in (False, True):
            SAFE[0] = safe
            if safe: k.label(LSAFE); k.drained()
            LOOP = k.newlabel('CH_LOOP'); k.label(LOOP)
            step(k, pool, LOOP, LEND)
        SAFE[0] = False
    else:
        LOOP = k.newlabel('CH_LOOP')
        k.label(LOOP)
        step(k, pool, LOOP, LEND)
    k.label(LEND)
    if TIMING:
        k('s_memtime s[68:69]'); k('s_memrealtime s[70:71]'); k('s_waitcnt lgkmcnt(0)')
        k('s_sub_u32 s68, s68, s64'); k('s_sub_u32 s70, s70, s66')
        k('s_load_dwordx2 s[72:73], s[0:1], 120'); k('s_waitcnt lgkmcnt(0)')
        k(f's_lshl_b32 s74, {S_INST}, 5'); k(f's_add_u32 s74, s74, {S_IDX}'); k('s_lshl_b32 s74, s74, 2'); k(f's_add_u32 s74, s74, {S_WAVE}'); k('s_lshl_b32 s74, s74, 6')
        k('v_mov_b32 v8, s74'); k('v_add_u32 v8, 1024, v8')
        k('v_mov_b32 v12, s68'); k('v_mov_b32 v13, s70'); k('v_mov_b32 v14, s66'); k('v_mov_b32 v15, s100')
        k('global_store_dwordx4 v8, v[12:15], s[72:73]')
        for j in range(2):
            for i in range(4): k(f'v_mov_b32 v{16+4*j+i}, ' + ('s98' if (j == 0 and i == 0 and not STAMPS_ON and not TRACE) else f's{80+4*j+i}'))
            k(f'global_store_dwordx4 v8, v[{16+4*j}:{19+4*j}], s[72:73] offset:{16+16*j}')
        k('s_waitcnt vmcnt(0)')

def chain_init(k, pool):
    p = pool.alloc(4, name='ip'); a = pool.alloc(2, name='ia')
    zero_flag(k, S_FKVM, a)
    L = k.newlabel('CI')
    k(f's_cmp_eq_u32 {S_RED}, 0'); k(f's_cbranch_scc1 {L}')
    for i in range(4): k(f'v_mov_b32 {p[i]}, -1')
    for b in range(1):
        k(f's_add_u32 s5, {S_PB}, {S_RLD}')
        if b: k(f's_add_u32 s5, s5, {PART_BUF}')
        for m in range(4): k(f'buffer_store_dwordx4 {p}, {v16l}, {SRD_WS}, s5 offen offset:{m * 1024} sc1')
        L2 = k.newlabel('CI2')
        k(f's_cmp_eq_u32 {S_RED}, 2'); k(f's_cbranch_scc1 {L2}')
        k('s_add_u32 s5, s5, 4096')
        for m in range(4): k(f'buffer_store_dwordx4 {p}, {v16l}, {SRD_WS}, s5 offen offset:{m * 1024} sc1')
        k.label(L2)
    pub_addr(k, a[0], a[1])
    k(f's_cmp_eq_u32 {S_RED}, 2'); k(f's_cselect_b64 exec, {M_N4}, {M_N8}')
    for b in range(3):
        k(f's_add_u32 s5, {S_MB}, {S_RPUB}')
        if b: k(f's_add_u32 s5, s5, {b * 16384}')
        k(f'buffer_store_dwordx2 {p[0:2]}, {a[0]}, {SRD_WS}, s5 offen sc1')
    k('s_mov_b64 exec, -1')
    k.label(L)
    init_arrive(k, a)
    k.drained()
    p.free(); a.free()

def f32bits(x):
    import struct
    return struct.unpack('<I', struct.pack('<f', x))[0]

STAMP = [0]
def stamp(k, i):
    if not TIMING: return
    k('s_memtime s[76:77]'); k('s_waitcnt lgkmcnt(0)')
    k('s_sub_u32 s78, s76, s79'); k(f's_add_u32 s{80+i}, s{80+i}, s78'); k('s_mov_b32 s79, s76')

def gload(k, dst, gi):
    k(f's_add_u32 s5, {S_WSTR}, {gi * 2048}')
    k(f'buffer_load_dwordx4 {dst[0:4]}, {v16l}, {SRD_WS}, s5 offen')
    k(f'buffer_load_dwordx4 {dst[4:8]}, {v16l}, {SRD_WS}, s5 offen offset:1024')

def zero(k, r):
    for i in range(0, r.n, 2): k(f'v_mov_b64 {r[i:i+2]}, 0')

KVF = ' nt'
S_KVSEEN = 's62'
S_TCW = 's63'
S_MPP = 's88'
S_POIF, S_POIH = 's89', 's96'
M_PUB, M_HALFCU, M_W3 = 's[90:91]', 's[92:93]', 's[94:95]'
NLS_O = 2
NPRE = 4
RED_SLEEP = 3
RED_SLEEP_H = 4
PIPE_POLL = True
POLL_GAP = 2
PRE_SLEEP = 0
TOUCH_ON = True
STAMPS_ON = True
COUNT_POLLS = False
FAILHIST = None
ONLY = None
P1_AT = -1
MARK = None
def mark(k, name):
    if TIMING and MARK == name: stamp(k, 0)
    if TIMING and TRACE == name:
        k('s_memrealtime s[76:77]'); k('s_waitcnt lgkmcnt(0)')
        for j in range(8):
            k(f's_cmp_eq_u32 {S_SEG}, {20 + j}'); k(f's_cselect_b32 s{80+j}, s76, s{80+j}')
TRACE = None

def bstamp(k, i):
    if TIMING and STAMPS_ON and (ONLY is None or ONLY == i): stamp(k, i)

S_WS4 = [S_WSTR, 's12', 's13', 's14']
def gload1(k, dst, gi, half):
    off = (gi & 1) * 2048 + half * 1024
    k(f'buffer_load_dwordx4 {dst[4*half:4*half+4]}, {v16l}, {SRD_WS}, {S_WS4[gi >> 1]} offen offset:{off}')

class VStream:
    def __init__(self, k, pool, slot, accv, G):
        self.k, self.pool, self.accv, self.G = k, pool, accv, G
        self.order = [9, 8, 7, 6, 0, 1, 2, 3, 4, 5]
        self.slot = {9: slot[9], 8: slot[8], 7: slot[7]}
        self.slot[6] = slot[9]; self.slot[0] = slot[8]; self.slot[1] = slot[7]
        self.slot[2] = slot[9]; self.slot[3] = slot[7]; self.slot[4] = slot[9]; self.slot[5] = slot[7]
        self.after = {}
        for j, p in {3: 0, 4: 1, 5: 2, 6: 3, 7: 5, 8: 6, 9: 7}.items(): self.after.setdefault(p, []).append(j)
        self.ops = [('V', t, c) for c in self.order for t in range(2)]
        self.lops = [op for op in self.ops if SRC[op][0] == 'L']
        self.li = {op: i for i, op in enumerate(self.lops)}
        self.i = 0; self.LS = None; self.bl = None
    def start_l(self):
        self.LS = [self.pool.alloc_at(8, 8, 'L0'), self.pool.alloc_at(16, 8, 'L1')]
        self.lload(0); self.lload(1)
    def lload(self, n):
        op = self.lops[n]; off = SRC[op][1] * 16384 + SRC[op][2] * 2048
        d = self.LS[n % 2]; ad = vBL
        if off >= 65536:
            if self.bl is None:
                self.bl = self.pool.alloc(1, name='blv'); self.k(f'v_add_u32 {self.bl}, 65536, {vBL}')
            ad = str(self.bl); off -= 65536
        self.k(f'ds_read_b128 {d[0:4]}, {ad} offset:{off}'); self.k(f'ds_read_b128 {d[4:8]}, {ad} offset:{off + 1024}')
    def emit(self, n=1):
        k = self.k
        for _ in range(n):
            if self.i >= len(self.ops): return
            op = self.ops[self.i]; s = SRC[op]; c = op[2]
            Bv = s[1] if s[0] == 'R' else (self.G[op[1]] if s[0] == 'G' else self.LS[self.li[op] % 2])
            smf(k, self.accv[op[1]], self.slot[c], Bv)
            if s[0] == 'L' and self.li[op] + 2 < len(self.lops): self.lload(self.li[op] + 2)
            j = self.i // 2
            if op[1] == 1:
                for jn in self.after.get(j, []):
                    cn = self.order[jn]
                    k(f'ds_read_b128 {self.slot[cn]}, {v16l} offset:{MEM + cn * 1024}')
            self.i += 1
    def finish(self):
        self.emit(100)
        for l_ in self.LS: l_.free()
        if self.bl is not None: self.bl.free()

def poison_ops(k, pz, tag=None):
    def p0():
        k(f'v_mov_b32 {pz[0]}, -1'); k(f'v_mov_b32 {pz[1]}, -1')
        pub_addr(k, pz[2], pz[3])
        k(f's_add_u32 s6, {S_MPP}, {S_RPUB}'); k(f's_mov_b64 exec, {M_PUB}')
        k(f'buffer_store_dwordx2 {pz[0:2]}, {pz[2]}, {SRD_WS}, s6 offen' + stf(), tag=tag)
        k('s_mov_b64 exec, -1')
    def p1():
        k(f's_add_u32 s6, {S_POTH}, {S_POIF}')
        k(f'buffer_store_dwordx4 {pz}, {v16l}, {SRD_WS}, s6 offen' + stf(), tag=tag)
    def p2():
        k(f's_add_u32 s6, {S_POTH}, {S_POIF}')
        k(f'buffer_store_dwordx4 {pz}, {v16l}, {SRD_WS}, s6 offen offset:1024' + stf(), tag=tag)
    def p3():
        k(f's_add_u32 s6, {S_POTH}, {S_POIH}'); k(f's_mov_b64 exec, {M_HALFCU}')
        k(f'buffer_store_dwordx4 {pz}, {v16l}, {SRD_WS}, s6 offen' + stf(), tag=tag)
        k('s_mov_b64 exec, -1')
    return [p0]

def step(k, pool, LOOP, LEND):
    if TIMING and STAMPS_ON:
        k('s_memtime s[76:77]'); k('s_waitcnt lgkmcnt(0)'); k('s_mov_b32 s79, s76')
    G0, G1 = pool.alloc_at(G01, 8, 'G0'), pool.alloc_at(G01 + 8, 8, 'G1')
    G2, G3 = pool.alloc_at(G23, 8, 'G2'), pool.alloc_at(G23 + 8, 8, 'G3')
    k.pending_vm([G2[0:4], G2[4:8]])
    pz = pool.alloc_at(44, 4, 'pz')
    accq = [pool.alloc_at(8, 4, 'q0'), pool.alloc_at(12, 4, 'q1')]
    acck = [pool.alloc_at(16, 4, 'k0'), pool.alloc_at(24, 4, 'k1')]
    A = [pool.alloc_at(28, 4, 'A0'), pool.alloc_at(32, 4, 'A1'), pool.alloc_at(20, 4, 'A2')]
    KX = pool.alloc_at(36, 8, 'KX')
    slot = {c: A[c % 3] for c in range(10)}
    def rdA(c): k(f'ds_read_b128 {slot[c]}, {v16l} offset:{MEM + c * 1024}')
    rdA(0); rdA(1)
    for r in accq + acck: zero(k, r)
    gmap = {('K', 0, 9): G2, ('K', 1, 9): G3, ('Q', 0, 9): G0, ('Q', 1, 9): G1}
    def B(op):
        s = SRC[op]
        return s[1] if s[0] == 'R' else gmap[op]
    def kx(h): k(f'buffer_load_dwordx4 {KX[4*h:4*h+4]}, {v16l}, {SRD_WS}, {S_KX} offen offset:{1024*h}' + KVF)
    vm = {0: lambda: gload1(k, G3, 1, 0), 1: lambda: gload1(k, G3, 1, 1), 2: lambda: gload1(k, G0, 2, 0), 3: lambda: gload1(k, G0, 2, 1),
          4: lambda: gload1(k, G1, 3, 0), 5: lambda: gload1(k, G1, 3, 1), 6: lambda: None, 7: lambda: kx(0), 8: lambda: kx(1)}
    for c in range(9):
        if c + 2 < 10: rdA(c + 2)
        if TIMING and P1_AT == c: stamp(k, 0)
        for t in range(2): smf(k, acck[t], slot[c], B(('K', t, c)))
        vm[c]()
        for t in range(2): smf(k, accq[t], slot[c], B(('Q', t, c)))
    for t in range(2): smf(k, acck[t], slot[9], B(('K', t, 9)))
    accv = [G2[0:4], G2[4:8]]
    zero(k, G2)
    VX = G3
    k(f'buffer_load_dwordx4 {VX[0:4]}, {v16l}, {SRD_WS}, {S_VX} offen' + KVF)
    for t in range(2): smf(k, accq[t], slot[9], B(('Q', t, 9)))
    G0.free(); G1.free()
    bstamp(k, 0)
    V = VStream(k, pool, slot, accv, None)
    V.emit(2)
    W = pool.alloc_at(64, 4, 'W')
    KV4 = pool.alloc_at(68, 4, 'KV4')
    TCH = pool.alloc_at(76, 2, 'touch')
    for t in range(2):
        a = acck[t]
        k(f'v_add_f32 {a[0]}, {a[0]}, {a[1]}'); k(f'v_add_f32 {a[2]}, {a[2]}, {a[3]}')
        k(f'v_cvt_pk_bf16_f32 {W[2*t]}, {a[0]}, {a[2]}')
    k(f'buffer_load_dwordx4 {VX[4:8]}, {v16l}, {SRD_WS}, {S_VX} offen offset:1024' + KVF)
    V.emit(2)
    for t in range(2):
        a = accq[t]
        k(f'v_add_f32 {a[0]}, {a[0]}, {a[1]}'); k(f'v_add_f32 {a[2]}, {a[2]}, {a[3]}')
        k(f'v_cvt_pk_bf16_f32 {W[2*t+1]}, {a[0]}, {a[2]}')
        k(f'ds_write_b64 {vXW}, {W[2*t:2*t+2]} offset:{XQK + t * 512}')
    for r in accq + acck: r.free()
    if TOUCH_ON:
        k(f'v_lshlrev_b32 {TCH[1]}, 3, {v16l}')
        k(f's_add_u32 s5, {S_KX}, {S_TOFF}')
        if INTEGRATED:
            k(f's_add_u32 s6, {S_SEG}, 2'); k(f's_cmp_ge_u32 {S_KVSEEN}, s6'); k('s_cselect_b64 exec, s[18:19], 0')
        else:
            k('s_mov_b64 exec, 0xffffffff')
        k(f'buffer_load_dword {TCH[0]}, {TCH[1]}, {SRD_WS}, s5 offen')
        k('s_mov_b64 exec, -1')
    V.emit(2)
    for t in range(2): k(f'v_mov_b32 {KV4[2*t]}, {W[2*t]}')
    if INTEGRATED:
        k(f'buffer_load_dword {TCH[1]}, off, {SRD_WS}, {S_FKVD} sc1')
    k('s_waitcnt lgkmcnt(0)'); k('s_barrier'); k.drained(vm=False)
    bstamp(k, 1)
    X0 = pool.alloc_at(8, 4, 'X0'); XR = [pool.alloc_at(12, 4, 'Xa'), pool.alloc_at(16, 4, 'Xb')]
    xa = KV4[1]
    def rdX(dst, m):
        ad = vXR
        if m:
            k(f'v_xor_b32 {xa}, {m * 1024}, {vXR}'); ad = str(xa)
        k(f'ds_read_b64_tr_b16 {dst[0:2]}, {ad} offset:{XQK}')
        k(f'ds_read_b64_tr_b16 {dst[2:4]}, {ad} offset:{XQK + 128}')
    rdX(X0, 0); rdX(XR[0], 1); rdX(XR[1], 2)
    k(f's_sub_u32 s5, {S_KVM}, {32 * 4096}')
    k(f's_cmp_lg_u32 {S_SEG}, 0'); k('s_cselect_b64 exec, -1, 0')
    k(f'buffer_store_dwordx4 {pz}, {v16l}, {SRD_WS}, s5 offen sc1')
    k('s_mov_b64 exec, -1')
    X3 = W
    rdX(X3, 3)
    V.emit(2)
    k(f's_sub_u32 s6, {S_SEG}, 1'); k(f's_max_i32 s6, s6, 0')
    k(f'v_mov_b32 {xa}, s6')
    k(f's_cmp_lt_u32 {S_SEG}, 63'); k(f's_cselect_b64 exec, {M_W3}, 0')
    k(f'buffer_store_dword {xa}, {v16l}, {SRD_WS}, {S_FKVM} offen sc1')
    k('s_mov_b64 exec, -1')
    TX = [pool.alloc_at(24, 4, 'TX0'), pz]
    TM = pool.alloc_at(72, 4, 'TM')
    for t in range(2): k(f'v_mfma_f32_16x16x32_bf16 {TX[t]}, {KX[4*t:4*t+4]}, {X0}, 0')
    k(f'v_mfma_f32_16x16x32_bf16 {TM}, {X0}, {X0}, 0')
    k(f'v_mfma_f32_16x16x32_bf16 {TM}, {XR[0]}, {XR[0]}, {TM}')
    k(f'v_mfma_f32_16x16x32_bf16 {TM}, {XR[1]}, {XR[1]}, {TM}')
    k(f'v_mfma_f32_16x16x32_bf16 {TM}, {X3}, {X3}, {TM}')
    V.emit(2)
    for x_ in XR + [X0, KX, X3]: x_.free()
    A[2].free()
    V.start_l()
    k(f's_mov_b64 vcc, {M_N2}')
    k(f'v_add_u32 {xa}, {S_TCW}, {v16l}')
    for r in range(4):
        k(f'v_cndmask_b32_dpp {TX[0][r]}, {TX[1][r]}, {TX[0][r]}, vcc quad_perm:[2,3,2,3] row_mask:0xf bank_mask:0xf')
    k(f'ds_write_b128 {xa}, {TX[0]}')
    V.emit(2)
    k('s_waitcnt lgkmcnt(0)'); k('s_barrier'); k.drained(vm=False)
    bstamp(k, 2)
    S = TX[0]; S1 = TX[1]; S2 = pool.alloc_at(36, 4, 'S2'); S3 = pool.alloc_at(40, 4, 'S3')
    for m, dst in ((1, S1), (2, S2), (3, S3)):
        k(f'v_xor_b32 {dst[0]}, {m * 1024}, {xa}')
        k(f'ds_read_b128 {dst}, {dst[0]}')
    mx, t1 = TM[2], TM[3]
    k(f'v_mov_b32 {t1}, 0xff800000')
    k(f'v_cndmask_b32 {TM[0]}, {t1}, {TM[0]}, vcc')
    k(f'v_cndmask_b32 {TM[1]}, {t1}, {TM[1]}, vcc')
    k(f'v_max_f32 {mx}, {TM[0]}, {TM[1]}')
    pz2 = pool.alloc_at(64, 4, 'pz2')
    po = poison_ops(k, pz2, tag='poison')
    po[0](); pz2.free()
    V.emit(2)
    for h_ in range(2): k(f'v_pk_add_f32 {S[2*h_:2*h_+2]}, {S[2*h_:2*h_+2]}, {S1[2*h_:2*h_+2]}')
    for h_ in range(2): k(f'v_pk_add_f32 {S2[2*h_:2*h_+2]}, {S2[2*h_:2*h_+2]}, {S3[2*h_:2*h_+2]}')
    for h_ in range(2): k(f'v_pk_add_f32 {S[2*h_:2*h_+2]}, {S[2*h_:2*h_+2]}, {S2[2*h_:2*h_+2]}')
    for r_ in (S1, S2, S3): r_.free()
    mark(k, 'adds')
    k(f'v_max3_f32 {mx}, {mx}, {S[0]}, {S[1]}'); k(f'v_max3_f32 {mx}, {mx}, {S[2]}, {S[3]}')
    V.emit(2)
    k(f'v_max_f32_dpp {mx}, {mx}, {mx} quad_perm:[2,3,0,1] row_mask:0xf bank_mask:0xf')
    k(f'v_mov_b32 {t1}, {mx}')
    k(f'v_permlane16_swap_b32 {mx}, {t1}'); k(f'v_max_f32 {mx}, {mx}, {t1}')
    k(f'v_mov_b32 {t1}, {mx}')
    V.emit(1)
    k(f'v_permlane32_swap_b32 {mx}, {t1}'); k(f'v_max_f32 {mx}, {mx}, {t1}')
    k(f'v_mul_f32 {mx}, {S_C}, {mx}')
    mark(k, 'max')
    V.emit(1)
    for r in range(4): k(f'v_fma_f32 {S[r]}, {S[r]}, {S_C}, -{mx}')
    for r in range(2): k(f'v_fma_f32 {TM[r]}, {TM[r]}, {S_C}, -{mx}')
    for r in range(4): k(f'v_exp_f32 {S[r]}, {S[r]}')
    for r in range(2): k(f'v_exp_f32 {TM[r]}, {TM[r]}')
    mark(k, 'exp')
    V.finish()
    mark(k, 'vfin')
    A[0].free(); A[1].free()
    GOa = [pool.alloc_at(8, 8, 'GOa0'), pool.alloc_at(16, 8, 'GOa1')]
    gload1(k, GOa[0], 4, 0)
    P = pool.alloc_at(28, 4, 'P'); BM = pool.alloc_at(64, 2, 'BM')
    ONE = pool.alloc_at(40, 4, 'one'); L4 = pool.alloc_at(44, 4, 'L4')
    k(f'v_cvt_pk_bf16_f32 {P[0]}, {S[0]}, {S[1]}'); k(f'v_cvt_pk_bf16_f32 {P[1]}, {S[2]}, {S[3]}')
    k(f'v_mov_b32 {BM[0]}, 0'); k(f'v_cvt_pk_bf16_f32 {BM[1]}, {TM[0]}, {TM[1]}')
    k(f'v_mov_b32_dpp {P[2]}, {P[0]} quad_perm:[0,1,0,1] row_mask:0xf bank_mask:0xf')
    k(f'v_mov_b32_dpp {P[3]}, {P[1]} quad_perm:[0,1,0,1] row_mask:0xf bank_mask:0xf')
    O = [pool.alloc_at(32, 4, 'O0'), pool.alloc_at(36, 4, 'O1')]
    for i in range(4): k(f'v_mov_b32 {ONE[i]}, 0x3f803f80')
    gload1(k, GOa[0], 4, 1)
    for t in range(2): k(f'v_mfma_f32_16x16x32_bf16 {O[t]}, {VX[4*t:4*t+4]}, {P}, 0')
    k(f'v_mfma_f32_16x16x32_bf16 {L4}, {ONE}, {P}, 0')
    for t in range(2):
        k(f'v_add_f32 {accv[t][0]}, {accv[t][0]}, {accv[t][1]}'); k(f'v_add_f32 {accv[t][2]}, {accv[t][2]}, {accv[t][3]}')
        k(f'v_cvt_pk_bf16_f32 {KV4[2*t+1]}, {accv[t][0]}, {accv[t][2]}')
    k(f'v_mfma_f32_16x16x16_bf16 {L4}, {ONE[0:2]}, {BM}, {L4}')
    mark(k, 'pvx')
    gload1(k, GOa[1], 5, 0)
    for t in range(2): k(f'v_mfma_f32_16x16x16_bf16 {O[t]}, {KV4[2*t:2*t+2]}, {BM}, {O[t]}')
    ONE.free()
    ls = L4[0]
    G2.free()
    LCONT = k.newlabel('CH_CONT')
    k(f's_cmp_lt_u32 {S_SEG}, 62'); k(f's_cbranch_scc1 {LCONT}')
    k.save()
    k(f'buffer_store_dwordx4 {KV4}, {v16l}, {SRD_WS}, {S_KVM} offen sc1')
    k('s_waitcnt vmcnt(0)'); k('s_barrier')
    k(f's_add_u32 s6, {S_SEG}, 1')
    flag_store(k, pool, S_FKVM, 's6')
    k(f's_cmp_eq_u32 {S_SEG}, 62'); k(f's_cbranch_scc1 {LCONT}')
    k('s_waitcnt vmcnt(0)')
    k(f's_branch {LEND}')
    k.restore()
    k.label(LCONT)
    gload1(k, GOa[1], 5, 1)
    k(f'v_rcp_f32 {ls}, {ls}')
    mark(k, 'rcp')
    G3.free()
    GOb = [pool.alloc_at(56, 8, 'GOb0'), None]
    gload1(k, GOb[0], 6, 0)
    for t in range(2):
        for h_ in range(2): k(f'v_pk_mul_f32 {O[t][2*h_:2*h_+2]}, {O[t][2*h_:2*h_+2]}, {L4[0:2]} op_sel_hi:[1,0]')
        k(f'v_cvt_pk_bf16_f32 {P[2*t]}, {O[t][0]}, {O[t][1]}'); k(f'v_cvt_pk_bf16_f32 {P[2*t+1]}, {O[t][2]}, {O[t][3]}')
    k(f's_mov_b64 exec, {M_N2}')
    for t in range(2): k(f'ds_write_b64 {vOW}, {P[2*t:2*t+2]} offset:{OX + t * 256}')
    k('s_mov_b64 exec, -1')
    mark(k, 'oxw')
    gload1(k, GOb[0], 6, 1)
    for r in (S, TM, BM, O[0], O[1], L4): r.free()
    LS = [pool.alloc_at(32, 8, 'L0'), pool.alloc_at(48, 8, 'L1')]
    bl = pool.alloc_at(78, 1, 'blo')
    k(f'v_add_u32 {bl}, 81920, {vBL}')
    oops = [('O', i, c2) for i in range(10) for c2 in range(2)]
    lops = [op for op in oops if SRC[op][0] == 'L']
    li = {op: i for i, op in enumerate(lops)}
    def lload(n):
        op = lops[n]; base = (SRC[op][1] - 5) * 16384 + SRC[op][2] * 2048
        k(f'ds_read_b128 {LS[n % NLS_O][0:4]}, {bl} offset:{base}'); k(f'ds_read_b128 {LS[n % NLS_O][4:8]}, {bl} offset:{base + 1024}')
    for n in range(NLS_O): lload(n)
    P.free()
    GOb[1] = pool.alloc_at(24, 8, 'GOb1')
    AO = [pool.alloc_at(40, 4, 'AO0'), pool.alloc_at(44, 4, 'AO1')]
    acc = {0: pool.alloc_at(64, 4, 'o0'), 1: pool.alloc_at(72, 4, 'o1')}
    for i in range(2): zero(k, acc[i])
    mark(k, 'preb3')
    k('s_waitcnt lgkmcnt(0)'); k('s_barrier'); k.drained(vm=False)
    for c2 in range(2): k(f'ds_read_b128 {AO[c2]}, {v16l} offset:{OX + c2 * 1024}')
    bstamp(k, 3)
    mark(k, 'b3')
    if INTEGRATED:
        k(f'v_readfirstlane_b32 s6, {TCH[1]}'); k(f's_max_u32 {S_KVSEEN}, {S_KVSEEN}, s6')
    TCH.free()
    def epi(i):
        a = acc[i]; q = acc[i & ~3]
        k(f'v_add_f32 {a[0]}, {a[0]}, {a[1]}'); k(f'v_add_f32 {a[2]}, {a[2]}, {a[3]}')
        k(f'v_cvt_pk_bf16_f32 {q[i & 3]}, {a[0]}, {a[2]}')
        k(f'v_bfi_b32 {q[i & 3]}, 1, {S_TAG}, {q[i & 3]}')
        if i & 3: a.free()
        if i in (3, 7):
            k(f's_add_u32 s5, {S_PCUR}, {S_PST}')
            if i == 7: k(f's_add_u32 s5, s5, {16 * 8192}')
            k(f'buffer_store_dwordx4 {q}, {vPS}, {SRD_WS}, s5 offen' + stf()); q.free()
        if i == 9:
            h2 = pool.alloc(1, name='ps2'); k(f'v_lshrrev_b32 {h2}, 1, {vPS}')
            k(f's_add_u32 s5, {S_PCUR}, {S_PST2}')
            k(f'buffer_store_dwordx2 {q[0:2]}, {h2}, {SRD_WS}, s5 offen' + stf()); h2.free(); q.free()
    gmap = {('O', 0, 1): GOa[0], ('O', 1, 1): GOa[1], ('O', 8, 1): GOb[0], ('O', 9, 1): GOb[1]}
    def grab(nx):
        if nx < 10 and nx not in acc:
            try: acc[nx] = pool.alloc(4, name=f'o{nx}')
            except RuntimeError: return False
            zero(k, acc[nx])
        return True
    for i in range(10):
        assert grab(i), (i, sorted(pool.free), {r: pool.names.get(r) for r in sorted(pool.all - set(pool.free))})
        for c2 in range(2):
            op = ('O', i, c2); s = SRC[op]
            Bv = s[1] if s[0] == 'R' else (gmap[op] if s[0] == 'G' else LS[li[op] % NLS_O])
            smf(k, acc[i], AO[c2], Bv)
            if s[0] == 'L' and li[op] + NLS_O < len(lops): lload(li[op] + NLS_O)
        mark(k, 'r%d' % i)
        if i == 0: gload1(k, GOb[1], 7, 0)
        if i == 1: gload1(k, GOb[1], 7, 1)
        if i < 2: GOa[i].free()
        if i >= 2: epi(i - 2)
        for nx in (i + 1, i + 2, i + 3): grab(nx)
    epi(8); epi(9)
    for r in AO + LS + GOb + [bl]: r.free()
    KVP = pool.alloc_at(44, 4, 'KVprev')
    for i in range(4): k(f'v_mov_b32 {KVP[i]}, {KV4[i]}')
    KV4.free()
    bstamp(k, 4)
    mark(k, 'oend')
    hops(k, pool)
    KVP.free()
    mark(k, 'b0')
    bstamp(k, 5)
    k(f's_add_u32 {S_SEG}, {S_SEG}, 1')
    k(f's_add_u32 {S_KX}, {S_KX}, {32 * 16384}'); k(f's_add_u32 {S_KVM}, {S_KVM}, {32 * 4096}'); k(f's_add_u32 {S_VX}, {S_VX}, {32 * 16384}')
    k(f's_xor_b32 {S_TAG}, {S_TAG}, 1')
    k(f's_mov_b32 {S_MPP}, {S_MPOI}')
    k(f's_mov_b32 {S_MPOI}, {S_MNEXT}')
    k(f's_add_u32 {S_MNEXT}, {S_MNEXT}, 16384'); k(f's_sub_u32 s5, {S_MNEXT}, {S_MB}'); k('s_cmp_eq_u32 s5, 49152')
    k(f's_cselect_b32 {S_MNEXT}, {S_MB}, {S_MNEXT}')
    if DBG_STEPS:
        k(f's_cmp_ge_u32 {S_SEG}, {DBG_STEPS}'); k(f's_cbranch_scc1 {LEND}')
    k(f's_branch {LOOP}')

KVM_EARLY = False
S_TOFF = 's97'
S_VX = 's15'
S_TCH = 's16'
def hops(k, pool):
    LPOLL, LNR = k.newlabel('HP_POLL'), k.newlabel('HP_NR')
    G2 = pool.alloc_at(G23, 8, 'G2')
    k.manual(True)
    k(f's_cmp_eq_u32 {S_RED}, 0'); k(f's_cbranch_scc1 {LNR}')
    G2.free()
    hop1(k, pool)
    G2 = pool.alloc_at(G23, 8, 'G2')
    k(f's_branch {LPOLL}')
    k.label(LNR)
    if INTEGRATED:
        LSEEN = k.newlabel('HP_SEEN')
        k(f's_cmp_lg_u32 {S_WAVE}, 3'); k(f's_cbranch_scc1 {LSEEN}')
        k(f's_add_u32 s61, {S_SEG}, 2'); k('s_min_u32 s61, s61, 64')
        k(f's_cmp_ge_u32 {S_KVSEEN}, s61'); k(f's_cbranch_scc1 {LSEEN}')
        vt = pool.alloc(2, name='kvp')
        poll_flag(k, S_FKVD, 's61', vt, 'CH_KV')
        k(f's_mov_b32 {S_KVSEEN}, s6')
        vt.free()
        k.label(LSEEN)
    k.label(LPOLL)
    k('s_barrier')
    if PRE_SLEEP: k(f's_sleep {PRE_SLEEP}')
    dS = [pool.alloc_at(56, 12, 'mlandA'), pool.alloc_at(68, 12, 'mlandB')]; t = pool.alloc(2, name='h2t')
    k(f's_lshl_b32 s4, {S_WAVE}, 1'); k(f's_cmp_eq_u32 {S_WAVE}, 3'); k('s_cselect_b32 s4, 7, s4'); k('s_lshl_b32 s4, s4, 10')
    k(f's_add_u32 s5, {S_MNEXT}, s4')
    k(f'v_add_u32 {t[1]}, s4, {v16l}')
    k('s_mov_b32 s7, 0')
    L3, L2, LD = k.newlabel('H2_3'), k.newlabel('H2_2'), k.newlabel('H2_D')
    k(f's_cmp_ge_u32 {S_WAVE}, 2'); k(f's_cbranch_scc1 {L3}')
    for n, L in ((2, L2), (3, L3)):
        k.label(L)
        def issue(d):
            for j in range(n): k(f'buffer_load_dwordx4 {d[4*j:4*j+4]}, {v16l}, {SRD_WS}, s5 offen offset:{j * 1024} sc1')
        def check(d, LOK):
            k(f'v_max3_u32 {t[0]}, {d[0]}, {d[1]}, {d[2]}')
            rest = list(range(3, 4 * n))
            while rest:
                if len(rest) >= 2: k(f'v_max3_u32 {t[0]}, {t[0]}, {d[rest[0]]}, {d[rest[1]]}'); rest = rest[2:]
                else: k(f'v_max_u32 {t[0]}, {t[0]}, {d[rest[0]]}'); rest = rest[1:]
            k(f'v_cmp_eq_u32 vcc, -1, {t[0]}')
            k(f's_cbranch_vccz {LOK}')
        LL, LA, LB = k.newlabel('H2_L'), k.newlabel('H2_A'), k.newlabel('H2_B')
        if PIPE_POLL:
            issue(dS[0])
            if POLL_GAP: k(f's_sleep {POLL_GAP}')
            k.label(LL)
            issue(dS[1])
            k(f's_waitcnt vmcnt({n})'); check(dS[0], LA)
            issue(dS[0])
            k(f's_waitcnt vmcnt({n})'); check(dS[1], LB)
            k('s_add_u32 s7, s7, 1'); k('s_cmp_gt_u32 s7, ' + hex(SPIN)); k(f's_cbranch_scc0 {LL}')
            k('s_waitcnt vmcnt(0)')
        else:
            k.label(LL)
            issue(dS[0])
            k('s_waitcnt vmcnt(0)'); check(dS[0], LA)
            k('s_add_u32 s7, s7, 1'); k('s_cmp_gt_u32 s7, ' + hex(SPIN)); k(f's_cbranch_scc0 {LL}')
        for d, LX in ((dS[0], LA), (dS[1], LB)):
            k.label(LX)
            mark(k, 'memok')
            for j in range(n): k(f'ds_write_b128 {t[1]}, {d[4*j:4*j+4]} offset:{MEM + j * 1024}')
            k(f's_branch {LD}')
    k.label(LD)
    gload1(k, G2, 0, 0); gload1(k, G2, 0, 1)
    dS[0].free(); dS[1].free(); t.free()
    k('s_waitcnt lgkmcnt(0)'); k('s_barrier')
    k.manual(False); k.drained()
    G2.free()

def flag_store(k, pool, s_off, val):
    f = pool.alloc(2, name='flag')
    k(f'v_mov_b32 {f[0]}, {val}'); k(f'v_mov_b32 {f[1]}, 0')
    k('s_mov_b64 exec, 1')
    k(f'buffer_store_dword {f[0]}, {f[1]}, {SRD_WS}, {s_off} offen sc1')
    k('s_mov_b64 exec, -1')
    f.free()

def pub_addr(k, dst, tmp):
    k(f'v_bfe_u32 {dst}, {vLN}, 1, 3'); k(f'v_lshlrev_b32 {dst}, 10, {dst}')
    k(f'v_lshrrev_b32 {tmp}, 4, {vLN}'); k(f'v_lshl_add_u32 {dst}, {tmp}, 6, {dst}')
    k(f'v_and_b32 {tmp}, 1, {vLN}'); k(f'v_lshl_add_u32 {dst}, {tmp}, 5, {dst}')

S_TAG = 's17'
M_SEL = ['s[20:21]', 's[22:23]', 's[40:41]', 's[42:43]']
def hop1(k, pool):
    LFULL, LHALF, LPUB = k.newlabel('H1_F'), k.newlabel('H1_H'), k.newlabel('H1_P')
    dA = pool.alloc_at(8, 16, 'landA'); dB = pool.alloc_at(G23, 16, 'landB')
    class DD:
        def __getitem__(self, x):
            if isinstance(x, slice):
                a, b = x.start, x.stop
                return dA[a:b] if a < 16 else dB[a - 16:b - 16]
            return dA[x] if x < 16 else dB[x - 16]
        def free(self): dA.free(); dB.free()
    d = DD(); sel = pool.alloc(4, name='sel'); acc = pool.alloc(4, name='racc'); t = pool.alloc(3, name='h1t')
    def setup():
        k(f'v_and_b32 {t[0]}, 1, {vLN}'); k(f'v_lshlrev_b32 {t[0]}, 4, {t[0]}'); k(f'v_mov_b32 {t[1]}, 0x3f80'); k(f'v_lshlrev_b32 {t[0]}, {t[0]}, {t[1]}')
        for dd in range(4): k(f'v_cndmask_b32 {sel[dd]}, 0, {t[0]}, {M_SEL[dd]}')
        pub_addr(k, t[0], t[1])
    k(f's_add_u32 s5, {S_PCUR}, {S_RLD}'); k('s_add_u32 s6, s5, 4096')
    k('s_mov_b32 s7, 0')
    setup()
    k(f's_cmp_eq_u32 {S_RED}, 2'); k(f's_cbranch_scc1 {LHALF}')
    def poll(L, nload, width, op, mf, slp):
        L0, L1 = k.newlabel(L + '0'), k.newlabel(L + '1')
        if slp: k(f's_sleep {slp}')
        k(f's_cmp_eq_u32 {S_TAG}, 1'); k(f's_cbranch_scc1 {L1}')
        for tag, LL in ((0, L0), (1, L1)):
            k.label(LL)
            for m in range(nload):
                if width == 4:
                    k(f'buffer_load_dwordx4 {d[4*m:4*m+4]}, {v16l}, {SRD_WS}, {"s5" if m < 4 else "s6"} offen offset:{(m % 4) * 1024} sc1')
                else:
                    k(f'buffer_load_dwordx2 {d[2*m:2*m+2]}, {t[2]}, {SRD_WS}, s5 offen offset:{m * 512} sc1')
            k('s_add_u32 s7, s7, 1')
            red = 'bitop3:0x80' if tag else 'bitop3:0xfe'
            for m in range(nload):
                k(f's_waitcnt vmcnt({nload - 1 - m})')
                dm = d[width*m:width*m+width]
                k(f'{mf} {acc}, {dm}, {sel[0:width]}, ' + ('0' if m == 0 else str(acc)))
                for h_ in range(width // 2):
                    if m == 0 and h_ == 0:
                        k(f'v_and_b32 {t[1]}, {dm[0]}, {dm[1]}' if tag else f'v_or_b32 {t[1]}, {dm[0]}, {dm[1]}')
                    else:
                        k(f'v_bitop3_b32 {t[1]}, {t[1]}, {dm[2*h_]}, {dm[2*h_+1]} {red}')
            k(f'v_and_b32 {t[1]}, 1, {t[1]}')
            k(f'v_cmp_ne_u32 vcc, {tag}, {t[1]}')
            k(f's_cbranch_vccz {LPUB}')
            if TIMING and FAILHIST and width == 4:
                for m in range(nload):
                    dm = d[4*m:4*m+4]
                    opn = 'v_and_b32' if tag else 'v_or_b32'
                    k(f'{opn} {t[1]}, {dm[0]}, {dm[1]}'); k(f'{opn} {t[1]}, {t[1]}, {dm[2]}'); k(f'{opn} {t[1]}, {t[1]}, {dm[3]}')
                    k(f'v_and_b32 {t[1]}, 1, {t[1]}'); k(f'v_cmp_ne_u32 vcc, {tag}, {t[1]}'); k('s_nop 4')
                    if FAILHIST == 'm':
                        k('s_cmp_lg_u64 vcc, 0'); k('s_cselect_b32 s78, 1, 0'); k(f's_add_u32 s{80+m}, s{80+m}, s78')
                    else:
                        for G in range(4):
                            k(f's_lshr_b64 s[78:79], vcc, {16*G}'); k('s_and_b32 s78, s78, 0xffff'); k('s_cmp_lg_u32 s78, 0'); k('s_cselect_b32 s78, 1, 0'); k(f's_add_u32 s{80+G}, s{80+G}, s78')
                        k('s_bcnt1_i32_b64 s78, vcc'); k('s_add_u32 s84, s84, s78')
            k('s_cmp_gt_u32 s7, ' + hex(SPIN)); k(f's_cbranch_scc0 {LL}')
            k(f's_branch {LPUB}')
    poll('H1_F', 8, 4, None, 'v_mfma_f32_16x16x32_bf16', RED_SLEEP)
    k.label(LHALF)
    k(f'v_lshrrev_b32 {t[2]}, 1, {v16l}')
    poll('H1_H', 8, 2, None, 'v_mfma_f32_16x16x16_bf16', RED_SLEEP_H)
    k.label(LPUB)
    mark(k, 'lpub')
    bstamp(k, 6)
    if TIMING and COUNT_POLLS: k('s_add_u32 s86, s86, s7')
    k('s_nop 4')
    k(f'v_cvt_pk_bf16_f32 {d[0]}, {acc[0]}, {acc[1]}'); k(f'v_cvt_pk_bf16_f32 {d[1]}, {acc[2]}, {acc[3]}')
    k(f'v_min_u32 {d[0]}, 0xfffffffe, {d[0]}'); k(f'v_min_u32 {d[1]}, 0xfffffffe, {d[1]}')
    k(f's_add_u32 s5, {S_MNEXT}, {S_RPUB}')
    k(f's_mov_b64 exec, {M_PUB}')
    k(f'buffer_store_dwordx2 {d[0:2]}, {t[0]}, {SRD_WS}, s5 offen' + stf())
    k('s_mov_b64 exec, -1')
    for r in (sel, d, acc, t): r.free()
```

```python
from common import *
from role_kv import emit_x_dma_setup, emit_x_frag_addr, x_dma, emit_group
import math, struct
TIMING = False
SPIN = 0x40000
def f32bits(x): return struct.unpack('<I', struct.pack('<f', x))[0]

XB = 0
QF = 81920
KVXB = 98304
KVMB = 131072
WRING = 0

def poll_flag(k, s_off, s_need, vt, label_base, sleep=1):
    L, LX = k.newlabel(label_base), k.newlabel(label_base + 'X')
    k(f'v_mov_b32 {vt[1]}, 0')
    k('s_mov_b32 s7, 0')
    k.label(L)
    k(f'buffer_load_dword {vt[0]}, {vt[1]}, {SRD_WS}, {s_off} offen sc1')
    k('s_add_u32 s7, s7, 1'); k(f's_cmp_gt_u32 s7, {hex(SPIN)}'); k(f's_cbranch_scc1 {LX}')
    k('s_waitcnt vmcnt(0)')
    k(f'v_readfirstlane_b32 s6, {vt[0]}')
    k(f's_cmp_ge_u32 s6, {s_need}')
    k(f's_cbranch_scc1 {LX}')
    if sleep: k(f's_sleep {sleep}')
    k(f's_branch {L}')
    k.label(LX)
    k('s_waitcnt vmcnt(0)')

def role_qatt(k, use_flags=True, integrated=False):
    vL, vXD, vST, vW, v16 = 'v2', 'v3', 'v8', 'v9', 'v1'
    vXA = ['v4', 'v5', 'v6', 'v7']
    vT = 'v10'
    t0, t1, t2 = 'v12', 'v13', 'v14'
    vKM = 'v11'
    SRD_X, SRD_W = 's[12:15]', 's[16:19]'
    wf = lambda t: Reg('a', 4 * t, 4)
    inst_kernarg(k)
    if integrated:
        k(f's_lshl_b32 s4, {S_INST}, 5'); k(f's_add_u32 s4, s4, {S_IDX}'); k('s_lshl_b32 s4, s4, 7'); k(f's_add_u32 s4, s4, {F_OD}')
        zero_flag(k, 's4', ['v12', 'v13']); init_arrive(k, ['v12', 'v13'])
        init_wait(k, ['v12', 'v13'])
        k(f's_lshl_b32 s4, {S_INST}, 5'); k(f's_add_u32 s4, s4, {S_IDX}'); k('s_lshl_b32 s4, s4, 7'); k(f's_add_u32 s59, s4, {F_KVD}')
        k('s_mov_b32 s55, 1'); poll_flag(k, 's59', 's55', ['v12', 'v13'], 'QA_PS', sleep=8)
    load_srd(k, 12, S_KA, 0, X_BYTES)
    load_srd(k, 16, S_KA, 16, W_BYTES)
    k(f'v_lshlrev_b32 {v16}, 4, {vL}')
    k(f'v_lshrrev_b32 {t0}, 4, {vL}'); k(f'v_lshlrev_b32 {t1}, 2, {t0}'); k(f'v_and_b32 {t2}, 15, {vL}')
    k(f'v_xor_b32 {t1}, {t1}, {t2}'); k(f'v_lshlrev_b32 {t1}, 4, {t1}'); k(f'v_lshl_add_u32 {vW}, {t0}, 13, {t1}')
    k(f's_lshl_b32 s40, {S_IDX}, 8'); k(f's_lshl_b32 s43, {S_WAVE}, 17'); k('s_add_u32 s40, s40, s43')
    k(f's_lshl_b32 s41, {S_WAVE}, 12')
    NS = 8
    def wdma(c):
        for m in range(4):
            k(f's_add_u32 m0, s41, {(c % NS) * 16384 + m * 1024}')
            k(f's_add_u32 s5, s40, {(64 * c + 4 * m) * 8192}')
            k(f'buffer_load_dwordx4 {vW}, {SRD_W}, s5 offen' + WFL['qatt'] + ' lds')
    for c in range(NS - 1): wdma(c)
    k(f'v_bfe_u32 {t0}, {vL}, 4, 1'); k(f'v_and_b32 {t1}, 1, {vL}'); k(f'v_bfe_u32 {t2}, {vL}, 1, 1')
    k(f'v_lshl_or_b32 {t0}, {t1}, 1, {t0}'); k(f'v_lshlrev_b32 {t1}, 3, {t2}')
    k(f's_lshl_b32 s42, {S_WAVE}, 2'); k(f'v_or_b32 {t0}, s42, {t0}')
    k(f'v_bfe_u32 {t2}, {vL}, 2, 2'); k(f'v_lshlrev_b32 {vT}, 2, {t2}'); k(f'v_xor_b32 {t0}, {t0}, {vT}')
    k(f'v_lshl_add_u32 {t1}, {t0}, 4, {t1}'); k(f'v_lshl_add_u32 {t1}, {t2}, 8, {t1}')
    k(f'v_lshrrev_b32 {t2}, 5, {vL}'); k(f'v_lshl_add_u32 {vT}, {t2}, 11, {t1}')
    k.manual(True)
    va = 'v15'
    for c in range(10):
        done_issue = min(9, NS - 2 if c == 0 else NS - 2 + c - 1)
        k(f's_waitcnt vmcnt({(done_issue - c) * 4}) lgkmcnt(0)')
        k('s_barrier')
        if c >= 1 and c + NS - 2 <= 9: wdma(c + NS - 2)
        k(f'v_add_u32 {va}, {(c % NS) * 16384}, {vT}')
        for tt in range(4):
            fr = wf(4 * c + tt)
            k(f'ds_read_b64_tr_b16 {fr[0:2]}, {va} offset:{tt*4096}')
            k(f'ds_read_b64_tr_b16 {fr[2:4]}, {va} offset:{tt*4096+1024}')
    k('s_waitcnt vmcnt(0) lgkmcnt(0)'); k('s_barrier')
    emit_x_dma_setup(k, vL, vXD, t0, t1)
    emit_x_frag_addr(k, vL, vXA, t0, t1, t2, False)
    k(f'v_bfe_u32 {t0}, {vL}, 4, 1'); k(f'v_lshlrev_b32 {t0}, 10, {t0}'); k(f'v_lshrrev_b32 {t1}, 5, {vL}')
    k(f'v_lshl_add_u32 {t0}, {t1}, 9, {t0}'); k(f'v_and_b32 {t1}, 15, {vL}'); k(f'v_lshl_add_u32 {t0}, {t1}, 4, {t0}')
    k(f's_lshl_b32 s4, {S_WAVE}, 11'); k(f's_add_u32 s4, s4, {QF}'); k(f'v_add_u32 {vST}, s4, {t0}')
    k(f'v_and_b32 {t0}, 3, {vL}'); k(f'v_lshlrev_b32 {t0}, 4, {t0}'); k(f'v_bfe_u32 {t1}, {vL}, 4, 1'); k(f'v_lshl_add_u32 {t0}, {t1}, 3, {t0}')
    k(f'v_bfe_u32 {t1}, {vL}, 2, 2'); k(f'v_add_u32 {t0}, {t0}, {t1}'); k(f'v_lshlrev_b32 {t0}, 4, {t0}')
    k(f'v_lshrrev_b32 {t1}, 5, {vL}'); k(f'v_lshl_add_u32 {vKM}, {t1}, 3, {t0}')
    k(f'v_and_b32 {t0}, 15, {vL}'); k(f'v_lshrrev_b32 {t1}, 4, {vL}'); k(f'v_lshlrev_b32 {t1}, 2, {t1}')
    for r in range(4):
        k(f'v_add_u32 {t2}, {r}, {t1}'); k(f'v_cmp_le_u32 s[{64+2*r}:{65+2*r}], {t2}, {t0}')
    k(f's_and_b32 s4, {S_WAVE}, 1'); k('s_cmp_eq_u32 s4, 1')
    for r in range(4):
        k(f's_cselect_b64 s[{72+2*r}:{73+2*r}], s[{64+2*r}:{65+2*r}], 0')
    for r in range(4):
        k(f's_cselect_b64 s[{64+2*r}:{65+2*r}], -1, s[{64+2*r}:{65+2*r}]')
    k(f's_mov_b32 s50, {hex(f32bits(128 ** -0.5 * math.log2(math.e)))}')
    k(f's_lshl_b32 s4, {S_INST}, 11'); k(f's_add_u32 s4, s4, {S_IDX}')
    k(f's_lshl_b32 s33, s4, 14'); k(f's_lshl_b32 s5, {S_WAVE}, 12'); k('s_add_u32 s33, s33, s5')
    if KVX: k(f's_add_u32 s33, s33, {KVX}')
    k(f's_lshl_b32 s34, s4, 12'); k(f's_lshl_b32 s5, {S_WAVE}, 10'); k('s_add_u32 s34, s34, s5'); k(f's_add_u32 s34, s34, {KVM}')
    k(f's_lshl_b32 s35, s4, 13'); k(f's_and_b32 s5, {S_WAVE}, 1'); k('s_lshl_b32 s5, s5, 12'); k('s_add_u32 s35, s35, s5')
    k(f's_lshr_b32 s5, {S_WAVE}, 1'); k('s_lshl_b32 s5, s5, 11'); k('s_add_u32 s35, s35, s5'); k(f's_add_u32 s35, s35, {OF}')
    k(f's_lshl_b32 s4, {S_INST}, 5'); k(f's_add_u32 s4, s4, {S_IDX}'); k('s_lshl_b32 s4, s4, 7')
    k(f's_add_u32 s58, s4, {F_KVM}'); k(f's_add_u32 s59, s4, {F_KVD}'); k(f's_add_u32 s57, s4, {F_OD}')
    k(f's_mul_i32 s45, {S_WAVE}, 10240')
    k('s_mov_b32 s44, 0')
    k('s_mov_b32 s32, 0'); k('s_mov_b32 s60, 0')
    vt = ['v16', 'v17']
    for g in x_dma(k, vXD, SRD_X, 's44', 's45'): emit_group(k, g)
    k('s_add_u32 s44, s44, 40960'); k('s_add_u32 s45, s45, 40960')
    for g in x_dma(k, vXD, SRD_X, 's44', 's45'): emit_group(k, g)
    k('s_add_u32 s44, s44, 40960'); k('s_sub_u32 s45, s45, 40960')
    if use_flags:
        k('s_mov_b32 s55, 1'); poll_flag(k, 's59', 's55', vt, 'QA_P0')
    def kvx_dma(s_src, s_dst):
        for m in range(4):
            k(f's_add_u32 m0, {s_dst}, {m * 1024}'); k(f's_add_u32 s5, {s_src}, {m * 1024}')
            k(f'buffer_load_dwordx4 {v16}, {SRD_WS}, s5 offen sc1 lds')
    k(f's_lshl_b32 s36, {S_WAVE}, 12'); k(f's_add_u32 s36, s36, {KVXB}')
    kvx_dma('s33', 's36')
    k('s_waitcnt vmcnt(0)'); k('s_barrier')
    acc = Reg('v', 128, 16); xf = [Reg('v', 144 + 4 * i, 4) for i in range(4)]; cv = Reg('v', 160, 8)
    def qproj(interleave=()):
        il = list(interleave)
        def rd(t): k(f'ds_read_b128 {xf[t % 4]}, {vXA[t % 4]} offset:{(t >> 2) * 1024}')
        for t in range(3): rd(t)
        for t in range(40):
            if t + 3 < 40: rd(t + 3)
            k(f's_waitcnt lgkmcnt({min(3, 39 - t)})')
            k(f'v_mfma_f32_32x32x16_bf16 {acc}, {wf(t)}, {xf[t % 4]}, ' + ('0' if t == 0 else str(acc)))
            if il and t >= 1 and t % 2 == 1: emit_group(k, il.pop(0))
        for g in il: emit_group(k, g)
        k('s_nop 7'); k('s_nop 3')
        for d in range(8): k(f'v_cvt_pk_bf16_f32 {cv[d]}, {acc[2*d]}, {acc[2*d+1]}')
        k(f'ds_write_b128 {vST}, {cv[0:4]}'); k(f'ds_write_b128 {vST}, {cv[4:8]} offset:256')
    qproj()
    for u in range(4): k(f'v_add_u32 {vXA[u]}, 40960, {vXA[u]}')
    k(f'v_add_u32 {vST}, 8192, {vST}')
    k('s_mov_b32 s37, 0')
    k('s_waitcnt lgkmcnt(0)'); k('s_barrier')
    if TIMING:
        k('s_memtime s[84:85]'); k('s_memrealtime s[86:87]'); k('s_waitcnt lgkmcnt(0)')
    LOOP, LEND = k.newlabel('QA_LOOP'), k.newlabel('QA_END')
    k.label(LOOP)
    if use_flags:
        k('s_add_u32 s55, s32, 1'); poll_flag(k, 's58', 's55', vt, 'QA_P1')
    k('s_lshl_b32 s4, s37, 12'); k(f's_lshl_b32 s5, {S_WAVE}, 10'); k('s_add_u32 s4, s4, s5'); k(f's_add_u32 m0, s4, {KVMB}')
    k('s_nop 0')
    k(f'buffer_load_dwordx4 {v16}, {SRD_WS}, s34 offen sc1 lds')
    LNK = k.newlabel('QA_NK')
    k('s_cmp_ge_u32 s32, 63'); k(f's_cbranch_scc1 {LNK}')
    if use_flags:
        LSEEN = k.newlabel('QA_SEEN')
        k('s_add_u32 s55, s32, 2'); k('s_cmp_ge_u32 s60, s55'); k(f's_cbranch_scc1 {LSEEN}')
        poll_flag(k, 's59', 's55', vt, 'QA_P2'); k('s_mov_b32 s60, s6')
        k.label(LSEEN)
    k(f's_add_u32 s38, s33, {32 * 16384}')
    k('s_xor_b32 s4, s37, 1'); k('s_lshl_b32 s4, s4, 14'); k(f's_lshl_b32 s5, {S_WAVE}, 12'); k('s_add_u32 s4, s4, s5'); k(f's_add_u32 s39, s4, {KVXB}')
    kvx_dma('s38', 's39')
    k.label(LNK)
    k('s_mul_i32 s4, s37, 40960'); k(f's_mul_i32 s5, {S_WAVE}, 10240'); k('s_add_u32 s45, s4, s5')
    dma = x_dma(k, vXD, SRD_X, 's44', 's45')
    LNQ, LQD = k.newlabel('QA_NQ'), k.newlabel('QA_QD')
    k('s_cmp_ge_u32 s32, 63'); k(f's_cbranch_scc1 {LNQ}')
    qproj(dma)
    k(f's_branch {LQD}')
    k.label(LNQ)
    for g in dma: emit_group(k, g)
    k.label(LQD)
    k('s_cmp_eq_u32 s37, 0'); k('s_cselect_b32 s5, -1, 1')
    k('s_mul_i32 s4, s5, 40960')
    for u in range(4): k(f'v_add_u32 {vXA[u]}, s4, {vXA[u]}')
    k('s_lshl_b32 s4, s5, 13'); k(f'v_add_u32 {vST}, s4, {vST}')
    LW1, LW2 = k.newlabel('QA_W1'), k.newlabel('QA_W2')
    k('s_cmp_ge_u32 s32, 63'); k(f's_cbranch_scc1 {LW1}')
    k('s_waitcnt vmcnt(14) lgkmcnt(0)'); k(f's_branch {LW2}')
    k.label(LW1); k('s_waitcnt vmcnt(10) lgkmcnt(0)')
    k.label(LW2)
    k('s_barrier')
    LNF0 = k.newlabel('QA_NF0')
    k(f's_cmp_lg_u32 {S_WAVE}, 0'); k(f's_cbranch_scc1 {LNF0}')
    k('v_mov_b32 v16, s32'); k('v_mov_b32 v17, 0'); k('s_mov_b64 exec, 1')
    k(f'buffer_store_dword v16, v17, {SRD_WS}, s57 offen sc1'); k('s_mov_b64 exec, -1')
    k.label(LNF0)
    k.manual(False); k.drained()
    pool = Pool('qatt', 'v', range(20, 128))
    ad = pool.alloc(4, name='ad')
    k(f's_and_b32 s4, {S_WAVE}, 1'); k('s_lshl_b32 s4, s4, 10'); k('s_lshl_b32 s5, s37, 13'); k('s_add_u32 s4, s4, s5'); k(f's_add_u32 s4, s4, {QF}')
    k(f'v_add_u32 {ad[0]}, s4, {v16}')
    k('s_lshl_b32 s5, s37, 14'); k(f's_add_u32 s5, s5, {KVXB}'); k(f'v_add_u32 {ad[1]}, s5, {v16}')
    k('s_lshl_b32 s5, s37, 12'); k(f's_add_u32 s5, s5, {KVMB}'); k(f'v_add_u32 {ad[2]}, s5, {vKM}')
    k(f'v_add_u32 {ad[3]}, s5, {v16}')
    QB = [pool.alloc(4, name=f'Q{u}') for u in range(4)]
    KA = [[pool.alloc(4, name=f'K{t}{u}') for u in range(4)] for t in range(2)]
    KM = [pool.alloc(4, name=f'M{u}') for u in range(4)]
    T = [pool.alloc(4, name='T0'), pool.alloc(4, name='T1')]; TM = pool.alloc(4, name='TM')
    for u in range(4):
        k(f'ds_read_b128 {QB[u]}, {ad[0]} offset:{u * 2048}')
        k(f'ds_read_b128 {KA[0][u]}, {ad[1]} offset:{u * 2048}')
        k(f'ds_read_b128 {KA[1][u]}, {ad[1]} offset:{u * 2048 + 1024}')
        k(f'ds_read_b64_tr_b16 {KM[u][0:2]}, {ad[2]} offset:{u * 1024}')
        k(f'ds_read_b64_tr_b16 {KM[u][2:4]}, {ad[2]} offset:{u * 1024 + 64}')
    for u in range(4):
        c = lambda r: '0' if u == 0 else str(r)
        k(f'v_mfma_f32_16x16x32_bf16 {T[0]}, {KA[0][u]}, {QB[u]}, {c(T[0])}')
        k(f'v_mfma_f32_16x16x32_bf16 {T[1]}, {KA[1][u]}, {QB[u]}, {c(T[1])}')
        k(f'v_mfma_f32_16x16x32_bf16 {TM}, {KM[u]}, {QB[u]}, {c(TM)}')
    for r_ in QB + KA[0] + KA[1] + KM: r_.free()
    wc0 = pool.alloc(1, name='wc')
    k(f's_lshr_b32 s4, {S_WAVE}, 1'); k('s_lshl_b32 s5, s4, 12'); k(f'v_add_u32 {wc0}, s5, {ad[1]}')
    VA = [[pool.alloc(4, name=f'V{a}{t}') for t in range(2)] for a in range(2)]
    for a in range(2):
        for t in range(2): k(f'ds_read_b128 {VA[a][t]}, {wc0} offset:{8192 + a * 2048 + t * 1024}')
    k('s_lshl_b32 s5, s4, 11'); k(f'v_add_u32 {wc0}, s5, {ad[3]}')
    MA = [pool.alloc(4, name=f'MA{a}') for a in range(2)]
    for a in range(2): k(f'ds_read_b128 {MA[a]}, {wc0} offset:{a * 1024}')
    wc0.free()
    ninf, mx, t1_ = pool.alloc(1), pool.alloc(1), pool.alloc(1)
    k(f'v_mov_b32 {ninf}, 0xff800000')
    for t in range(2):
        for r in range(4):
            m = 64 + 8 * t + 2 * r
            k(f'v_cndmask_b32 {T[t][r]}, {ninf}, {T[t][r]}, s[{m}:{m+1}]')
    k(f'v_max3_f32 {mx}, {T[0][0]}, {T[0][1]}, {T[0][2]}'); k(f'v_max3_f32 {mx}, {mx}, {T[0][3]}, {T[1][0]}')
    k(f'v_max3_f32 {mx}, {mx}, {T[1][1]}, {T[1][2]}'); k(f'v_max3_f32 {mx}, {mx}, {T[1][3]}, {TM[0]}'); k(f'v_max_f32 {mx}, {mx}, {TM[1]}')
    k(f'v_mov_b32 {t1_}, {mx}'); k(f'v_permlane16_swap_b32 {mx}, {t1_}'); k(f'v_max_f32 {mx}, {mx}, {t1_}')
    k(f'v_mov_b32 {t1_}, {mx}'); k(f'v_permlane32_swap_b32 {mx}, {t1_}'); k(f'v_max_f32 {mx}, {mx}, {t1_}')
    k(f'v_mul_f32 {mx}, s50, {mx}')
    vals = [T[0][r] for r in range(4)] + [T[1][r] for r in range(4)] + [TM[0], TM[1]]
    for v in vals: k(f'v_fma_f32 {v}, {v}, s50, -{mx}')
    for v in vals: k(f'v_exp_f32 {v}, {v}')
    P = pool.alloc(4, name='P'); BM = pool.alloc(2, name='BM')
    for t in range(2):
        k(f'v_cvt_pk_bf16_f32 {P[2*t]}, {T[t][0]}, {T[t][1]}'); k(f'v_cvt_pk_bf16_f32 {P[2*t+1]}, {T[t][2]}, {T[t][3]}')
    k(f'v_mov_b32 {BM[0]}, 0'); k(f'v_cvt_pk_bf16_f32 {BM[1]}, {TM[0]}, {TM[1]}')
    O = [[pool.alloc(4, name=f'O{a}{t}') for t in range(2)] for a in range(2)]
    for a in range(2):
        for t in range(2): k(f'v_mfma_f32_16x16x32_bf16 {O[a][t]}, {VA[a][t]}, {P}, 0')
    for a in range(2):
        for t in range(2): k(f'v_mfma_f32_16x16x16_bf16 {O[a][t]}, {MA[a][2*t:2*t+2]}, {BM}, {O[a][t]}')
    ls = T[0][0]
    k(f'v_add_f32 {T[0][0]}, {T[0][0]}, {T[0][1]}'); k(f'v_add_f32 {T[0][2]}, {T[0][2]}, {T[0][3]}')
    k(f'v_add_f32 {T[1][0]}, {T[1][0]}, {T[1][1]}'); k(f'v_add_f32 {T[1][2]}, {T[1][2]}, {T[1][3]}'); k(f'v_add_f32 {TM[0]}, {TM[0]}, {TM[1]}')
    k(f'v_add_f32 {ls}, {T[0][0]}, {T[0][2]}'); k(f'v_add_f32 {T[1][0]}, {T[1][0]}, {T[1][2]}')
    k(f'v_add_f32 {ls}, {ls}, {T[1][0]}'); k(f'v_add_f32 {ls}, {ls}, {TM[0]}')
    k(f'v_mov_b32 {t1_}, {ls}'); k(f'v_permlane16_swap_b32 {ls}, {t1_}'); k(f'v_add_f32 {ls}, {ls}, {t1_}')
    k(f'v_mov_b32 {t1_}, {ls}'); k(f'v_permlane32_swap_b32 {ls}, {t1_}'); k(f'v_add_f32 {ls}, {ls}, {t1_}')
    k(f'v_rcp_f32 {ls}, {ls}')
    OS = [pool.alloc(4, name='OS0'), pool.alloc(4, name='OS1')]
    for a in range(2):
        for t in range(2):
            for r in range(4): k(f'v_mul_f32 {O[a][t][r]}, {O[a][t][r]}, {ls}')
            k(f'v_cvt_pk_bf16_f32 {OS[a][2*t]}, {O[a][t][0]}, {O[a][t][1]}'); k(f'v_cvt_pk_bf16_f32 {OS[a][2*t+1]}, {O[a][t][2]}, {O[a][t][3]}')
        k(f'buffer_store_dwordx4 {OS[a]}, {v16}, {SRD_WS}, s35 offen offset:{a * 1024} sc1')
    k.manual(True)
    k('s_waitcnt vmcnt(2) lgkmcnt(0)'); k('s_barrier')
    k('s_add_u32 s32, s32, 1'); k('s_xor_b32 s37, s37, 1')
    k(f's_add_u32 s33, s33, {32 * 16384}'); k(f's_add_u32 s34, s34, {32 * 4096}'); k(f's_add_u32 s35, s35, {32 * 8192}')
    k('s_add_u32 s44, s44, 40960')
    k('s_cmp_lt_u32 s32, 64'); k(f's_cbranch_scc1 {LOOP}')
    k('s_waitcnt vmcnt(0)'); k('s_barrier')
    LNFE = k.newlabel('QA_NFE')
    k(f's_cmp_lg_u32 {S_WAVE}, 0'); k(f's_cbranch_scc1 {LNFE}')
    k('v_mov_b32 v16, 64'); k('v_mov_b32 v17, 0'); k('s_mov_b64 exec, 1')
    k(f'buffer_store_dword v16, v17, {SRD_WS}, s57 offen sc1'); k('s_mov_b64 exec, -1')
    k.label(LNFE)
    if TIMING:
        k('s_memtime s[88:89]'); k('s_memrealtime s[90:91]'); k('s_waitcnt lgkmcnt(0)')
        k('s_sub_u32 s88, s88, s84'); k('s_sub_u32 s90, s90, s86')
        k('s_load_dwordx2 s[92:93], s[0:1], 120'); k('s_waitcnt lgkmcnt(0)')
        k(f's_lshl_b32 s94, {S_INST}, 5'); k(f's_add_u32 s94, s94, {S_IDX}'); k('s_lshl_b32 s94, s94, 4')
        k('v_mov_b32 v15, s94'); k('v_add_u32 v15, 32768, v15'); k('v_mov_b32 v20, s88'); k('v_mov_b32 v21, s90'); k('v_mov_b32 v22, s86'); k('v_mov_b32 v23, s100')
        k('global_store_dwordx4 v15, v[20:23], s[92:93]')
    k('s_waitcnt vmcnt(0)')
    k.manual(False); k.drained()
```

```python
from common import *
from role_qatt import poll_flag
TIMING = False
SPIN = 0x40000

def poll_multi(k, s_off, n, s_need, vt, vstride, base):
    L, LX = k.newlabel(base), k.newlabel(base + 'X')
    k('s_mov_b32 s7, 0')
    k(f's_mov_b64 exec, {hex((1 << n) - 1)}')
    k.label(L)
    k(f'buffer_load_dword {vt}, {vstride}, {SRD_WS}, {s_off} offen sc1')
    k('s_add_u32 s7, s7, 1'); k(f's_cmp_gt_u32 s7, {hex(SPIN)}'); k(f's_cbranch_scc1 {LX}')
    k('s_waitcnt vmcnt(0)')
    k(f'v_cmp_gt_u32 vcc, {s_need}, {vt}')
    k(f's_cbranch_vccz {LX}')
    k('s_sleep 1')
    k(f's_branch {L}')
    k.label(LX)
    k('s_waitcnt vmcnt(0)')
    k('s_mov_b64 exec, -1')

def role_wo(k, LEXIT, use_flags=True, integrated=False):
    vL, v16, vW, vT0, vT1, vF, vOut = 'v2', 'v1', 'v3', 'v4', 'v5', 'v6', 'v7'
    t0, t1, t2 = 'v12', 'v13', 'v14'
    SRD_W, SRD_O = 's[16:19]', 's[12:15]'
    if integrated:
        k(f's_mul_i32 s4, {S_INST}, 20'); k(f's_add_u32 s4, s4, {S_IDX}'); k('s_lshl_b32 s4, s4, 7'); k(f's_add_u32 s4, s4, {F_WOP}')
        LZ = k.newlabel('WO_Z')
        k(f's_cmp_ge_u32 {S_IDX}, 20'); k(f's_cbranch_scc1 {LZ}')
        zero_flag(k, 's4', ['v12', 'v13'])
        k.label(LZ)
        init_arrive(k, ['v12', 'v13'])
    k(f's_cmp_ge_u32 {S_IDX}, 20'); k(f's_cbranch_scc1 {LEXIT}')
    if integrated:
        init_wait(k, ['v12', 'v13'])
        k(f's_lshl_b32 s4, {S_INST}, 5'); k(f's_add_u32 s4, s4, {S_IDX}'); k('s_lshl_b32 s4, s4, 7'); k(f's_add_u32 s59, s4, {F_KVD}')
        k('s_mov_b32 s55, 1'); poll_flag(k, 's59', 's55', ['v12', 'v13'], 'WO_PS', sleep=8)
    inst_kernarg(k)
    load_srd(k, 16, S_KA, 40, W_BYTES)
    load_srd(k, 12, 's[0:1]', KA_OUT, OUT_BYTES)
    k(f'v_lshlrev_b32 {v16}, 4, {vL}')
    k(f's_mul_i32 s4, {S_IDX}, 52429'); k('s_lshr_b32 s38, s4, 18'); k('s_mul_i32 s4, s38, 5'); k(f's_sub_u32 s39, {S_IDX}, s4')
    k(f'v_lshrrev_b32 {t0}, 4, {vL}'); k(f's_and_b32 s4, {S_WAVE}, 1'); k('s_lshl_b32 s4, s4, 2'); k(f'v_add_u32 {t1}, s4, {t0}')
    k(f'v_lshlrev_b32 {t1}, 1, {t1}'); k(f'v_and_b32 {t2}, 15, {vL}'); k(f'v_xor_b32 {t1}, {t1}, {t2}'); k(f'v_lshlrev_b32 {t1}, 4, {t1}')
    k(f's_lshl_b32 s4, {S_WAVE}, 2'); k(f'v_add_u32 {t0}, s4, {t0}'); k(f'v_mul_u32_u24 {t0}, 1280, {t0}'); k(f'v_add_u32 {vW}, {t0}, {t1}')
    k(f's_mul_i32 s40, s38, {1024 * 1280}'); k('s_lshl_b32 s4, s39, 8'); k('s_add_u32 s40, s40, s4')
    k(f's_lshl_b32 s41, {S_WAVE}, 10')
    def wdma(hh):
        for mm in range(8):
            k(f's_add_u32 m0, s41, {(hh % 4) * 32768 + mm * 4096}')
            k(f's_add_u32 s5, s40, {(128 * hh + 16 * mm) * 1280}')
            k(f'buffer_load_dwordx4 {vW}, {SRD_W}, s5 offen' + WFL['wo'] + ' lds')
    for hh in range(4): wdma(hh)
    k(f'v_lshrrev_b32 {t0}, 4, {vL}'); k(f'v_bfe_u32 {t1}, {vL}, 2, 2'); k(f'v_lshl_add_u32 {t0}, {t0}, 2, {t1}')
    k(f'v_and_b32 {t1}, 7, {t0}'); k(f's_lshl_b32 s4, {S_WAVE}, 1'); k(f'v_xor_b32 {t1}, s4, {t1}'); k(f'v_lshlrev_b32 {t1}, 5, {t1}')
    k(f'v_lshl_add_u32 {t0}, {t0}, 8, {t1}'); k(f'v_and_b32 {t1}, 3, {vL}'); k(f'v_lshl_add_u32 {vT0}, {t1}, 3, {t0}')
    k(f'v_xor_b32 {vT1}, 32, {vT0}')
    wf = lambda hh, v, nt: Reg('a', 4 * ((hh * 4 + v) * 2 + nt), 4)
    k.manual(True)
    for hh in range(8):
        n_after = (3 if hh == 0 else min(hh + 2, 7) - hh) * 8
        k(f's_waitcnt vmcnt({n_after}) lgkmcnt(0)'); k('s_barrier')
        if hh >= 1 and hh + 3 <= 7: wdma(hh + 3)
        k(f'v_add_u32 v8, {(hh % 4) * 32768}, {vT0}'); k(f'v_add_u32 v9, {(hh % 4) * 32768}, {vT1}')
        for v in range(4):
            for nt in range(2):
                fr = wf(hh, v, nt); ad = 'v8' if nt == 0 else 'v9'
                k(f'ds_read_b64_tr_b16 {fr[0:2]}, {ad} offset:{v * 8192}')
                k(f'ds_read_b64_tr_b16 {fr[2:4]}, {ad} offset:{v * 8192 + 4096}')
    k('s_waitcnt vmcnt(0) lgkmcnt(0)'); k('s_barrier')
    k(f'v_lshlrev_b32 {vF}, 7, {vL}')
    k(f's_lshl_b32 s4, {S_INST}, 11'); k('s_lshl_b32 s5, s38, 3'); k('s_add_u32 s4, s4, s5'); k('s_lshl_b32 s33, s4, 13')
    k(f's_lshl_b32 s5, {S_WAVE}, 10'); k('s_add_u32 s33, s33, s5'); k(f's_add_u32 s33, s33, {OF}')
    k(f's_lshl_b32 s4, {S_INST}, 5'); k('s_lshl_b32 s5, s38, 3'); k('s_add_u32 s4, s4, s5'); k('s_lshl_b32 s4, s4, 7'); k(f's_add_u32 s57, s4, {F_OD}')
    k(f's_mul_i32 s4, {S_INST}, 320'); k('s_add_u32 s4, s4, s39'); k('s_lshl_b32 s4, s4, 2'); k(f's_add_u32 s4, s4, {S_WAVE}'); k('s_lshl_b32 s4, s4, 14')
    k(f's_add_u32 s34, s4, {WOP}')
    k('s_lshl_b32 s5, s38, 10'); k('s_add_u32 s35, s34, s5')
    k('s_lshl_b32 s5, s38, 12'); k('s_add_u32 s36, s34, s5')
    k(f's_mul_i32 s4, {S_INST}, 20'); k('s_lshl_b32 s5, s39, 2'); k('s_add_u32 s4, s4, s5'); k('s_lshl_b32 s4, s4, 7'); k(f's_add_u32 s58, s4, {F_WOP}')
    k('s_lshl_b32 s5, s38, 7'); k('s_add_u32 s59, s58, s5')
    k(f'v_and_b32 {t0}, 15, {vL}'); k(f'v_mul_u32_u24 {t0}, 2560, {t0}'); k(f'v_lshrrev_b32 {t1}, 4, {vL}'); k(f'v_lshl_add_u32 {vOut}, {t1}, 3, {t0}')
    k(f's_mul_i32 s37, {S_INST}, 1280'); k('s_lshl_b32 s4, s39, 8'); k('s_add_u32 s37, s37, s4'); k(f's_lshl_b32 s4, {S_WAVE}, 6'); k('s_add_u32 s37, s37, s4')
    k('s_lshr_b32 s4, s38, 1'); k('s_lshl_b32 s4, s4, 5'); k('s_add_u32 s37, s37, s4')
    k('s_and_b32 s4, s38, 1'); k(f's_mul_i32 s4, s4, {16 * 2560}'); k('s_add_u32 s37, s37, s4')
    k('s_mov_b32 s32, 0')
    if TIMING:
        k('s_memtime s[84:85]'); k('s_memrealtime s[86:87]'); k('s_waitcnt lgkmcnt(0)')
    vP = 'v10'
    k(f'v_lshlrev_b32 {vP}, 7, {vL}'); k(f'v_add_u32 {vP}, s57, {vP}')
    k(f'v_subrev_u32 {t0}, 8, {vL}'); k(f'v_lshlrev_b32 {t0}, 7, {t0}'); k(f'v_add_u32 {t0}, s58, {t0}')
    k(f'v_cmp_gt_u32 vcc, 8, {vL}'); k('s_nop 1'); k(f'v_cndmask_b32 {vP}, {t0}, {vP}, vcc')
    k('s_mov_b64 s[60:61], vcc')
    acc = [[Reg('v', 128 + 4 * (2 * nt + qt), 4) for qt in range(2)] for nt in range(2)]
    bf = [Reg('v', 144 + 4 * i, 4) for i in range(8)]
    pr = [Reg('v', 176 + 4 * i, 4) for i in range(4)]
    vN = 'v11'
    def poll(need_o, need_p, base):
        L, LX = k.newlabel(base), k.newlabel(base + 'X')
        k(f'v_mov_b32 {vN}, {need_p}'); k(f'v_mov_b32 v16, {need_o}'); k(f'v_cndmask_b32 {vN}, {vN}, v16, s[60:61]')
        k('s_mov_b32 s7, 0'); k('s_mov_b64 exec, 0xfff')
        k.label(L)
        k(f'buffer_load_dword v15, {vP}, {SRD_WS}, 0 offen sc1')
        k('s_add_u32 s7, s7, 1'); k(f's_cmp_gt_u32 s7, {hex(SPIN)}'); k(f's_cbranch_scc1 {LX}')
        k('s_waitcnt vmcnt(0)')
        k(f'v_cmp_gt_u32 vcc, {vN}, v15')
        k(f's_cbranch_vccz {LX}')
        k('s_sleep 1'); k(f's_branch {L}')
        k.label(LX)
        k('s_waitcnt vmcnt(0)'); k('s_mov_b64 exec, -1')
    def part_loads():
        for i in range(4): k(f'buffer_load_dwordx4 {pr[i]}, {v16}, {SRD_WS}, s36 offen offset:{i * 1024} sc1')
    def finalize(mask=None):
        for r in range(4):
            k(f'v_add_f32 {pr[0][r]}, {pr[0][r]}, {pr[1][r]}'); k(f'v_add_f32 {pr[2][r]}, {pr[2][r]}, {pr[3][r]}')
        for r in range(4): k(f'v_add_f32 {pr[0][r]}, {pr[0][r]}, {pr[2][r]}')
        k(f'v_cvt_pk_bf16_f32 {pr[1][0]}, {pr[0][0]}, {pr[0][1]}'); k(f'v_cvt_pk_bf16_f32 {pr[1][1]}, {pr[0][2]}, {pr[0][3]}')
        if mask: k(f's_mov_b64 exec, {mask}')
        k(f'buffer_store_dwordx2 {pr[1][0:2]}, {vOut}, {SRD_O}, s37 offen')
        if mask:
            k('s_mov_b64 exec, -1')
            k(f's_cmp_ge_u32 s32, 3'); k(f's_cselect_b32 s4, {5 * 4 * 16384}, 0'); k('s_add_u32 s36, s36, s4')
            k('s_cmp_ge_u32 s32, 3'); k(f's_cselect_b32 s4, {32 * 2560}, 0'); k('s_add_u32 s37, s37, s4')
        else:
            k(f's_add_u32 s36, s36, {5 * 4 * 16384}'); k(f's_add_u32 s37, s37, {32 * 2560}')
    def own_flag(val):
        LNF = k.newlabel('WO_NF')
        k(f's_cmp_lg_u32 {S_WAVE}, 0'); k(f's_cbranch_scc1 {LNF}')
        k(f'v_mov_b32 v16, {val}'); k('v_mov_b32 v17, 0'); k('s_mov_b64 exec, 1')
        k(f'buffer_store_dword v16, v17, {SRD_WS}, s59 offen sc1'); k('s_mov_b64 exec, -1')
        k.label(LNF)
    vB = 'v18'
    k(f'v_mov_b32 {vB}, {v16}')
    k('s_mov_b32 s62, 0')
    k('s_mov_b32 s63, 0')
    k('s_mov_b32 s64, 0')
    def dma1(src, ldsoff, m):
        k(f's_add_u32 m0, {ldsoff}, {m * 4096}'); k(f's_add_u32 s5, {src}, {m * 4096}')
        k(f'buffer_load_dwordx4 {v16}, {SRD_WS}, s5 offen sc1 lds')
    def stage(st, dmas=()):
        dmas = list(dmas)
        seq = [(hh, v) for hh in (2 * st, 2 * st + 1) for v in range(4)]
        def rd(i):
            hh, v = seq[i]
            for qt in range(2): k(f'ds_read_b128 {bf[(2 * i + qt) % 8]}, {vB} offset:{hh * 8192 + qt * 4096 + v * 1024}')
        for i in range(3): rd(i)
        for i, (hh, v) in enumerate(seq):
            if i + 3 < 8: rd(i + 3)
            k(f's_waitcnt lgkmcnt({2 * min(3, 7 - i)})')
            for qt in range(2):
                for nt in range(2):
                    c = '0' if (st == 0 and i == 0) else str(acc[nt][qt])
                    k(f'v_mfma_f32_16x16x32_bf16 {acc[nt][qt]}, {wf(hh, v, nt)}, {bf[(2 * i + qt) % 8]}, {c}')
            if dmas: dmas.pop(0)()
    LOOP = k.newlabel('WO_LOOP')
    k.label(LOOP)
    LP2, LFAST, LMID = k.newlabel('WO_P2OK'), k.newlabel('WO_FAST'), k.newlabel('WO_MID')
    k('s_add_u32 s55, s32, 1'); k('s_cmp_eq_u32 s62, 1'); k('s_cselect_b32 s55, 0, s55')
    if use_flags is not True: k('s_mov_b32 s55, 0')
    k('s_sub_u32 s56, s32, 2'); k('s_cmp_lt_u32 s32, 3'); k('s_cselect_b32 s56, 0, s56'); k('s_cmp_eq_u32 s63, 1'); k('s_cselect_b32 s56, 0, s56')
    k('s_or_b32 s4, s55, s56'); k('s_cmp_eq_u32 s4, 0')
    k(f's_cbranch_scc1 {LP2}')
    poll('s55', 's56', 'WO_P0')
    k.label(LP2)
    def sample():
        k('s_mov_b64 exec, 0xfff')
        k(f'buffer_load_dword v15, {vP}, {SRD_WS}, 0 offen sc1')
        k('s_mov_b64 exec, -1')
    k('s_cmp_eq_u32 s62, 1'); k(f's_cbranch_scc1 {LFAST}')
    k('s_add_u32 s65, s41, s64')
    for m in range(8): dma1('s33', 's65', m)
    k('s_waitcnt vmcnt(4)'); k('s_barrier')
    stage(0, [(lambda m=m: dma1('s33', 's65', m)) for m in range(8, 16)])
    part_loads(); sample()
    k('s_waitcnt vmcnt(13)'); k('s_barrier')
    stage(1)
    k(f's_branch {LMID}')
    k.label(LFAST)
    part_loads(); sample()
    k('s_waitcnt vmcnt(22)'); k('s_barrier')
    stage(0)
    k('s_waitcnt vmcnt(18)'); k('s_barrier')
    stage(1)
    k.label(LMID)
    k('s_waitcnt vmcnt(0)')
    LNO, LEPI, LDEC = k.newlabel('WO_NOPRE'), k.newlabel('WO_EPI'), k.newlabel('WO_DEC')
    k(f's_cmp_lg_u32 {S_WAVE}, 0'); k(f's_cbranch_scc1 {LDEC}')
    k('s_add_u32 s55, s32, 2'); k('s_sub_u32 s56, s32, 1'); k('s_max_i32 s56, s56, 0')
    k(f'v_mov_b32 {vN}, s56'); k('v_mov_b32 v16, s55'); k(f'v_cndmask_b32 {vN}, {vN}, v16, s[60:61]')
    k('s_mov_b64 exec, 0xfff'); k(f'v_cmp_gt_u32 vcc, {vN}, v15'); k('s_mov_b64 exec, -1')
    k('s_nop 1')
    k('v_mov_b32 v16, vcc_lo'); k('v_mov_b32 v17, 131072'); k('ds_write_b32 v17, v16')
    k.label(LDEC)
    k('s_waitcnt lgkmcnt(0)'); k('s_barrier')
    k('v_mov_b32 v20, 131072'); k('ds_read_b32 v19, v20')
    own_flag('s32')
    k('s_waitcnt lgkmcnt(0)')
    k('v_readfirstlane_b32 s6, v19')
    k('s_and_b32 s4, s6, 0xf00'); k('s_cmp_eq_u32 s4, 0'); k('s_cselect_b32 s63, 1, 0')
    k('s_and_b32 s4, s6, 0xff'); k('s_cmp_eq_u32 s4, 0'); k('s_cselect_b32 s62, 1, 0')
    if use_flags is not True: k('s_mov_b32 s62, 1')
    k('s_cmp_ge_u32 s32, 63'); k('s_cselect_b32 s62, 0, s62')
    k('s_cmp_eq_u32 s62, 0'); k(f's_cbranch_scc1 {LNO}')
    k('s_xor_b32 s65, s64, 65536'); k('s_add_u32 s65, s65, s41'); k(f's_add_u32 s66, s33, {32 * 8192}')
    stage(2, [(lambda m=m: dma1('s66', 's65', m)) for m in range(0, 8)])
    stage(3, [(lambda m=m: dma1('s66', 's65', m)) for m in range(8, 16)])
    k(f's_branch {LEPI}')
    k.label(LNO)
    stage(2); stage(3)
    k.label(LEPI)
    k('s_cmp_ge_u32 s32, 3'); k('s_cselect_b64 s[68:69], -1, 0')
    finalize('s[68:69]')
    k('s_nop 7')
    for nt in range(2):
        for qt in range(2):
            T = 2 * nt + qt
            k(f's_add_u32 s5, s35, {T * 4096}')
            k(f'buffer_store_dwordx4 {acc[nt][qt]}, {v16}, {SRD_WS}, s5 offen sc1')
    k('s_add_u32 s32, s32, 1')
    k(f's_add_u32 s33, s33, {32 * 8192}'); k(f's_add_u32 s35, s35, {5 * 4 * 16384}')
    k('s_xor_b32 s64, s64, 65536'); k(f'v_xor_b32 {vB}, 65536, {vB}')
    k('s_cmp_lt_u32 s32, 64'); k(f's_cbranch_scc1 {LOOP}')
    pr_a = pr; pr_b = [Reg('v', 192 + 4 * i, 4) for i in range(4)]
    k('s_mov_b32 s55, 0'); k('s_mov_b32 s56, 63')
    poll('s55', 's56', 'WO_P1')
    k('s_barrier')
    own_flag('64')
    part_loads()
    k(f's_add_u32 s67, s36, {5 * 4 * 16384}')
    for i in range(4): k(f'buffer_load_dwordx4 {pr_b[i]}, {v16}, {SRD_WS}, s67 offen offset:{i * 1024} sc1')
    k('s_mov_b32 s56, 64')
    poll('s55', 's56', 'WO_P2')
    finalize()
    pr[:] = pr_b
    finalize()
    pr[:] = [Reg('v', 176 + 4 * i, 4) for i in range(4)]
    part_loads(); k('s_waitcnt vmcnt(0)'); finalize()
    if TIMING:
        k('s_memtime s[88:89]'); k('s_memrealtime s[90:91]'); k('s_waitcnt lgkmcnt(0)')
        k('s_sub_u32 s88, s88, s84'); k('s_sub_u32 s90, s90, s86')
        k('s_load_dwordx2 s[92:93], s[0:1], 120'); k('s_waitcnt lgkmcnt(0)')
        k(f's_lshl_b32 s94, {S_INST}, 5'); k(f's_add_u32 s94, s94, {S_IDX}'); k('s_lshl_b32 s94, s94, 4')
        k('v_mov_b32 v15, s94'); k('v_add_u32 v15, 36864, v15'); k('v_mov_b32 v20, s88'); k('v_mov_b32 v21, s90'); k('v_mov_b32 v22, s86'); k('v_mov_b32 v23, s100')
        k('global_store_dwordx4 v15, v[20:23], s[92:93]')
    k('s_waitcnt vmcnt(0)')
    k.manual(False); k.drained()
```

```python
from common import *
from role_qatt import poll_flag
import math
TIMING = False
KV_FIRST = False
NOSAMPLE = False
EAGER = 61
DBG_STEPS = 0
NOPOISON = False
SPIN = 0x40000
SAFE_FLAG = 's25'

XQK = 0; OX = 0; TC = 4096; MEM = 6144; WL = 16384

def ops_list():
    ops = []
    for M in 'QKV':
        for c in range(10):
            for t in range(2): ops.append((M, t, c))
    for i in range(10):
        for c2 in range(2): ops.append(('O', i, c2))
    return ops
G_UNITS = [('K', 9), ('Q', 9), ('O', 0, 1), ('O', 4, 1)]
L_UNITS = [('V', 1), ('V', 2), ('V', 3), ('V', 4), ('V', 5), ('O', 1, 0), ('O', 2, 1), ('O', 3, 0), ('O', 4, 0)]
G23 = 48
G01 = 64
def unit_of(op):
    if op[0] == 'O': return ('O', op[1] >> 1, op[2]), op[1] & 1
    return (op[0], op[2]), op[1]
def all_units():
    u = []
    for M in 'QKV':
        for c in range(10): u.append((M, c))
    for ip in range(5):
        for c2 in range(2): u.append(('O', ip, c2))
    return u
def classify():
    src = {}; nR = 0
    for op in ops_list():
        u, o = unit_of(op)
        if u in G_UNITS: src[op] = ('G', G_UNITS.index(u) * 2 + o)
        elif u in L_UNITS: src[op] = ('L', L_UNITS.index(u), o)
        else:
            reg = Reg('a', 8 * nR, 8) if nR < 32 else Reg('v', 80 + 8 * (nR - 32), 8)
            src[op] = ('R', reg); nR += 1
    assert nR == 54
    return src
SRC = classify()
def unit_ops(u):
    if u[0] == 'O': return [('O', 2 * u[1], u[2]), ('O', 2 * u[1] + 1, u[2])]
    return [(u[0], 0, u[1]), (u[0], 1, u[1])]

v16l, vBL, vIDX, vXW, vXR, vOW, vPS, vLN = 'v0', 'v1', 'v2', 'v3', 'v4', 'v5', 'v6', 'v7'
S_SEG, S_KX, S_KVM, S_PCUR, S_POTH, S_MNEXT, S_MPOI, S_WSTR = 's32', 's33', 's34', 's35', 's36', 's37', 's38', 's39'
M_N2, M_N8, M_N4 = 's[44:45]', 's[46:47]', 's[48:49]'
S_C = 's50'
S_RED = 's51'
S_RLD, S_RPUB = 's52', 's53'
S_PST = 's54'
S_PST2 = 's55'
S_PB, S_MB = 's56', 's57'
S_FKVM, S_FKVD = 's58', 's59'

def startup_weights(k, pool):
    units = [u for u in all_units() if u not in L_UNITS]
    if KV_FIRST:
        kv = sorted([u for u in units if u[0] in 'KV'], key=lambda u: (u[1], u[0]))
        units = kv + [u for u in units if u[0] not in 'KV']
    assert len(units) == 31
    for n in range(31, 40): units.append(L_UNITS[n % 9])
    load_srd(k, 12, S_KA, 16, W_BYTES); load_srd(k, 16, S_KA, 24, W_BYTES)
    load_srd(k, 20, S_KA, 32, W_BYTES); load_srd(k, 60, S_KA, 40, W_BYTES)
    SR = {'Q': 's[12:15]', 'K': 's[16:19]', 'V': 's[20:23]', 'O': 's[60:63]'}
    t = pool.alloc(8, name='st')
    vWq, vWo, vTq0, vTq1, vTo0, vTo1 = [t[i] for i in range(6)]
    a, b = t[6], t[7]
    k(f's_and_b32 s4, {S_WAVE}, 1'); k('s_lshl_b32 s4, s4, 1')
    k(f's_lshr_b32 s5, {S_WAVE}, 1'); k('s_lshl_b32 s5, s5, 2'); k('s_or_b32 s4, s4, s5')
    k(f'v_bfe_u32 {a}, {vLN}, 4, 1'); k(f'v_or_b32 {a}, s4, {a}'); k(f'v_lshlrev_b32 {a}, 1, {a}')
    k(f'v_and_b32 {b}, 15, {vLN}'); k(f'v_xor_b32 {a}, {a}, {b}'); k(f'v_lshlrev_b32 {a}, 4, {a}')
    k(f's_lshl_b32 s4, {S_WAVE}, 2')
    k(f'v_lshrrev_b32 {b}, 4, {vLN}'); k(f'v_add_u32 {b}, s4, {b}')
    k(f'v_lshl_add_u32 {vWq}, {b}, 13, {a}')
    k(f'v_mul_u32_u24 {b}, 1280, {b}'); k(f'v_add_u32 {vWo}, {b}, {a}')
    x = pool.alloc(4, name='st2')
    k(f'v_bfe_u32 {x[0]}, {vLN}, 2, 1')
    k(f'v_bfe_u32 {x[1]}, {vLN}, 3, 1')
    k(f'v_bfe_u32 {x[2]}, {vLN}, 4, 1')
    k(f'v_lshrrev_b32 {x[3]}, 5, {vLN}')
    k(f'v_lshl_or_b32 {a}, {x[2]}, 1, {x[0]}'); k(f'v_lshl_or_b32 {a}, {x[1]}, 2, {a}')
    k(f'v_lshl_or_b32 {b}, {x[1]}, 3, {x[0]}'); k(f'v_lshl_or_b32 {b}, {x[2]}, 2, {b}'); k(f'v_lshl_or_b32 {b}, {x[3]}, 4, {b}')
    k(f'v_lshlrev_b32 {b}, 8, {b}')
    k(f'v_and_b32 {x[0]}, 3, {vLN}'); k(f'v_lshl_add_u32 {b}, {x[0]}, 3, {b}')
    k(f's_lshl_b32 s4, {S_WAVE}, 1')
    k(f'v_xor_b32 {x[0]}, s4, {a}'); k(f'v_lshl_add_u32 {vTq0}, {x[0]}, 5, {b}')
    k(f'v_xor_b32 {vTq1}, 32, {vTq0}')
    k(f'v_xor_b32 {x[0]}, {S_WAVE}, {a}'); k(f'v_lshl_add_u32 {vTo0}, {x[0]}, 5, {b}')
    k(f'v_xor_b32 {vTo1}, 128, {vTo0}')
    x.free()
    k(f's_lshl_b32 s40, {S_IDX}, 8'); k(f's_mul_i32 s41, {S_IDX}, {128*1280}'); k(f's_lshl_b32 s42, {S_WAVE}, 10')
    def dma(n):
        u = units[n]; slot = n % 9
        for mm in range(4):
            k(f's_add_u32 m0, s42, {WL + slot * 16384 + mm * 4096}')
            if u[0] == 'O':
                k(f's_add_u32 s5, s41, {(64 * u[2] + 16 * mm) * 1280 + u[1] * 256}')
                k(f'buffer_load_dwordx4 {vWo}, {SR["O"]}, s5 offen' + WFL['chain'] + ' lds')
            else:
                k(f's_add_u32 s5, s40, {(64 * u[1] + 16 * mm) * 8192}')
                k(f'buffer_load_dwordx4 {vWq}, {SR[u[0]]}, s5 offen' + (WFL['chain'] if u[0] == 'Q' else WFL['chainkv']) + ' lds')
    tmp = pool.alloc(16, align=2, name='wtmp')
    ad = pool.alloc(2, name='wad')
    k.manual(True)
    DEPTH = 8
    q = []
    def issue(n):
        dma(n); q.extend([n] * 4)
    for n in range(DEPTH): issue(n)
    for n in range(40):
        u = units[n]; slot = n % 9
        last = max(i for i, e in enumerate(q) if e == n)
        k(f's_waitcnt vmcnt({min(63, len(q) - 1 - last)}) lgkmcnt(0)'); del q[:last + 1]
        k('s_barrier')
        if n + DEPTH < 40 and n >= 0:
            issue(n + DEPTH)
        a0, a1 = (vTo0, vTo1) if u[0] == 'O' else (vTq0, vTq1)
        k(f'v_add_u32 {ad[0]}, {WL + slot * 16384}, {a0}')
        k(f'v_add_u32 {ad[1]}, {WL + slot * 16384}, {a1}')
        dsts = []
        for o, op in enumerate(unit_ops(u)):
            s = SRC[op]
            dst = s[1] if s[0] == 'R' else tmp[8 * o:8 * o + 8]
            dsts.append((s, dst))
            for p in range(4):
                off = (32 * (p >> 1) + 2 * (p & 1)) * 256
                k(f'ds_read_b64_tr_b16 {dst[2*p:2*p+2]}, {ad[o]} offset:{off}')
        kind = dsts[0][0][0]
        if kind == 'G':
            k('s_waitcnt lgkmcnt(0)')
            for s, dst in dsts:
                for hh in range(2):
                    k(f's_add_u32 s5, {S_WSTR}, {s[1] * 2048 + hh * 1024}')
                    k(f'buffer_store_dwordx4 {dst[4*hh:4*hh+4]}, {v16l}, {SRD_WS}, s5 offen'); q.append('st')
            k('s_waitcnt vmcnt(%d)' % 0 if False else 's_nop 1')
        if kind == 'L':
            k('s_waitcnt lgkmcnt(0)')
            k('s_barrier')
            k(f's_lshl_b32 s4, {S_WAVE}, 12')
            k(f'v_add_u32 {ad[0]}, s4, {v16l}')
            k(f'v_add_u32 {ad[0]}, {WL + slot * 16384}, {ad[0]}')
            for o, (s, dst) in enumerate(dsts):
                for hh in range(2):
                    k(f'ds_write_b128 {ad[0]}, {dst[4*hh:4*hh+4]} offset:{o*2048 + hh*1024}')
    k('s_waitcnt vmcnt(0) lgkmcnt(0)')
    k('s_barrier')
    k.manual(False); k.drained()
    t.free(); tmp.free(); ad.free()

def smf(k, acc, A, B): k(f'v_smfmac_f32_16x16x64_bf16 {acc}, {A}, {B}, {vIDX}')

INTEGRATED = False
SAFE = [False]
def stf(): return ' sc1' if SAFE[0] else ''

def role_chain(k):
    pool = Pool('chain', 'v', range(8, 80))
    k(f'v_mov_b32 {vLN}, v2')
    inst_kernarg(k)
    k(f'v_lshlrev_b32 {v16l}, 4, {vLN}')
    k(f's_lshl_b32 s4, {S_INST}, 5'); k(f's_add_u32 s4, s4, {S_IDX}'); k('s_lshl_b32 s4, s4, 2'); k(f's_add_u32 s4, s4, {S_WAVE}')
    k(f's_lshl_b32 s4, s4, 14'); k(f's_add_u32 {S_WSTR}, s4, {WSTR}')
    startup_weights(k, pool)
    if TIMING:
        k('s_memrealtime s[98:99]'); k('s_waitcnt lgkmcnt(0)')
    t = pool.alloc(6, name='init')
    a, b, c_, d = t[0], t[1], t[2], t[3]
    k(f'v_and_b32 {a}, 15, {vLN}'); k(f'v_lshrrev_b32 {b}, 4, {vLN}')
    k(f'v_and_b32 {c_}, 2, {vLN}'); k(f'v_cmp_ne_u32 {M_N2}, 0, {c_}')
    k(f'v_cmp_gt_u32 {M_N8}, 8, {a}'); k(f'v_cmp_gt_u32 {M_N4}, 4, {a}')
    k(f'v_and_b32 {c_}, 1, {vLN}'); k(f'v_cmp_ne_u32 vcc, 0, {c_}')
    k(f'v_mov_b32 {d}, 0x44444444'); k(f'v_mov_b32 {vIDX}, 0xeeeeeeee'); k(f'v_cndmask_b32 {vIDX}, {d}, {vIDX}, vcc')
    k(f's_lshl_b32 s4, {S_WAVE}, 12'); k(f's_add_u32 s4, s4, {WL}'); k(f'v_add_u32 {vBL}, s4, {v16l}')
    k(f's_lshl_b32 s4, {S_WAVE}, 10'); k(f'v_lshlrev_b32 {c_}, 5, {a}'); k(f'v_lshl_add_u32 {c_}, {b}, 3, {c_}'); k(f'v_add_u32 {vXW}, s4, {c_}')
    k(f'v_bfe_u32 {c_}, {vLN}, 2, 2'); k(f'v_lshl_add_u32 {c_}, {b}, 3, {c_}'); k(f'v_lshlrev_b32 {c_}, 5, {c_}')
    k(f'v_and_b32 {d}, 3, {vLN}'); k(f'v_lshl_add_u32 {c_}, {d}, 3, {c_}'); k(f'v_add_u32 {vXR}, s4, {c_}')
    k(f'v_lshrrev_b32 {c_}, 2, {a}'); k(f'v_lshlrev_b32 {c_}, 1, {c_}'); k(f'v_and_b32 {d}, 1, {a}'); k(f'v_or_b32 {c_}, {c_}, {d}')
    k(f'v_lshlrev_b32 {c_}, 1, {c_}'); k(f'v_lshrrev_b32 {d}, 1, {b}'); k(f'v_or_b32 {c_}, {c_}, {d}')
    k(f'v_lshlrev_b32 {c_}, 4, {c_}'); k(f'v_and_b32 {d}, 1, {b}'); k(f'v_lshl_add_u32 {c_}, {d}, 3, {c_}')
    k(f's_lshr_b32 s4, {S_WAVE}, 1'); k('s_lshl_b32 s4, s4, 10'); k(f's_and_b32 s5, {S_WAVE}, 1'); k('s_lshl_b32 s5, s5, 9'); k('s_add_u32 s4, s4, s5')
    k(f'v_add_u32 {vOW}, s4, {c_}')
    k(f'v_lshrrev_b32 {c_}, 2, {a}'); k(f'v_lshlrev_b32 {c_}, 13, {c_}'); k(f'v_and_b32 {d}, 3, {a}'); k(f'v_lshl_add_u32 {d}, {b}, 2, {d}')
    k(f'v_lshl_add_u32 {vPS}, {d}, 4, {c_}')
    k(f's_mov_b32 {S_C}, {hex(f32bits(128 ** -0.5 * math.log2(math.e)))}')
    k(f's_mul_i32 {S_PB}, {S_INST}, {2*PART_BUF}'); k(f's_add_u32 {S_PB}, {S_PB}, {PART}')
    k(f's_mul_i32 {S_MB}, {S_INST}, {3*16384}'); k(f's_add_u32 {S_MB}, {S_MB}, {MEMR}')
    k(f's_lshl_b32 s4, {S_WAVE}, 15'); k(f's_lshl_b32 s5, {S_IDX}, 8'); k(f's_add_u32 {S_PST}, s4, s5')
    k(f's_lshl_b32 s4, {S_WAVE}, 14'); k(f's_lshl_b32 s5, {S_IDX}, 7'); k(f's_add_u32 {S_PST2}, s4, s5'); k(f's_add_u32 {S_PST2}, {S_PST2}, 262144')
    k(f's_mov_b32 {S_RED}, 0')
    k(f's_cmp_eq_u32 {S_WAVE}, 0'); k(f's_cselect_b32 {S_RED}, 1, 0')
    k(f's_cmp_lt_u32 {S_IDX}, 16'); k('s_cselect_b32 s4, 2, 0'); k(f's_cmp_eq_u32 {S_WAVE}, 1'); k(f's_cselect_b32 {S_RED}, s4, {S_RED}')
    k(f's_bfe_u32 s4, {S_IDX}, 0x20002'); k('s_lshl_b32 s4, s4, 8')
    k(f's_bfe_u32 s5, {S_IDX}, 0x10001'); k('s_lshl_b32 s5, s5, 4'); k('s_add_u32 s4, s4, s5')
    k(f's_and_b32 s5, {S_IDX}, 1'); k('s_lshl_b32 s5, s5, 3'); k('s_add_u32 s4, s4, s5')
    k(f's_lshr_b32 s5, {S_IDX}, 4'); k('s_lshl_b32 s5, s5, 12'); k('s_add_u32 s5, s5, s4')
    k('s_add_u32 s4, s4, 8192')
    k(f's_cmp_eq_u32 {S_RED}, 2'); k(f's_cselect_b32 {S_RPUB}, s4, s5')
    k(f's_lshl_b32 s4, {S_IDX}, 12'); k('s_add_u32 s4, s4, 262144'); k(f's_lshl_b32 s5, {S_IDX}, 13')
    k(f's_cmp_eq_u32 {S_RED}, 2'); k(f's_cselect_b32 {S_RLD}, s4, s5')
    k(f's_cmp_eq_u32 {S_RED}, 2'); k(f's_cselect_b64 {M_PUB}, {M_N4}, {M_N8}')
    k(f's_cmp_eq_u32 {S_RED}, 0'); k(f's_cselect_b64 {M_PUB}, 0, {M_PUB}')
    k(f's_cmp_lt_u32 {S_IDX}, 16'); k(f's_cselect_b64 {M_HALFCU}, -1, 0')
    k(f's_cmp_eq_u32 {S_WAVE}, 3'); k(f's_cselect_b64 {M_W3}, 1, 0')
    k(f's_mov_b32 {S_TAG}, 0')
    sl = pool.alloc(1, name='sl'); k(f'v_bfe_u32 {sl}, {vLN}, 1, 3')
    for dd in range(4): k(f'v_cmp_eq_u32 {M_SEL[dd]}, {dd}, {sl}')
    sl.free()
    k(f's_lshl_b32 s4, {S_IDX}, 13'); k(f's_lshl_b32 s5, {S_WAVE}, 11'); k(f's_add_u32 {S_POIF}, s4, s5')
    k(f's_lshl_b32 s4, {S_IDX}, 12'); k(f's_lshl_b32 s5, {S_WAVE}, 10'); k('s_add_u32 s4, s4, s5'); k(f's_add_u32 {S_POIH}, s4, 262144')
    k(f's_lshl_b32 s4, {S_WAVE}, 11'); k(f's_add_u32 {S_TOFF}, s4, {32 * 16384}')
    k('s_mov_b32 s18, -1'); k('s_mov_b32 s19, 0')
    k(f's_lshl_b32 s4, {S_INST}, 11'); k(f's_add_u32 s4, s4, {S_IDX}')
    k(f's_lshl_b32 {S_KX}, s4, 14'); k(f's_lshl_b32 s5, {S_WAVE}, 11'); k(f's_add_u32 {S_KX}, {S_KX}, s5')
    if KVX: k(f's_add_u32 {S_KX}, {S_KX}, {KVX}')
    k(f's_lshl_b32 {S_KVM}, s4, 12'); k(f's_lshl_b32 s5, {S_WAVE}, 10'); k(f's_add_u32 {S_KVM}, {S_KVM}, s5'); k(f's_add_u32 {S_KVM}, {S_KVM}, {KVM}')
    k(f's_lshl_b32 s4, {S_INST}, 5'); k(f's_add_u32 s4, s4, {S_IDX}'); k('s_lshl_b32 s4, s4, 7')
    k(f's_add_u32 {S_FKVM}, s4, {F_KVM}'); k(f's_add_u32 {S_FKVD}, s4, {F_KVD}')
    k(f's_mov_b32 {S_SEG}, 0'); k(f's_mov_b32 {S_KVSEEN}, 0')
    k(f's_lshl_b32 s4, {S_WAVE}, 10'); k(f's_add_u32 {S_TCW}, s4, {MEM + 6144}')
    k(f's_mov_b32 {S_PCUR}, {S_PB}'); k(f's_add_u32 {S_POTH}, {S_PB}, {PART_BUF}')
    k(f's_add_u32 {S_MNEXT}, {S_MB}, 16384'); k(f's_mov_b32 {S_MPOI}, {S_MB}'); k(f's_mov_b32 {S_MPP}, {S_MB}')
    if INTEGRATED:
        chain_init(k, pool)
    load_srd(k, 12, S_KA, 8, MEM0_BYTES)
    k(f'v_bfe_u32 {c_}, {vLN}, 1, 3'); k(f'v_mul_u32_u24 {c_}, 1280, {c_}')
    k(f'v_lshl_add_u32 {c_}, {b}, 5, {c_}'); k(f'v_and_b32 {d}, 1, {vLN}'); k(f'v_lshl_add_u32 {c_}, {d}, 4, {c_}')
    m0r = pool.alloc(12, align=2, name='m0')
    k(f's_lshl_b32 s4, {S_WAVE}, 7')
    for j in range(3):
        k(f's_add_u32 s5, s4, {j * 512}')
        k(f'buffer_load_dwordx4 {m0r[4*j:4*j+4]}, {c_}, s[12:15], s5 offen')
    k(f's_lshl_b32 s4, {S_WAVE}, 10'); k(f'v_add_u32 {d}, s4, {v16l}')
    k(f'ds_write_b128 {d}, {m0r[0:4]} offset:{MEM}')
    k(f'ds_write_b128 {d}, {m0r[4:8]} offset:{MEM + 4096}')
    L1 = k.newlabel('CH_M0')
    k(f's_cmp_ge_u32 {S_WAVE}, 2'); k(f's_cbranch_scc1 {L1}')
    k(f'ds_write_b128 {d}, {m0r[8:12]} offset:{MEM + 8192}')
    k.label(L1)
    z = m0r
    k('s_waitcnt vmcnt(0) lgkmcnt(0)')
    for i in range(4): k(f'v_mov_b32 {z[i]}, 0')
    k(f'ds_write_b128 {v16l}, {z[0:4]} offset:{TC}')
    k('s_waitcnt lgkmcnt(0)')
    k('s_barrier')
    k.drained()
    m0r.free(); t.free()
    for i in range(1, 4): k(f's_add_u32 {S_WS4[i]}, {S_WSTR}, {4096 * i}')
    k(f's_add_u32 {S_VX}, {S_KX}, 8192')
    gload(k, Reg('v', G23, 8), 0)
    k('s_waitcnt vmcnt(0)'); k.drained()
    if TIMING:
        k('s_memtime s[64:65]'); k('s_memrealtime s[66:67]'); k('s_waitcnt lgkmcnt(0)')
        for i in range(8): k(f's_mov_b32 s{80+i}, 0')
    LEND = k.newlabel('CH_END')
    if INTEGRATED:
        vt = pool.alloc(2, name='iw')
        init_wait(k, vt)
        k(f's_lshl_b32 s4, {S_INST}, 2'); k(f'v_mov_b32 {vt[1]}, s4')
        k(f'global_load_dword {vt[0]}, {vt[1]}, {DBG_PTR} sc1'); k('s_waitcnt vmcnt(0)')
        k(f'v_readfirstlane_b32 s6, {vt[0]}')
        k('s_mov_b32 s60, s6')
        k('s_mov_b32 s61, 1'); poll_flag(k, S_FKVD, 's61', vt, 'CH_KV0'); k(f's_mov_b32 {S_KVSEEN}, s6')
        vt.free()
        k.drained()
        LSAFE = k.newlabel('CH_SAFE')
        k('s_cmp_lt_u32 s60, 32'); k(f's_cbranch_scc1 {LSAFE}')
        for safe in (False, True):
            SAFE[0] = safe
            if safe: k.label(LSAFE); k.drained()
            LOOP = k.newlabel('CH_LOOP'); k.label(LOOP)
            step(k, pool, LOOP, LEND)
        SAFE[0] = False
    else:
        LOOP = k.newlabel('CH_LOOP')
        k.label(LOOP)
        step(k, pool, LOOP, LEND)
    k.label(LEND)
    if TIMING:
        k('s_memtime s[68:69]'); k('s_memrealtime s[70:71]'); k('s_waitcnt lgkmcnt(0)')
        k('s_sub_u32 s68, s68, s64'); k('s_sub_u32 s70, s70, s66')
        k('s_load_dwordx2 s[72:73], s[0:1], 120'); k('s_waitcnt lgkmcnt(0)')
        k(f's_lshl_b32 s74, {S_INST}, 5'); k(f's_add_u32 s74, s74, {S_IDX}'); k('s_lshl_b32 s74, s74, 2'); k(f's_add_u32 s74, s74, {S_WAVE}'); k('s_lshl_b32 s74, s74, 6')
        k('v_mov_b32 v8, s74'); k('v_add_u32 v8, 1024, v8')
        k('v_mov_b32 v12, s68'); k('v_mov_b32 v13, s70'); k('v_mov_b32 v14, s66'); k('v_mov_b32 v15, s100')
        k('global_store_dwordx4 v8, v[12:15], s[72:73]')
        for j in range(2):
            for i in range(4): k(f'v_mov_b32 v{16+4*j+i}, ' + ('s98' if (j == 0 and i == 0 and not STAMPS_ON and not TRACE) else f's{80+4*j+i}'))
            k(f'global_store_dwordx4 v8, v[{16+4*j}:{19+4*j}], s[72:73] offset:{16+16*j}')
        k('s_waitcnt vmcnt(0)')

def chain_init(k, pool):
    p = pool.alloc(4, name='ip'); a = pool.alloc(2, name='ia')
    zero_flag(k, S_FKVM, a)
    L = k.newlabel('CI')
    k(f's_cmp_eq_u32 {S_RED}, 0'); k(f's_cbranch_scc1 {L}')
    for i in range(4): k(f'v_mov_b32 {p[i]}, -1')
    for b in range(1):
        k(f's_add_u32 s5, {S_PB}, {S_RLD}')
        if b: k(f's_add_u32 s5, s5, {PART_BUF}')
        for m in range(4): k(f'buffer_store_dwordx4 {p}, {v16l}, {SRD_WS}, s5 offen offset:{m * 1024} sc1')
        L2 = k.newlabel('CI2')
        k(f's_cmp_eq_u32 {S_RED}, 2'); k(f's_cbranch_scc1 {L2}')
        k('s_add_u32 s5, s5, 4096')
        for m in range(4): k(f'buffer_store_dwordx4 {p}, {v16l}, {SRD_WS}, s5 offen offset:{m * 1024} sc1')
        k.label(L2)
    pub_addr(k, a[0], a[1])
    k(f's_cmp_eq_u32 {S_RED}, 2'); k(f's_cselect_b64 exec, {M_N4}, {M_N8}')
    for b in range(3):
        k(f's_add_u32 s5, {S_MB}, {S_RPUB}')
        if b: k(f's_add_u32 s5, s5, {b * 16384}')
        k(f'buffer_store_dwordx2 {p[0:2]}, {a[0]}, {SRD_WS}, s5 offen sc1')
    k('s_mov_b64 exec, -1')
    k.label(L)
    init_arrive(k, a)
    k.drained()
    p.free(); a.free()

def f32bits(x):
    import struct
    return struct.unpack('<I', struct.pack('<f', x))[0]

STAMP = [0]
def stamp(k, i):
    if not TIMING: return
    k('s_memtime s[76:77]'); k('s_waitcnt lgkmcnt(0)')
    k('s_sub_u32 s78, s76, s79'); k(f's_add_u32 s{80+i}, s{80+i}, s78'); k('s_mov_b32 s79, s76')

def gload(k, dst, gi):
    k(f's_add_u32 s5, {S_WSTR}, {gi * 2048}')
    k(f'buffer_load_dwordx4 {dst[0:4]}, {v16l}, {SRD_WS}, s5 offen')
    k(f'buffer_load_dwordx4 {dst[4:8]}, {v16l}, {SRD_WS}, s5 offen offset:1024')

def zero(k, r):
    for i in range(0, r.n, 2): k(f'v_mov_b64 {r[i:i+2]}, 0')

KVF = ' nt'
S_KVSEEN = 's62'
S_TCW = 's63'
S_MPP = 's88'
S_POIF, S_POIH = 's89', 's96'
M_PUB, M_HALFCU, M_W3 = 's[90:91]', 's[92:93]', 's[94:95]'
NLS_O = 2
NPRE = 4
RED_SLEEP = 3
RED_SLEEP_H = 4
PIPE_POLL = True
POLL_GAP = 2
PRE_SLEEP = 0
TOUCH_ON = True
STAMPS_ON = True
COUNT_POLLS = False
FAILHIST = None
ONLY = None
P1_AT = -1
MARK = None
def mark(k, name):
    if TIMING and MARK == name: stamp(k, 0)
    if TIMING and TRACE == name:
        k('s_memrealtime s[76:77]'); k('s_waitcnt lgkmcnt(0)')
        for j in range(8):
            k(f's_cmp_eq_u32 {S_SEG}, {20 + j}'); k(f's_cselect_b32 s{80+j}, s76, s{80+j}')
TRACE = None

def bstamp(k, i):
    if TIMING and STAMPS_ON and (ONLY is None or ONLY == i): stamp(k, i)

S_WS4 = [S_WSTR, 's12', 's13', 's14']
def gload1(k, dst, gi, half):
    off = (gi & 1) * 2048 + half * 1024
    k(f'buffer_load_dwordx4 {dst[4*half:4*half+4]}, {v16l}, {SRD_WS}, {S_WS4[gi >> 1]} offen offset:{off}')

class VStream:
    def __init__(self, k, pool, slot, accv, G):
        self.k, self.pool, self.accv, self.G = k, pool, accv, G
        self.order = [9, 8, 7, 6, 0, 1, 2, 3, 4, 5]
        self.slot = {9: slot[9], 8: slot[8], 7: slot[7]}
        self.slot[6] = slot[9]; self.slot[0] = slot[8]; self.slot[1] = slot[7]
        self.slot[2] = slot[9]; self.slot[3] = slot[7]; self.slot[4] = slot[9]; self.slot[5] = slot[7]
        self.after = {}
        for j, p in {3: 0, 4: 1, 5: 2, 6: 3, 7: 5, 8: 6, 9: 7}.items(): self.after.setdefault(p, []).append(j)
        self.ops = [('V', t, c) for c in self.order for t in range(2)]
        self.lops = [op for op in self.ops if SRC[op][0] == 'L']
        self.li = {op: i for i, op in enumerate(self.lops)}
        self.i = 0; self.LS = None; self.bl = None
    def start_l(self):
        self.LS = [self.pool.alloc_at(8, 8, 'L0'), self.pool.alloc_at(16, 8, 'L1')]
        self.lload(0); self.lload(1)
    def lload(self, n):
        op = self.lops[n]; off = SRC[op][1] * 16384 + SRC[op][2] * 2048
        d = self.LS[n % 2]; ad = vBL
        if off >= 65536:
            if self.bl is None:
                self.bl = self.pool.alloc(1, name='blv'); self.k(f'v_add_u32 {self.bl}, 65536, {vBL}')
            ad = str(self.bl); off -= 65536
        self.k(f'ds_read_b128 {d[0:4]}, {ad} offset:{off}'); self.k(f'ds_read_b128 {d[4:8]}, {ad} offset:{off + 1024}')
    def emit(self, n=1):
        k = self.k
        for _ in range(n):
            if self.i >= len(self.ops): return
            op = self.ops[self.i]; s = SRC[op]; c = op[2]
            Bv = s[1] if s[0] == 'R' else (self.G[op[1]] if s[0] == 'G' else self.LS[self.li[op] % 2])
            smf(k, self.accv[op[1]], self.slot[c], Bv)
            if s[0] == 'L' and self.li[op] + 2 < len(self.lops): self.lload(self.li[op] + 2)
            j = self.i // 2
            if op[1] == 1:
                for jn in self.after.get(j, []):
                    cn = self.order[jn]
                    k(f'ds_read_b128 {self.slot[cn]}, {v16l} offset:{MEM + cn * 1024}')
            self.i += 1
    def finish(self):
        self.emit(100)
        for l_ in self.LS: l_.free()
        if self.bl is not None: self.bl.free()

def poison_ops(k, pz, tag=None):
    def p0():
        k(f'v_mov_b32 {pz[0]}, -1'); k(f'v_mov_b32 {pz[1]}, -1')
        pub_addr(k, pz[2], pz[3])
        k(f's_add_u32 s6, {S_MPP}, {S_RPUB}'); k(f's_mov_b64 exec, {M_PUB}')
        k(f'buffer_store_dwordx2 {pz[0:2]}, {pz[2]}, {SRD_WS}, s6 offen' + stf(), tag=tag)
        k('s_mov_b64 exec, -1')
    def p1():
        k(f's_add_u32 s6, {S_POTH}, {S_POIF}')
        k(f'buffer_store_dwordx4 {pz}, {v16l}, {SRD_WS}, s6 offen' + stf(), tag=tag)
    def p2():
        k(f's_add_u32 s6, {S_POTH}, {S_POIF}')
        k(f'buffer_store_dwordx4 {pz}, {v16l}, {SRD_WS}, s6 offen offset:1024' + stf(), tag=tag)
    def p3():
        k(f's_add_u32 s6, {S_POTH}, {S_POIH}'); k(f's_mov_b64 exec, {M_HALFCU}')
        k(f'buffer_store_dwordx4 {pz}, {v16l}, {SRD_WS}, s6 offen' + stf(), tag=tag)
        k('s_mov_b64 exec, -1')
    return [p0]

def step(k, pool, LOOP, LEND):
    if TIMING and STAMPS_ON:
        k('s_memtime s[76:77]'); k('s_waitcnt lgkmcnt(0)'); k('s_mov_b32 s79, s76')
    G0, G1 = pool.alloc_at(G01, 8, 'G0'), pool.alloc_at(G01 + 8, 8, 'G1')
    G2, G3 = pool.alloc_at(G23, 8, 'G2'), pool.alloc_at(G23 + 8, 8, 'G3')
    k.pending_vm([G2[0:4], G2[4:8]])
    pz = pool.alloc_at(44, 4, 'pz')
    accq = [pool.alloc_at(8, 4, 'q0'), pool.alloc_at(12, 4, 'q1')]
    acck = [pool.alloc_at(16, 4, 'k0'), pool.alloc_at(24, 4, 'k1')]
    A = [pool.alloc_at(28, 4, 'A0'), pool.alloc_at(32, 4, 'A1'), pool.alloc_at(20, 4, 'A2')]
    KX = pool.alloc_at(36, 8, 'KX')
    slot = {c: A[c % 3] for c in range(10)}
    def rdA(c): k(f'ds_read_b128 {slot[c]}, {v16l} offset:{MEM + c * 1024}')
    rdA(0); rdA(1)
    for r in accq + acck: zero(k, r)
    gmap = {('K', 0, 9): G2, ('K', 1, 9): G3, ('Q', 0, 9): G0, ('Q', 1, 9): G1}
    def B(op):
        s = SRC[op]
        return s[1] if s[0] == 'R' else gmap[op]
    def kx(h): k(f'buffer_load_dwordx4 {KX[4*h:4*h+4]}, {v16l}, {SRD_WS}, {S_KX} offen offset:{1024*h}' + KVF)
    vm = {0: lambda: gload1(k, G3, 1, 0), 1: lambda: gload1(k, G3, 1, 1), 2: lambda: gload1(k, G0, 2, 0), 3: lambda: gload1(k, G0, 2, 1),
          4: lambda: gload1(k, G1, 3, 0), 5: lambda: gload1(k, G1, 3, 1), 6: lambda: None, 7: lambda: kx(0), 8: lambda: kx(1)}
    for c in range(9):
        if c + 2 < 10: rdA(c + 2)
        if TIMING and P1_AT == c: stamp(k, 0)
        for t in range(2): smf(k, acck[t], slot[c], B(('K', t, c)))
        vm[c]()
        for t in range(2): smf(k, accq[t], slot[c], B(('Q', t, c)))
    for t in range(2): smf(k, acck[t], slot[9], B(('K', t, 9)))
    accv = [G2[0:4], G2[4:8]]
    zero(k, G2)
    VX = G3
    k(f'buffer_load_dwordx4 {VX[0:4]}, {v16l}, {SRD_WS}, {S_VX} offen' + KVF)
    for t in range(2): smf(k, accq[t], slot[9], B(('Q', t, 9)))
    G0.free(); G1.free()
    bstamp(k, 0)
    V = VStream(k, pool, slot, accv, None)
    V.emit(2)
    W = pool.alloc_at(64, 4, 'W')
    KV4 = pool.alloc_at(68, 4, 'KV4')
    TCH = pool.alloc_at(76, 2, 'touch')
    for t in range(2):
        a = acck[t]
        k(f'v_add_f32 {a[0]}, {a[0]}, {a[1]}'); k(f'v_add_f32 {a[2]}, {a[2]}, {a[3]}')
        k(f'v_cvt_pk_bf16_f32 {W[2*t]}, {a[0]}, {a[2]}')
    k(f'buffer_load_dwordx4 {VX[4:8]}, {v16l}, {SRD_WS}, {S_VX} offen offset:1024' + KVF)
    V.emit(2)
    for t in range(2):
        a = accq[t]
        k(f'v_add_f32 {a[0]}, {a[0]}, {a[1]}'); k(f'v_add_f32 {a[2]}, {a[2]}, {a[3]}')
        k(f'v_cvt_pk_bf16_f32 {W[2*t+1]}, {a[0]}, {a[2]}')
        k(f'ds_write_b64 {vXW}, {W[2*t:2*t+2]} offset:{XQK + t * 512}')
    for r in accq + acck: r.free()
    if TOUCH_ON:
        k(f'v_lshlrev_b32 {TCH[1]}, 3, {v16l}')
        k(f's_add_u32 s5, {S_KX}, {S_TOFF}')
        if INTEGRATED and not NOSAMPLE:
            k(f's_add_u32 s6, {S_SEG}, 2'); k(f's_cmp_ge_u32 {S_KVSEEN}, s6'); k('s_cselect_b64 exec, s[18:19], 0')
        else:
            k('s_mov_b64 exec, 0xffffffff')
        k(f'buffer_load_dword {TCH[0]}, {TCH[1]}, {SRD_WS}, s5 offen')
        k('s_mov_b64 exec, -1')
    V.emit(2)
    for t in range(2): k(f'v_mov_b32 {KV4[2*t]}, {W[2*t]}')
    if INTEGRATED and not NOSAMPLE:
        k(f'buffer_load_dword {TCH[1]}, off, {SRD_WS}, {S_FKVD} sc1')
    k('s_waitcnt lgkmcnt(0)'); k('s_barrier'); k.drained(vm=False)
    bstamp(k, 1)
    X0 = pool.alloc_at(8, 4, 'X0'); XR = [pool.alloc_at(12, 4, 'Xa'), pool.alloc_at(16, 4, 'Xb')]
    xa = KV4[1]
    def rdX(dst, m):
        ad = vXR
        if m:
            k(f'v_xor_b32 {xa}, {m * 1024}, {vXR}'); ad = str(xa)
        k(f'ds_read_b64_tr_b16 {dst[0:2]}, {ad} offset:{XQK}')
        k(f'ds_read_b64_tr_b16 {dst[2:4]}, {ad} offset:{XQK + 128}')
    rdX(X0, 0); rdX(XR[0], 1); rdX(XR[1], 2)
    k(f's_sub_u32 s5, {S_KVM}, {32 * 4096}')
    k(f's_cmp_lg_u32 {S_SEG}, 0'); k('s_cselect_b64 exec, -1, 0')
    k(f'buffer_store_dwordx4 {pz}, {v16l}, {SRD_WS}, s5 offen sc1')
    k('s_mov_b64 exec, -1')
    X3 = W
    rdX(X3, 3)
    V.emit(2)
    k(f's_sub_u32 s6, {S_SEG}, 1'); k(f's_max_i32 s6, s6, 0')
    k(f'v_mov_b32 {xa}, s6')
    k(f's_cmp_le_u32 {S_SEG}, {EAGER}'); k(f's_cselect_b64 exec, {M_W3}, 0')
    k(f'buffer_store_dword {xa}, {v16l}, {SRD_WS}, {S_FKVM} offen sc1')
    k('s_mov_b64 exec, -1')
    TX = [pool.alloc_at(24, 4, 'TX0'), pz]
    TM = pool.alloc_at(72, 4, 'TM')
    for t in range(2): k(f'v_mfma_f32_16x16x32_bf16 {TX[t]}, {KX[4*t:4*t+4]}, {X0}, 0')
    k(f'v_mfma_f32_16x16x32_bf16 {TM}, {X0}, {X0}, 0')
    k(f'v_mfma_f32_16x16x32_bf16 {TM}, {XR[0]}, {XR[0]}, {TM}')
    k(f'v_mfma_f32_16x16x32_bf16 {TM}, {XR[1]}, {XR[1]}, {TM}')
    k(f'v_mfma_f32_16x16x32_bf16 {TM}, {X3}, {X3}, {TM}')
    V.emit(2)
    for x_ in XR + [X0, KX, X3]: x_.free()
    A[2].free()
    V.start_l()
    k(f's_mov_b64 vcc, {M_N2}')
    k(f'v_add_u32 {xa}, {S_TCW}, {v16l}')
    for r in range(4):
        k(f'v_cndmask_b32_dpp {TX[0][r]}, {TX[1][r]}, {TX[0][r]}, vcc quad_perm:[2,3,2,3] row_mask:0xf bank_mask:0xf')
    k(f'ds_write_b128 {xa}, {TX[0]}')
    V.emit(2)
    k('s_waitcnt lgkmcnt(0)'); k('s_barrier'); k.drained(vm=False)
    bstamp(k, 2)
    S = TX[0]; S1 = TX[1]; S2 = pool.alloc_at(36, 4, 'S2'); S3 = pool.alloc_at(40, 4, 'S3')
    for m, dst in ((1, S1), (2, S2), (3, S3)):
        k(f'v_xor_b32 {dst[0]}, {m * 1024}, {xa}')
        k(f'ds_read_b128 {dst}, {dst[0]}')
    mx, t1 = TM[2], TM[3]
    k(f'v_mov_b32 {t1}, 0xff800000')
    k(f'v_cndmask_b32 {TM[0]}, {t1}, {TM[0]}, vcc')
    k(f'v_cndmask_b32 {TM[1]}, {t1}, {TM[1]}, vcc')
    k(f'v_max_f32 {mx}, {TM[0]}, {TM[1]}')
    pz2 = pool.alloc_at(64, 4, 'pz2')
    po = poison_ops(k, pz2, tag='poison')
    po[0](); pz2.free()
    V.emit(2)
    for h_ in range(2): k(f'v_pk_add_f32 {S[2*h_:2*h_+2]}, {S[2*h_:2*h_+2]}, {S1[2*h_:2*h_+2]}')
    for h_ in range(2): k(f'v_pk_add_f32 {S2[2*h_:2*h_+2]}, {S2[2*h_:2*h_+2]}, {S3[2*h_:2*h_+2]}')
    for h_ in range(2): k(f'v_pk_add_f32 {S[2*h_:2*h_+2]}, {S[2*h_:2*h_+2]}, {S2[2*h_:2*h_+2]}')
    for r_ in (S1, S2, S3): r_.free()
    mark(k, 'adds')
    k(f'v_max3_f32 {mx}, {mx}, {S[0]}, {S[1]}'); k(f'v_max3_f32 {mx}, {mx}, {S[2]}, {S[3]}')
    V.emit(2)
    k(f'v_max_f32_dpp {mx}, {mx}, {mx} quad_perm:[2,3,0,1] row_mask:0xf bank_mask:0xf')
    k(f'v_mov_b32 {t1}, {mx}')
    k(f'v_permlane16_swap_b32 {mx}, {t1}'); k(f'v_max_f32 {mx}, {mx}, {t1}')
    k(f'v_mov_b32 {t1}, {mx}')
    V.emit(1)
    k(f'v_permlane32_swap_b32 {mx}, {t1}'); k(f'v_max_f32 {mx}, {mx}, {t1}')
    k(f'v_mul_f32 {mx}, {S_C}, {mx}')
    mark(k, 'max')
    V.emit(1)
    for r in range(4): k(f'v_fma_f32 {S[r]}, {S[r]}, {S_C}, -{mx}')
    for r in range(2): k(f'v_fma_f32 {TM[r]}, {TM[r]}, {S_C}, -{mx}')
    for r in range(4): k(f'v_exp_f32 {S[r]}, {S[r]}')
    for r in range(2): k(f'v_exp_f32 {TM[r]}, {TM[r]}')
    mark(k, 'exp')
    V.finish()
    mark(k, 'vfin')
    A[0].free(); A[1].free()
    GOa = [pool.alloc_at(8, 8, 'GOa0'), pool.alloc_at(16, 8, 'GOa1')]
    gload1(k, GOa[0], 4, 0)
    P = pool.alloc_at(28, 4, 'P'); BM = pool.alloc_at(64, 2, 'BM')
    ONE = pool.alloc_at(40, 4, 'one'); L4 = pool.alloc_at(44, 4, 'L4')
    k(f'v_cvt_pk_bf16_f32 {P[0]}, {S[0]}, {S[1]}'); k(f'v_cvt_pk_bf16_f32 {P[1]}, {S[2]}, {S[3]}')
    k(f'v_mov_b32 {BM[0]}, 0'); k(f'v_cvt_pk_bf16_f32 {BM[1]}, {TM[0]}, {TM[1]}')
    k(f'v_mov_b32_dpp {P[2]}, {P[0]} quad_perm:[0,1,0,1] row_mask:0xf bank_mask:0xf')
    k(f'v_mov_b32_dpp {P[3]}, {P[1]} quad_perm:[0,1,0,1] row_mask:0xf bank_mask:0xf')
    O = [pool.alloc_at(32, 4, 'O0'), pool.alloc_at(36, 4, 'O1')]
    for i in range(4): k(f'v_mov_b32 {ONE[i]}, 0x3f803f80')
    gload1(k, GOa[0], 4, 1)
    for t in range(2): k(f'v_mfma_f32_16x16x32_bf16 {O[t]}, {VX[4*t:4*t+4]}, {P}, 0')
    k(f'v_mfma_f32_16x16x32_bf16 {L4}, {ONE}, {P}, 0')
    for t in range(2):
        k(f'v_add_f32 {accv[t][0]}, {accv[t][0]}, {accv[t][1]}'); k(f'v_add_f32 {accv[t][2]}, {accv[t][2]}, {accv[t][3]}')
        k(f'v_cvt_pk_bf16_f32 {KV4[2*t+1]}, {accv[t][0]}, {accv[t][2]}')
    k(f'v_mfma_f32_16x16x16_bf16 {L4}, {ONE[0:2]}, {BM}, {L4}')
    mark(k, 'pvx')
    gload1(k, GOa[1], 5, 0)
    for t in range(2): k(f'v_mfma_f32_16x16x16_bf16 {O[t]}, {KV4[2*t:2*t+2]}, {BM}, {O[t]}')
    ONE.free()
    ls = L4[0]
    G2.free()
    LCONT = k.newlabel('CH_CONT')
    k(f's_cmp_lt_u32 {S_SEG}, {EAGER}'); k(f's_cbranch_scc1 {LCONT}')
    k.save()
    k(f'buffer_store_dwordx4 {KV4}, {v16l}, {SRD_WS}, {S_KVM} offen sc1')
    k('s_waitcnt vmcnt(0)'); k('s_barrier')
    k(f's_add_u32 s6, {S_SEG}, 1')
    flag_store(k, pool, S_FKVM, 's6')
    k(f's_cmp_lt_u32 {S_SEG}, 63'); k(f's_cbranch_scc1 {LCONT}')
    k('s_waitcnt vmcnt(0)')
    k(f's_branch {LEND}')
    k.restore()
    k.label(LCONT)
    gload1(k, GOa[1], 5, 1)
    k(f'v_rcp_f32 {ls}, {ls}')
    mark(k, 'rcp')
    G3.free()
    GOb = [pool.alloc_at(56, 8, 'GOb0'), None]
    gload1(k, GOb[0], 6, 0)
    for t in range(2):
        for h_ in range(2): k(f'v_pk_mul_f32 {O[t][2*h_:2*h_+2]}, {O[t][2*h_:2*h_+2]}, {L4[0:2]} op_sel_hi:[1,0]')
        k(f'v_cvt_pk_bf16_f32 {P[2*t]}, {O[t][0]}, {O[t][1]}'); k(f'v_cvt_pk_bf16_f32 {P[2*t+1]}, {O[t][2]}, {O[t][3]}')
    k(f's_mov_b64 exec, {M_N2}')
    for t in range(2): k(f'ds_write_b64 {vOW}, {P[2*t:2*t+2]} offset:{OX + t * 256}')
    k('s_mov_b64 exec, -1')
    mark(k, 'oxw')
    gload1(k, GOb[0], 6, 1)
    for r in (S, TM, BM, O[0], O[1], L4): r.free()
    LS = [pool.alloc_at(32, 8, 'L0'), pool.alloc_at(48, 8, 'L1')]
    bl = pool.alloc_at(78, 1, 'blo')
    k(f'v_add_u32 {bl}, 81920, {vBL}')
    oops = [('O', i, c2) for i in range(10) for c2 in range(2)]
    lops = [op for op in oops if SRC[op][0] == 'L']
    li = {op: i for i, op in enumerate(lops)}
    def lload(n):
        op = lops[n]; base = (SRC[op][1] - 5) * 16384 + SRC[op][2] * 2048
        k(f'ds_read_b128 {LS[n % NLS_O][0:4]}, {bl} offset:{base}'); k(f'ds_read_b128 {LS[n % NLS_O][4:8]}, {bl} offset:{base + 1024}')
    for n in range(NLS_O): lload(n)
    P.free()
    GOb[1] = pool.alloc_at(24, 8, 'GOb1')
    AO = [pool.alloc_at(40, 4, 'AO0'), pool.alloc_at(44, 4, 'AO1')]
    acc = {0: pool.alloc_at(64, 4, 'o0'), 1: pool.alloc_at(72, 4, 'o1')}
    for i in range(2): zero(k, acc[i])
    mark(k, 'preb3')
    k('s_waitcnt lgkmcnt(0)'); k('s_barrier'); k.drained(vm=False)
    for c2 in range(2): k(f'ds_read_b128 {AO[c2]}, {v16l} offset:{OX + c2 * 1024}')
    bstamp(k, 3)
    mark(k, 'b3')
    if INTEGRATED and not NOSAMPLE:
        k(f'v_readfirstlane_b32 s6, {TCH[1]}'); k(f's_max_u32 {S_KVSEEN}, {S_KVSEEN}, s6')
    TCH.free()
    def epi(i):
        a = acc[i]; q = acc[i & ~3]
        k(f'v_add_f32 {a[0]}, {a[0]}, {a[1]}'); k(f'v_add_f32 {a[2]}, {a[2]}, {a[3]}')
        k(f'v_cvt_pk_bf16_f32 {q[i & 3]}, {a[0]}, {a[2]}')
        k(f'v_bfi_b32 {q[i & 3]}, 1, {S_TAG}, {q[i & 3]}')
        if i & 3: a.free()
        if i in (3, 7):
            k(f's_add_u32 s5, {S_PCUR}, {S_PST}')
            if i == 7: k(f's_add_u32 s5, s5, {16 * 8192}')
            k(f'buffer_store_dwordx4 {q}, {vPS}, {SRD_WS}, s5 offen' + stf()); q.free()
        if i == 9:
            h2 = pool.alloc(1, name='ps2'); k(f'v_lshrrev_b32 {h2}, 1, {vPS}')
            k(f's_add_u32 s5, {S_PCUR}, {S_PST2}')
            k(f'buffer_store_dwordx2 {q[0:2]}, {h2}, {SRD_WS}, s5 offen' + stf()); h2.free(); q.free()
    gmap = {('O', 0, 1): GOa[0], ('O', 1, 1): GOa[1], ('O', 8, 1): GOb[0], ('O', 9, 1): GOb[1]}
    def grab(nx):
        if nx < 10 and nx not in acc:
            try: acc[nx] = pool.alloc(4, name=f'o{nx}')
            except RuntimeError: return False
            zero(k, acc[nx])
        return True
    for i in range(10):
        assert grab(i), (i, sorted(pool.free), {r: pool.names.get(r) for r in sorted(pool.all - set(pool.free))})
        for c2 in range(2):
            op = ('O', i, c2); s = SRC[op]
            Bv = s[1] if s[0] == 'R' else (gmap[op] if s[0] == 'G' else LS[li[op] % NLS_O])
            smf(k, acc[i], AO[c2], Bv)
            if s[0] == 'L' and li[op] + NLS_O < len(lops): lload(li[op] + NLS_O)
        mark(k, 'r%d' % i)
        if i == 0: gload1(k, GOb[1], 7, 0)
        if i == 1: gload1(k, GOb[1], 7, 1)
        if i < 2: GOa[i].free()
        if i >= 2: epi(i - 2)
        for nx in (i + 1, i + 2, i + 3): grab(nx)
    epi(8); epi(9)
    for r in AO + LS + GOb + [bl]: r.free()
    KVP = pool.alloc_at(44, 4, 'KVprev')
    for i in range(4): k(f'v_mov_b32 {KVP[i]}, {KV4[i]}')
    KV4.free()
    bstamp(k, 4)
    mark(k, 'oend')
    hops(k, pool)
    KVP.free()
    mark(k, 'b0')
    bstamp(k, 5)
    k(f's_add_u32 {S_SEG}, {S_SEG}, 1')
    k(f's_add_u32 {S_KX}, {S_KX}, {32 * 16384}'); k(f's_add_u32 {S_KVM}, {S_KVM}, {32 * 4096}'); k(f's_add_u32 {S_VX}, {S_VX}, {32 * 16384}')
    k(f's_xor_b32 {S_TAG}, {S_TAG}, 1')
    k(f's_mov_b32 {S_MPP}, {S_MPOI}')
    k(f's_mov_b32 {S_MPOI}, {S_MNEXT}')
    k(f's_add_u32 {S_MNEXT}, {S_MNEXT}, 16384'); k(f's_sub_u32 s5, {S_MNEXT}, {S_MB}'); k('s_cmp_eq_u32 s5, 49152')
    k(f's_cselect_b32 {S_MNEXT}, {S_MB}, {S_MNEXT}')
    if DBG_STEPS:
        k(f's_cmp_ge_u32 {S_SEG}, {DBG_STEPS}'); k(f's_cbranch_scc1 {LEND}')
    k(f's_branch {LOOP}')

KVM_EARLY = False
S_TOFF = 's97'
S_VX = 's15'
S_TCH = 's16'
def hops(k, pool):
    LPOLL, LNR = k.newlabel('HP_POLL'), k.newlabel('HP_NR')
    G2 = pool.alloc_at(G23, 8, 'G2')
    k.manual(True)
    k(f's_cmp_eq_u32 {S_RED}, 0'); k(f's_cbranch_scc1 {LNR}')
    G2.free()
    hop1(k, pool)
    G2 = pool.alloc_at(G23, 8, 'G2')
    k(f's_branch {LPOLL}')
    k.label(LNR)
    if INTEGRATED:
        LSEEN = k.newlabel('HP_SEEN')
        k(f's_cmp_lg_u32 {S_WAVE}, 3'); k(f's_cbranch_scc1 {LSEEN}')
        k(f's_add_u32 s61, {S_SEG}, 2'); k('s_min_u32 s61, s61, 64')
        k(f's_cmp_ge_u32 {S_KVSEEN}, s61'); k(f's_cbranch_scc1 {LSEEN}')
        vt = pool.alloc(2, name='kvp')
        poll_flag(k, S_FKVD, 's61', vt, 'CH_KV')
        k(f's_mov_b32 {S_KVSEEN}, s6')
        vt.free()
        k.label(LSEEN)
    k.label(LPOLL)
    k('s_barrier')
    if PRE_SLEEP: k(f's_sleep {PRE_SLEEP}')
    dS = [pool.alloc_at(56, 12, 'mlandA'), pool.alloc_at(68, 12, 'mlandB')]; t = pool.alloc(2, name='h2t')
    k(f's_lshl_b32 s4, {S_WAVE}, 1'); k(f's_cmp_eq_u32 {S_WAVE}, 3'); k('s_cselect_b32 s4, 7, s4'); k('s_lshl_b32 s4, s4, 10')
    k(f's_add_u32 s5, {S_MNEXT}, s4')
    k(f'v_add_u32 {t[1]}, s4, {v16l}')
    k('s_mov_b32 s7, 0')
    L3, L2, LD = k.newlabel('H2_3'), k.newlabel('H2_2'), k.newlabel('H2_D')
    k(f's_cmp_ge_u32 {S_WAVE}, 2'); k(f's_cbranch_scc1 {L3}')
    for n, L in ((2, L2), (3, L3)):
        k.label(L)
        def issue(d):
            for j in range(n): k(f'buffer_load_dwordx4 {d[4*j:4*j+4]}, {v16l}, {SRD_WS}, s5 offen offset:{j * 1024} sc1')
        def check(d, LOK):
            k(f'v_max3_u32 {t[0]}, {d[0]}, {d[1]}, {d[2]}')
            rest = list(range(3, 4 * n))
            while rest:
                if len(rest) >= 2: k(f'v_max3_u32 {t[0]}, {t[0]}, {d[rest[0]]}, {d[rest[1]]}'); rest = rest[2:]
                else: k(f'v_max_u32 {t[0]}, {t[0]}, {d[rest[0]]}'); rest = rest[1:]
            k(f'v_cmp_eq_u32 vcc, -1, {t[0]}')
            k(f's_cbranch_vccz {LOK}')
        LL, LA, LB = k.newlabel('H2_L'), k.newlabel('H2_A'), k.newlabel('H2_B')
        if PIPE_POLL:
            issue(dS[0])
            if POLL_GAP: k(f's_sleep {POLL_GAP}')
            k.label(LL)
            issue(dS[1])
            k(f's_waitcnt vmcnt({n})'); check(dS[0], LA)
            issue(dS[0])
            k(f's_waitcnt vmcnt({n})'); check(dS[1], LB)
            k('s_add_u32 s7, s7, 1'); k('s_cmp_gt_u32 s7, ' + hex(SPIN)); k(f's_cbranch_scc0 {LL}')
            k('s_waitcnt vmcnt(0)')
        else:
            k.label(LL)
            issue(dS[0])
            k('s_waitcnt vmcnt(0)'); check(dS[0], LA)
            k('s_add_u32 s7, s7, 1'); k('s_cmp_gt_u32 s7, ' + hex(SPIN)); k(f's_cbranch_scc0 {LL}')
        for d, LX in ((dS[0], LA), (dS[1], LB)):
            k.label(LX)
            mark(k, 'memok')
            for j in range(n): k(f'ds_write_b128 {t[1]}, {d[4*j:4*j+4]} offset:{MEM + j * 1024}')
            k(f's_branch {LD}')
    k.label(LD)
    gload1(k, G2, 0, 0); gload1(k, G2, 0, 1)
    dS[0].free(); dS[1].free(); t.free()
    k('s_waitcnt lgkmcnt(0)'); k('s_barrier')
    k.manual(False); k.drained()
    G2.free()

def flag_store(k, pool, s_off, val):
    f = pool.alloc(2, name='flag')
    k(f'v_mov_b32 {f[0]}, {val}'); k(f'v_mov_b32 {f[1]}, 0')
    k('s_mov_b64 exec, 1')
    k(f'buffer_store_dword {f[0]}, {f[1]}, {SRD_WS}, {s_off} offen sc1')
    k('s_mov_b64 exec, -1')
    f.free()

def pub_addr(k, dst, tmp):
    k(f'v_bfe_u32 {dst}, {vLN}, 1, 3'); k(f'v_lshlrev_b32 {dst}, 10, {dst}')
    k(f'v_lshrrev_b32 {tmp}, 4, {vLN}'); k(f'v_lshl_add_u32 {dst}, {tmp}, 6, {dst}')
    k(f'v_and_b32 {tmp}, 1, {vLN}'); k(f'v_lshl_add_u32 {dst}, {tmp}, 5, {dst}')

S_TAG = 's17'
M_SEL = ['s[20:21]', 's[22:23]', 's[40:41]', 's[42:43]']
def hop1(k, pool):
    LFULL, LHALF, LPUB = k.newlabel('H1_F'), k.newlabel('H1_H'), k.newlabel('H1_P')
    dA = pool.alloc_at(8, 16, 'landA'); dB = pool.alloc_at(G23, 16, 'landB')
    class DD:
        def __getitem__(self, x):
            if isinstance(x, slice):
                a, b = x.start, x.stop
                return dA[a:b] if a < 16 else dB[a - 16:b - 16]
            return dA[x] if x < 16 else dB[x - 16]
        def free(self): dA.free(); dB.free()
    d = DD(); sel = pool.alloc(4, name='sel'); acc = pool.alloc(4, name='racc'); t = pool.alloc(3, name='h1t')
    def setup():
        k(f'v_and_b32 {t[0]}, 1, {vLN}'); k(f'v_lshlrev_b32 {t[0]}, 4, {t[0]}'); k(f'v_mov_b32 {t[1]}, 0x3f80'); k(f'v_lshlrev_b32 {t[0]}, {t[0]}, {t[1]}')
        for dd in range(4): k(f'v_cndmask_b32 {sel[dd]}, 0, {t[0]}, {M_SEL[dd]}')
        pub_addr(k, t[0], t[1])
    k(f's_add_u32 s5, {S_PCUR}, {S_RLD}'); k('s_add_u32 s6, s5, 4096')
    k('s_mov_b32 s7, 0')
    setup()
    k(f's_cmp_eq_u32 {S_RED}, 2'); k(f's_cbranch_scc1 {LHALF}')
    def poll(L, nload, width, op, mf, slp):
        L0, L1 = k.newlabel(L + '0'), k.newlabel(L + '1')
        if slp: k(f's_sleep {slp}')
        k(f's_cmp_eq_u32 {S_TAG}, 1'); k(f's_cbranch_scc1 {L1}')
        for tag, LL in ((0, L0), (1, L1)):
            k.label(LL)
            for m in range(nload):
                if width == 4:
                    k(f'buffer_load_dwordx4 {d[4*m:4*m+4]}, {v16l}, {SRD_WS}, {"s5" if m < 4 else "s6"} offen offset:{(m % 4) * 1024} sc1')
                else:
                    k(f'buffer_load_dwordx2 {d[2*m:2*m+2]}, {t[2]}, {SRD_WS}, s5 offen offset:{m * 512} sc1')
            k('s_add_u32 s7, s7, 1')
            red = 'bitop3:0x80' if tag else 'bitop3:0xfe'
            for m in range(nload):
                k(f's_waitcnt vmcnt({nload - 1 - m})')
                dm = d[width*m:width*m+width]
                k(f'{mf} {acc}, {dm}, {sel[0:width]}, ' + ('0' if m == 0 else str(acc)))
                for h_ in range(width // 2):
                    if m == 0 and h_ == 0:
                        k(f'v_and_b32 {t[1]}, {dm[0]}, {dm[1]}' if tag else f'v_or_b32 {t[1]}, {dm[0]}, {dm[1]}')
                    else:
                        k(f'v_bitop3_b32 {t[1]}, {t[1]}, {dm[2*h_]}, {dm[2*h_+1]} {red}')
            k(f'v_and_b32 {t[1]}, 1, {t[1]}')
            k(f'v_cmp_ne_u32 vcc, {tag}, {t[1]}')
            k(f's_cbranch_vccz {LPUB}')
            if TIMING and FAILHIST and width == 4:
                for m in range(nload):
                    dm = d[4*m:4*m+4]
                    opn = 'v_and_b32' if tag else 'v_or_b32'
                    k(f'{opn} {t[1]}, {dm[0]}, {dm[1]}'); k(f'{opn} {t[1]}, {t[1]}, {dm[2]}'); k(f'{opn} {t[1]}, {t[1]}, {dm[3]}')
                    k(f'v_and_b32 {t[1]}, 1, {t[1]}'); k(f'v_cmp_ne_u32 vcc, {tag}, {t[1]}'); k('s_nop 4')
                    if FAILHIST == 'm':
                        k('s_cmp_lg_u64 vcc, 0'); k('s_cselect_b32 s78, 1, 0'); k(f's_add_u32 s{80+m}, s{80+m}, s78')
                    else:
                        for G in range(4):
                            k(f's_lshr_b64 s[78:79], vcc, {16*G}'); k('s_and_b32 s78, s78, 0xffff'); k('s_cmp_lg_u32 s78, 0'); k('s_cselect_b32 s78, 1, 0'); k(f's_add_u32 s{80+G}, s{80+G}, s78')
                        k('s_bcnt1_i32_b64 s78, vcc'); k('s_add_u32 s84, s84, s78')
            k('s_cmp_gt_u32 s7, ' + hex(SPIN)); k(f's_cbranch_scc0 {LL}')
            k(f's_branch {LPUB}')
    poll('H1_F', 8, 4, None, 'v_mfma_f32_16x16x32_bf16', RED_SLEEP)
    k.label(LHALF)
    k(f'v_lshrrev_b32 {t[2]}, 1, {v16l}')
    poll('H1_H', 8, 2, None, 'v_mfma_f32_16x16x16_bf16', RED_SLEEP_H)
    k.label(LPUB)
    mark(k, 'lpub')
    bstamp(k, 6)
    if TIMING and COUNT_POLLS: k('s_add_u32 s86, s86, s7')
    k('s_nop 4')
    k(f'v_cvt_pk_bf16_f32 {d[0]}, {acc[0]}, {acc[1]}'); k(f'v_cvt_pk_bf16_f32 {d[1]}, {acc[2]}, {acc[3]}')
    k(f'v_min_u32 {d[0]}, 0xfffffffe, {d[0]}'); k(f'v_min_u32 {d[1]}, 0xfffffffe, {d[1]}')
    k(f's_add_u32 s5, {S_MNEXT}, {S_RPUB}')
    k(f's_mov_b64 exec, {M_PUB}')
    k(f'buffer_store_dwordx2 {d[0:2]}, {t[0]}, {SRD_WS}, s5 offen' + stf())
    k('s_mov_b64 exec, -1')
    for r in (sel, d, acc, t): r.free()
```

```python
from common import *
from role_kv import emit_x_dma_setup, emit_x_frag_addr, x_dma, emit_group
import math, struct
TIMING = False
SPIN = 0x40000
QEAGER = 60
def f32bits(x): return struct.unpack('<I', struct.pack('<f', x))[0]

XB = 0
QF = 81920
KVXB = 98304
KVMB = 131072
WRING = 0

def poll_flag(k, s_off, s_need, vt, label_base, sleep=1):
    L, LX = k.newlabel(label_base), k.newlabel(label_base + 'X')
    k(f'v_mov_b32 {vt[1]}, 0')
    k('s_mov_b32 s7, 0')
    k.label(L)
    k(f'buffer_load_dword {vt[0]}, {vt[1]}, {SRD_WS}, {s_off} offen sc1')
    k('s_add_u32 s7, s7, 1'); k(f's_cmp_gt_u32 s7, {hex(SPIN)}'); k(f's_cbranch_scc1 {LX}')
    k('s_waitcnt vmcnt(0)')
    k(f'v_readfirstlane_b32 s6, {vt[0]}')
    k(f's_cmp_ge_u32 s6, {s_need}')
    k(f's_cbranch_scc1 {LX}')
    if sleep: k(f's_sleep {sleep}')
    k(f's_branch {L}')
    k.label(LX)
    k('s_waitcnt vmcnt(0)')

def role_qatt(k, use_flags=True, integrated=False):
    vL, vXD, vST, vW, v16 = 'v2', 'v3', 'v8', 'v9', 'v1'
    vXA = ['v4', 'v5', 'v6', 'v7']
    vT = 'v10'
    t0, t1, t2 = 'v12', 'v13', 'v14'
    vKM = 'v11'
    SRD_X, SRD_W = 's[12:15]', 's[16:19]'
    wf = lambda t: Reg('a', 4 * t, 4)
    inst_kernarg(k)
    if integrated:
        k(f's_lshl_b32 s4, {S_INST}, 5'); k(f's_add_u32 s4, s4, {S_IDX}'); k('s_lshl_b32 s4, s4, 7'); k(f's_add_u32 s4, s4, {F_OD}')
        zero_flag(k, 's4', ['v12', 'v13']); init_arrive(k, ['v12', 'v13'])
        init_wait(k, ['v12', 'v13'])
        k(f's_lshl_b32 s4, {S_INST}, 5'); k(f's_add_u32 s4, s4, {S_IDX}'); k('s_lshl_b32 s4, s4, 7'); k(f's_add_u32 s59, s4, {F_KVD}')
        k('s_mov_b32 s55, 1'); poll_flag(k, 's59', 's55', ['v12', 'v13'], 'QA_PS', sleep=8)
    load_srd(k, 12, S_KA, 0, X_BYTES)
    load_srd(k, 16, S_KA, 16, W_BYTES)
    k(f'v_lshlrev_b32 {v16}, 4, {vL}')
    k(f'v_lshrrev_b32 {t0}, 4, {vL}'); k(f'v_lshlrev_b32 {t1}, 2, {t0}'); k(f'v_and_b32 {t2}, 15, {vL}')
    k(f'v_xor_b32 {t1}, {t1}, {t2}'); k(f'v_lshlrev_b32 {t1}, 4, {t1}'); k(f'v_lshl_add_u32 {vW}, {t0}, 13, {t1}')
    k(f's_lshl_b32 s40, {S_IDX}, 8'); k(f's_lshl_b32 s43, {S_WAVE}, 17'); k('s_add_u32 s40, s40, s43')
    k(f's_lshl_b32 s41, {S_WAVE}, 12')
    NS = 8
    def wdma(c):
        for m in range(4):
            k(f's_add_u32 m0, s41, {(c % NS) * 16384 + m * 1024}')
            k(f's_add_u32 s5, s40, {(64 * c + 4 * m) * 8192}')
            k(f'buffer_load_dwordx4 {vW}, {SRD_W}, s5 offen' + WFL['qatt'] + ' lds')
    for c in range(NS - 1): wdma(c)
    k(f'v_bfe_u32 {t0}, {vL}, 4, 1'); k(f'v_and_b32 {t1}, 1, {vL}'); k(f'v_bfe_u32 {t2}, {vL}, 1, 1')
    k(f'v_lshl_or_b32 {t0}, {t1}, 1, {t0}'); k(f'v_lshlrev_b32 {t1}, 3, {t2}')
    k(f's_lshl_b32 s42, {S_WAVE}, 2'); k(f'v_or_b32 {t0}, s42, {t0}')
    k(f'v_bfe_u32 {t2}, {vL}, 2, 2'); k(f'v_lshlrev_b32 {vT}, 2, {t2}'); k(f'v_xor_b32 {t0}, {t0}, {vT}')
    k(f'v_lshl_add_u32 {t1}, {t0}, 4, {t1}'); k(f'v_lshl_add_u32 {t1}, {t2}, 8, {t1}')
    k(f'v_lshrrev_b32 {t2}, 5, {vL}'); k(f'v_lshl_add_u32 {vT}, {t2}, 11, {t1}')
    k.manual(True)
    va = 'v15'
    for c in range(10):
        done_issue = min(9, NS - 2 if c == 0 else NS - 2 + c - 1)
        k(f's_waitcnt vmcnt({(done_issue - c) * 4}) lgkmcnt(0)')
        k('s_barrier')
        if c >= 1 and c + NS - 2 <= 9: wdma(c + NS - 2)
        k(f'v_add_u32 {va}, {(c % NS) * 16384}, {vT}')
        for tt in range(4):
            fr = wf(4 * c + tt)
            k(f'ds_read_b64_tr_b16 {fr[0:2]}, {va} offset:{tt*4096}')
            k(f'ds_read_b64_tr_b16 {fr[2:4]}, {va} offset:{tt*4096+1024}')
    k('s_waitcnt vmcnt(0) lgkmcnt(0)'); k('s_barrier')
    emit_x_dma_setup(k, vL, vXD, t0, t1)
    emit_x_frag_addr(k, vL, vXA, t0, t1, t2, False)
    k(f'v_bfe_u32 {t0}, {vL}, 4, 1'); k(f'v_lshlrev_b32 {t0}, 10, {t0}'); k(f'v_lshrrev_b32 {t1}, 5, {vL}')
    k(f'v_lshl_add_u32 {t0}, {t1}, 9, {t0}'); k(f'v_and_b32 {t1}, 15, {vL}'); k(f'v_lshl_add_u32 {t0}, {t1}, 4, {t0}')
    k(f's_lshl_b32 s4, {S_WAVE}, 11'); k(f's_add_u32 s4, s4, {QF}'); k(f'v_add_u32 {vST}, s4, {t0}')
    k(f'v_and_b32 {t0}, 3, {vL}'); k(f'v_lshlrev_b32 {t0}, 4, {t0}'); k(f'v_bfe_u32 {t1}, {vL}, 4, 1'); k(f'v_lshl_add_u32 {t0}, {t1}, 3, {t0}')
    k(f'v_bfe_u32 {t1}, {vL}, 2, 2'); k(f'v_add_u32 {t0}, {t0}, {t1}'); k(f'v_lshlrev_b32 {t0}, 4, {t0}')
    k(f'v_lshrrev_b32 {t1}, 5, {vL}'); k(f'v_lshl_add_u32 {vKM}, {t1}, 3, {t0}')
    k(f'v_and_b32 {t0}, 15, {vL}'); k(f'v_lshrrev_b32 {t1}, 4, {vL}'); k(f'v_lshlrev_b32 {t1}, 2, {t1}')
    for r in range(4):
        k(f'v_add_u32 {t2}, {r}, {t1}'); k(f'v_cmp_le_u32 s[{64+2*r}:{65+2*r}], {t2}, {t0}')
    k(f's_and_b32 s4, {S_WAVE}, 1'); k('s_cmp_eq_u32 s4, 1')
    for r in range(4):
        k(f's_cselect_b64 s[{72+2*r}:{73+2*r}], s[{64+2*r}:{65+2*r}], 0')
    for r in range(4):
        k(f's_cselect_b64 s[{64+2*r}:{65+2*r}], -1, s[{64+2*r}:{65+2*r}]')
    k(f's_mov_b32 s50, {hex(f32bits(128 ** -0.5 * math.log2(math.e)))}')
    k(f's_lshl_b32 s4, {S_INST}, 11'); k(f's_add_u32 s4, s4, {S_IDX}')
    k(f's_lshl_b32 s33, s4, 14'); k(f's_lshl_b32 s5, {S_WAVE}, 12'); k('s_add_u32 s33, s33, s5')
    if KVX: k(f's_add_u32 s33, s33, {KVX}')
    k(f's_lshl_b32 s34, s4, 12'); k(f's_lshl_b32 s5, {S_WAVE}, 10'); k('s_add_u32 s34, s34, s5'); k(f's_add_u32 s34, s34, {KVM}')
    k(f's_lshl_b32 s35, s4, 13'); k(f's_and_b32 s5, {S_WAVE}, 1'); k('s_lshl_b32 s5, s5, 12'); k('s_add_u32 s35, s35, s5')
    k(f's_lshr_b32 s5, {S_WAVE}, 1'); k('s_lshl_b32 s5, s5, 11'); k('s_add_u32 s35, s35, s5'); k(f's_add_u32 s35, s35, {OF}')
    k(f's_lshl_b32 s4, {S_INST}, 5'); k(f's_add_u32 s4, s4, {S_IDX}'); k('s_lshl_b32 s4, s4, 7')
    k(f's_add_u32 s58, s4, {F_KVM}'); k(f's_add_u32 s59, s4, {F_KVD}'); k(f's_add_u32 s57, s4, {F_OD}')
    k(f's_mul_i32 s45, {S_WAVE}, 10240')
    k('s_mov_b32 s44, 0')
    k('s_mov_b32 s32, 0'); k('s_mov_b32 s60, 0')
    vt = ['v16', 'v17']
    for g in x_dma(k, vXD, SRD_X, 's44', 's45'): emit_group(k, g)
    k('s_add_u32 s44, s44, 40960'); k('s_add_u32 s45, s45, 40960')
    for g in x_dma(k, vXD, SRD_X, 's44', 's45'): emit_group(k, g)
    k('s_add_u32 s44, s44, 40960'); k('s_sub_u32 s45, s45, 40960')
    if use_flags:
        k('s_mov_b32 s55, 1'); poll_flag(k, 's59', 's55', vt, 'QA_P0')
    def kvx_dma(s_src, s_dst):
        for m in range(4):
            k(f's_add_u32 m0, {s_dst}, {m * 1024}'); k(f's_add_u32 s5, {s_src}, {m * 1024}')
            k(f'buffer_load_dwordx4 {v16}, {SRD_WS}, s5 offen sc1 lds')
    k(f's_lshl_b32 s36, {S_WAVE}, 12'); k(f's_add_u32 s36, s36, {KVXB}')
    kvx_dma('s33', 's36')
    k('s_waitcnt vmcnt(0)'); k('s_barrier')
    acc = Reg('v', 128, 16); xf = [Reg('v', 144 + 4 * i, 4) for i in range(4)]; cv = Reg('v', 160, 8)
    def qproj(interleave=()):
        il = list(interleave)
        def rd(t): k(f'ds_read_b128 {xf[t % 4]}, {vXA[t % 4]} offset:{(t >> 2) * 1024}')
        for t in range(3): rd(t)
        for t in range(40):
            if t + 3 < 40: rd(t + 3)
            k(f's_waitcnt lgkmcnt({min(3, 39 - t)})')
            k(f'v_mfma_f32_32x32x16_bf16 {acc}, {wf(t)}, {xf[t % 4]}, ' + ('0' if t == 0 else str(acc)))
            if il and t >= 1 and t % 2 == 1: emit_group(k, il.pop(0))
        for g in il: emit_group(k, g)
        k('s_nop 7'); k('s_nop 3')
        for d in range(8): k(f'v_cvt_pk_bf16_f32 {cv[d]}, {acc[2*d]}, {acc[2*d+1]}')
        k(f'ds_write_b128 {vST}, {cv[0:4]}'); k(f'ds_write_b128 {vST}, {cv[4:8]} offset:256')
    qproj()
    for u in range(4): k(f'v_add_u32 {vXA[u]}, 40960, {vXA[u]}')
    k(f'v_add_u32 {vST}, 8192, {vST}')
    k('s_mov_b32 s37, 0')
    k('s_waitcnt lgkmcnt(0)'); k('s_barrier')
    if TIMING:
        k('s_memtime s[84:85]'); k('s_memrealtime s[86:87]'); k('s_waitcnt lgkmcnt(0)')
    LOOP, LEND = k.newlabel('QA_LOOP'), k.newlabel('QA_END')
    k.label(LOOP)
    if use_flags:
        k('s_add_u32 s55, s32, 1'); poll_flag(k, 's58', 's55', vt, 'QA_P1')
    if TIMING:
        k('s_cmp_eq_u32 s32, 63'); k('s_cbranch_scc0 QA_RT0'); k('s_memrealtime s[20:21]'); k('s_waitcnt lgkmcnt(0)'); k.label('QA_RT0')
    k('s_lshl_b32 s4, s37, 12'); k(f's_lshl_b32 s5, {S_WAVE}, 10'); k('s_add_u32 s4, s4, s5'); k(f's_add_u32 m0, s4, {KVMB}')
    k('s_nop 0')
    k(f'buffer_load_dwordx4 {v16}, {SRD_WS}, s34 offen sc1 lds')
    LNK = k.newlabel('QA_NK')
    k('s_cmp_ge_u32 s32, 63'); k(f's_cbranch_scc1 {LNK}')
    if use_flags:
        LSEEN = k.newlabel('QA_SEEN')
        k('s_add_u32 s55, s32, 2'); k('s_cmp_ge_u32 s60, s55'); k(f's_cbranch_scc1 {LSEEN}')
        poll_flag(k, 's59', 's55', vt, 'QA_P2'); k('s_mov_b32 s60, s6')
        k.label(LSEEN)
    k(f's_add_u32 s38, s33, {32 * 16384}')
    k('s_xor_b32 s4, s37, 1'); k('s_lshl_b32 s4, s4, 14'); k(f's_lshl_b32 s5, {S_WAVE}, 12'); k('s_add_u32 s4, s4, s5'); k(f's_add_u32 s39, s4, {KVXB}')
    kvx_dma('s38', 's39')
    k.label(LNK)
    k('s_mul_i32 s4, s37, 40960'); k(f's_mul_i32 s5, {S_WAVE}, 10240'); k('s_add_u32 s45, s4, s5')
    dma = x_dma(k, vXD, SRD_X, 's44', 's45')
    LNQ, LQD = k.newlabel('QA_NQ'), k.newlabel('QA_QD')
    k('s_cmp_ge_u32 s32, 63'); k(f's_cbranch_scc1 {LNQ}')
    qproj(dma)
    k(f's_branch {LQD}')
    k.label(LNQ)
    for g in dma: emit_group(k, g)
    k.label(LQD)
    k('s_cmp_eq_u32 s37, 0'); k('s_cselect_b32 s5, -1, 1')
    k('s_mul_i32 s4, s5, 40960')
    for u in range(4): k(f'v_add_u32 {vXA[u]}, s4, {vXA[u]}')
    k('s_lshl_b32 s4, s5, 13'); k(f'v_add_u32 {vST}, s4, {vST}')
    LW1, LW2 = k.newlabel('QA_W1'), k.newlabel('QA_W2')
    k('s_cmp_ge_u32 s32, 63'); k(f's_cbranch_scc1 {LW1}')
    k('s_waitcnt vmcnt(14) lgkmcnt(0)'); k(f's_branch {LW2}')
    k.label(LW1); k('s_waitcnt vmcnt(10) lgkmcnt(0)')
    k.label(LW2)
    k('s_barrier')
    if TIMING:
        k('s_cmp_eq_u32 s32, 63'); k('s_cbranch_scc0 QA_RT1'); k('s_memrealtime s[22:23]'); k('s_waitcnt lgkmcnt(0)'); k.label('QA_RT1')
    LNF0 = k.newlabel('QA_NF0')
    k(f's_cmp_lg_u32 {S_WAVE}, 0'); k(f's_cbranch_scc1 {LNF0}')
    k(f's_cmp_gt_u32 s32, {QEAGER}'); k(f's_cbranch_scc1 {LNF0}')
    k('v_mov_b32 v16, s32'); k('v_mov_b32 v17, 0'); k('s_mov_b64 exec, 1')
    k(f'buffer_store_dword v16, v17, {SRD_WS}, s57 offen sc1'); k('s_mov_b64 exec, -1')
    k.label(LNF0)
    k.manual(False); k.drained()
    pool = Pool('qatt', 'v', range(20, 128))
    ad = pool.alloc(4, name='ad')
    k(f's_and_b32 s4, {S_WAVE}, 1'); k('s_lshl_b32 s4, s4, 10'); k('s_lshl_b32 s5, s37, 13'); k('s_add_u32 s4, s4, s5'); k(f's_add_u32 s4, s4, {QF}')
    k(f'v_add_u32 {ad[0]}, s4, {v16}')
    k('s_lshl_b32 s5, s37, 14'); k(f's_add_u32 s5, s5, {KVXB}'); k(f'v_add_u32 {ad[1]}, s5, {v16}')
    k('s_lshl_b32 s5, s37, 12'); k(f's_add_u32 s5, s5, {KVMB}'); k(f'v_add_u32 {ad[2]}, s5, {vKM}')
    k(f'v_add_u32 {ad[3]}, s5, {v16}')
    QB = [pool.alloc(4, name=f'Q{u}') for u in range(4)]
    KA = [[pool.alloc(4, name=f'K{t}{u}') for u in range(4)] for t in range(2)]
    KM = [pool.alloc(4, name=f'M{u}') for u in range(4)]
    T = [pool.alloc(4, name='T0'), pool.alloc(4, name='T1')]; TM = pool.alloc(4, name='TM')
    for u in range(4):
        k(f'ds_read_b128 {QB[u]}, {ad[0]} offset:{u * 2048}')
        k(f'ds_read_b128 {KA[0][u]}, {ad[1]} offset:{u * 2048}')
        k(f'ds_read_b128 {KA[1][u]}, {ad[1]} offset:{u * 2048 + 1024}')
        k(f'ds_read_b64_tr_b16 {KM[u][0:2]}, {ad[2]} offset:{u * 1024}')
        k(f'ds_read_b64_tr_b16 {KM[u][2:4]}, {ad[2]} offset:{u * 1024 + 64}')
    for u in range(4):
        c = lambda r: '0' if u == 0 else str(r)
        k(f'v_mfma_f32_16x16x32_bf16 {T[0]}, {KA[0][u]}, {QB[u]}, {c(T[0])}')
        k(f'v_mfma_f32_16x16x32_bf16 {T[1]}, {KA[1][u]}, {QB[u]}, {c(T[1])}')
        k(f'v_mfma_f32_16x16x32_bf16 {TM}, {KM[u]}, {QB[u]}, {c(TM)}')
    for r_ in QB + KA[0] + KA[1] + KM: r_.free()
    wc0 = pool.alloc(1, name='wc')
    k(f's_lshr_b32 s4, {S_WAVE}, 1'); k('s_lshl_b32 s5, s4, 12'); k(f'v_add_u32 {wc0}, s5, {ad[1]}')
    VA = [[pool.alloc(4, name=f'V{a}{t}') for t in range(2)] for a in range(2)]
    for a in range(2):
        for t in range(2): k(f'ds_read_b128 {VA[a][t]}, {wc0} offset:{8192 + a * 2048 + t * 1024}')
    k('s_lshl_b32 s5, s4, 11'); k(f'v_add_u32 {wc0}, s5, {ad[3]}')
    MA = [pool.alloc(4, name=f'MA{a}') for a in range(2)]
    for a in range(2): k(f'ds_read_b128 {MA[a]}, {wc0} offset:{a * 1024}')
    wc0.free()
    ninf, mx, t1_ = pool.alloc(1), pool.alloc(1), pool.alloc(1)
    k(f'v_mov_b32 {ninf}, 0xff800000')
    for t in range(2):
        for r in range(4):
            m = 64 + 8 * t + 2 * r
            k(f'v_cndmask_b32 {T[t][r]}, {ninf}, {T[t][r]}, s[{m}:{m+1}]')
    k(f'v_max3_f32 {mx}, {T[0][0]}, {T[0][1]}, {T[0][2]}'); k(f'v_max3_f32 {mx}, {mx}, {T[0][3]}, {T[1][0]}')
    k(f'v_max3_f32 {mx}, {mx}, {T[1][1]}, {T[1][2]}'); k(f'v_max3_f32 {mx}, {mx}, {T[1][3]}, {TM[0]}'); k(f'v_max_f32 {mx}, {mx}, {TM[1]}')
    k(f'v_mov_b32 {t1_}, {mx}'); k(f'v_permlane16_swap_b32 {mx}, {t1_}'); k(f'v_max_f32 {mx}, {mx}, {t1_}')
    k(f'v_mov_b32 {t1_}, {mx}'); k(f'v_permlane32_swap_b32 {mx}, {t1_}'); k(f'v_max_f32 {mx}, {mx}, {t1_}')
    k(f'v_mul_f32 {mx}, s50, {mx}')
    vals = [T[0][r] for r in range(4)] + [T[1][r] for r in range(4)] + [TM[0], TM[1]]
    for v in vals: k(f'v_fma_f32 {v}, {v}, s50, -{mx}')
    for v in vals: k(f'v_exp_f32 {v}, {v}')
    P = pool.alloc(4, name='P'); BM = pool.alloc(2, name='BM')
    for t in range(2):
        k(f'v_cvt_pk_bf16_f32 {P[2*t]}, {T[t][0]}, {T[t][1]}'); k(f'v_cvt_pk_bf16_f32 {P[2*t+1]}, {T[t][2]}, {T[t][3]}')
    k(f'v_mov_b32 {BM[0]}, 0'); k(f'v_cvt_pk_bf16_f32 {BM[1]}, {TM[0]}, {TM[1]}')
    O = [[pool.alloc(4, name=f'O{a}{t}') for t in range(2)] for a in range(2)]
    for a in range(2):
        for t in range(2): k(f'v_mfma_f32_16x16x32_bf16 {O[a][t]}, {VA[a][t]}, {P}, 0')
    for a in range(2):
        for t in range(2): k(f'v_mfma_f32_16x16x16_bf16 {O[a][t]}, {MA[a][2*t:2*t+2]}, {BM}, {O[a][t]}')
    ls = T[0][0]
    k(f'v_add_f32 {T[0][0]}, {T[0][0]}, {T[0][1]}'); k(f'v_add_f32 {T[0][2]}, {T[0][2]}, {T[0][3]}')
    k(f'v_add_f32 {T[1][0]}, {T[1][0]}, {T[1][1]}'); k(f'v_add_f32 {T[1][2]}, {T[1][2]}, {T[1][3]}'); k(f'v_add_f32 {TM[0]}, {TM[0]}, {TM[1]}')
    k(f'v_add_f32 {ls}, {T[0][0]}, {T[0][2]}'); k(f'v_add_f32 {T[1][0]}, {T[1][0]}, {T[1][2]}')
    k(f'v_add_f32 {ls}, {ls}, {T[1][0]}'); k(f'v_add_f32 {ls}, {ls}, {TM[0]}')
    k(f'v_mov_b32 {t1_}, {ls}'); k(f'v_permlane16_swap_b32 {ls}, {t1_}'); k(f'v_add_f32 {ls}, {ls}, {t1_}')
    k(f'v_mov_b32 {t1_}, {ls}'); k(f'v_permlane32_swap_b32 {ls}, {t1_}'); k(f'v_add_f32 {ls}, {ls}, {t1_}')
    k(f'v_rcp_f32 {ls}, {ls}')
    OS = [pool.alloc(4, name='OS0'), pool.alloc(4, name='OS1')]
    for a in range(2):
        for t in range(2):
            for r in range(4): k(f'v_mul_f32 {O[a][t][r]}, {O[a][t][r]}, {ls}')
            k(f'v_cvt_pk_bf16_f32 {OS[a][2*t]}, {O[a][t][0]}, {O[a][t][1]}'); k(f'v_cvt_pk_bf16_f32 {OS[a][2*t+1]}, {O[a][t][2]}, {O[a][t][3]}')
        k(f'buffer_store_dwordx4 {OS[a]}, {v16}, {SRD_WS}, s35 offen offset:{a * 1024} sc1')
    k.manual(True)
    if TIMING:
        k('s_cmp_eq_u32 s32, 63'); k('s_cbranch_scc0 QA_RT2'); k('s_memrealtime s[46:47]'); k('s_waitcnt lgkmcnt(0)'); k.label('QA_RT2')
    LE0, LE1, LNF = k.newlabel('QA_E0'), k.newlabel('QA_E1'), k.newlabel('QA_NF')
    k(f's_cmp_ge_u32 s32, {QEAGER}'); k(f's_cbranch_scc1 {LE0}')
    k('s_waitcnt vmcnt(2) lgkmcnt(0)'); k('s_barrier'); k(f's_branch {LNF}')
    k.label(LE0)
    k('s_waitcnt vmcnt(0) lgkmcnt(0)'); k('s_barrier')
    k(f's_cmp_lg_u32 {S_WAVE}, 0'); k(f's_cbranch_scc1 {LNF}')
    k('s_add_u32 s5, s32, 1'); k('v_mov_b32 v16, s5'); k('v_mov_b32 v17, 0'); k('s_mov_b64 exec, 1')
    k(f'buffer_store_dword v16, v17, {SRD_WS}, s57 offen sc1'); k('s_mov_b64 exec, -1')
    k.label(LNF)
    k('s_add_u32 s32, s32, 1'); k('s_xor_b32 s37, s37, 1')
    k(f's_add_u32 s33, s33, {32 * 16384}'); k(f's_add_u32 s34, s34, {32 * 4096}'); k(f's_add_u32 s35, s35, {32 * 8192}')
    k('s_add_u32 s44, s44, 40960')
    k('s_cmp_lt_u32 s32, 64'); k(f's_cbranch_scc1 {LOOP}')
    if TIMING:
        k('s_memtime s[88:89]'); k('s_memrealtime s[90:91]'); k('s_waitcnt lgkmcnt(0)')
        k('s_sub_u32 s88, s88, s84'); k('s_sub_u32 s90, s90, s86')
        k('s_load_dwordx2 s[92:93], s[0:1], 120'); k('s_waitcnt lgkmcnt(0)')
        k(f's_lshl_b32 s94, {S_INST}, 5'); k(f's_add_u32 s94, s94, {S_IDX}'); k('s_lshl_b32 s94, s94, 4')
        k('v_mov_b32 v15, s94'); k('v_add_u32 v15, 32768, v15'); k('v_mov_b32 v20, s88'); k('v_mov_b32 v21, s90'); k('v_mov_b32 v22, s86'); k('v_mov_b32 v23, s100')
        k('global_store_dwordx4 v15, v[20:23], s[92:93]')
        k('v_mov_b32 v24, s20'); k('v_mov_b32 v25, s22'); k('v_mov_b32 v26, s46'); k('v_mov_b32 v27, 0'); k('global_store_dwordx4 v15, v[24:27], s[92:93] offset:2048')
    k('s_waitcnt vmcnt(0)')
    k.manual(False); k.drained()
```

```python
from common import *
from role_qatt import poll_flag
TIMING = False
SPIN = 0x40000

def poll_multi(k, s_off, n, s_need, vt, vstride, base):
    L, LX = k.newlabel(base), k.newlabel(base + 'X')
    k('s_mov_b32 s7, 0')
    k(f's_mov_b64 exec, {hex((1 << n) - 1)}')
    k.label(L)
    k(f'buffer_load_dword {vt}, {vstride}, {SRD_WS}, {s_off} offen sc1')
    k('s_add_u32 s7, s7, 1'); k(f's_cmp_gt_u32 s7, {hex(SPIN)}'); k(f's_cbranch_scc1 {LX}')
    k('s_waitcnt vmcnt(0)')
    k(f'v_cmp_gt_u32 vcc, {s_need}, {vt}')
    k(f's_cbranch_vccz {LX}')
    k('s_sleep 1')
    k(f's_branch {L}')
    k.label(LX)
    k('s_waitcnt vmcnt(0)')
    k('s_mov_b64 exec, -1')

def role_wo(k, LEXIT, use_flags=True, integrated=False):
    vL, v16, vW, vT0, vT1, vF, vOut = 'v2', 'v1', 'v3', 'v4', 'v5', 'v6', 'v7'
    t0, t1, t2 = 'v12', 'v13', 'v14'
    SRD_W, SRD_O = 's[16:19]', 's[12:15]'
    if integrated:
        k(f's_mul_i32 s4, {S_INST}, 20'); k(f's_add_u32 s4, s4, {S_IDX}'); k('s_lshl_b32 s4, s4, 7'); k(f's_add_u32 s4, s4, {F_WOP}')
        LZ = k.newlabel('WO_Z')
        k(f's_cmp_ge_u32 {S_IDX}, 20'); k(f's_cbranch_scc1 {LZ}')
        zero_flag(k, 's4', ['v12', 'v13'])
        k.label(LZ)
        init_arrive(k, ['v12', 'v13'])
    k(f's_cmp_ge_u32 {S_IDX}, 20'); k(f's_cbranch_scc1 {LEXIT}')
    if integrated:
        init_wait(k, ['v12', 'v13'])
        k(f's_lshl_b32 s4, {S_INST}, 5'); k(f's_add_u32 s4, s4, {S_IDX}'); k('s_lshl_b32 s4, s4, 7'); k(f's_add_u32 s59, s4, {F_KVD}')
        k('s_mov_b32 s55, 1'); poll_flag(k, 's59', 's55', ['v12', 'v13'], 'WO_PS', sleep=8)
    inst_kernarg(k)
    load_srd(k, 16, S_KA, 40, W_BYTES)
    load_srd(k, 12, 's[0:1]', KA_OUT, OUT_BYTES)
    k(f'v_lshlrev_b32 {v16}, 4, {vL}')
    k(f's_mul_i32 s4, {S_IDX}, 52429'); k('s_lshr_b32 s38, s4, 18'); k('s_mul_i32 s4, s38, 5'); k(f's_sub_u32 s39, {S_IDX}, s4')
    k(f'v_lshrrev_b32 {t0}, 4, {vL}'); k(f's_and_b32 s4, {S_WAVE}, 1'); k('s_lshl_b32 s4, s4, 2'); k(f'v_add_u32 {t1}, s4, {t0}')
    k(f'v_lshlrev_b32 {t1}, 1, {t1}'); k(f'v_and_b32 {t2}, 15, {vL}'); k(f'v_xor_b32 {t1}, {t1}, {t2}'); k(f'v_lshlrev_b32 {t1}, 4, {t1}')
    k(f's_lshl_b32 s4, {S_WAVE}, 2'); k(f'v_add_u32 {t0}, s4, {t0}'); k(f'v_mul_u32_u24 {t0}, 1280, {t0}'); k(f'v_add_u32 {vW}, {t0}, {t1}')
    k(f's_mul_i32 s40, s38, {1024 * 1280}'); k('s_lshl_b32 s4, s39, 8'); k('s_add_u32 s40, s40, s4')
    k(f's_lshl_b32 s41, {S_WAVE}, 10')
    def wdma(hh):
        for mm in range(8):
            k(f's_add_u32 m0, s41, {(hh % 4) * 32768 + mm * 4096}')
            k(f's_add_u32 s5, s40, {(128 * hh + 16 * mm) * 1280}')
            k(f'buffer_load_dwordx4 {vW}, {SRD_W}, s5 offen' + WFL['wo'] + ' lds')
    for hh in range(4): wdma(hh)
    k(f'v_lshrrev_b32 {t0}, 4, {vL}'); k(f'v_bfe_u32 {t1}, {vL}, 2, 2'); k(f'v_lshl_add_u32 {t0}, {t0}, 2, {t1}')
    k(f'v_and_b32 {t1}, 7, {t0}'); k(f's_lshl_b32 s4, {S_WAVE}, 1'); k(f'v_xor_b32 {t1}, s4, {t1}'); k(f'v_lshlrev_b32 {t1}, 5, {t1}')
    k(f'v_lshl_add_u32 {t0}, {t0}, 8, {t1}'); k(f'v_and_b32 {t1}, 3, {vL}'); k(f'v_lshl_add_u32 {vT0}, {t1}, 3, {t0}')
    k(f'v_xor_b32 {vT1}, 32, {vT0}')
    wf = lambda hh, v, nt: Reg('a', 4 * ((hh * 4 + v) * 2 + nt), 4)
    k.manual(True)
    for hh in range(8):
        n_after = (3 if hh == 0 else min(hh + 2, 7) - hh) * 8
        k(f's_waitcnt vmcnt({n_after}) lgkmcnt(0)'); k('s_barrier')
        if hh >= 1 and hh + 3 <= 7: wdma(hh + 3)
        k(f'v_add_u32 v8, {(hh % 4) * 32768}, {vT0}'); k(f'v_add_u32 v9, {(hh % 4) * 32768}, {vT1}')
        for v in range(4):
            for nt in range(2):
                fr = wf(hh, v, nt); ad = 'v8' if nt == 0 else 'v9'
                k(f'ds_read_b64_tr_b16 {fr[0:2]}, {ad} offset:{v * 8192}')
                k(f'ds_read_b64_tr_b16 {fr[2:4]}, {ad} offset:{v * 8192 + 4096}')
    k('s_waitcnt vmcnt(0) lgkmcnt(0)'); k('s_barrier')
    k(f'v_lshlrev_b32 {vF}, 7, {vL}')
    k(f's_lshl_b32 s4, {S_INST}, 11'); k('s_lshl_b32 s5, s38, 3'); k('s_add_u32 s4, s4, s5'); k('s_lshl_b32 s33, s4, 13')
    k(f's_lshl_b32 s5, {S_WAVE}, 10'); k('s_add_u32 s33, s33, s5'); k(f's_add_u32 s33, s33, {OF}')
    k(f's_lshl_b32 s4, {S_INST}, 5'); k('s_lshl_b32 s5, s38, 3'); k('s_add_u32 s4, s4, s5'); k('s_lshl_b32 s4, s4, 7'); k(f's_add_u32 s57, s4, {F_OD}')
    k(f's_mul_i32 s4, {S_INST}, 320'); k('s_add_u32 s4, s4, s39'); k('s_lshl_b32 s4, s4, 2'); k(f's_add_u32 s4, s4, {S_WAVE}'); k('s_lshl_b32 s4, s4, 14')
    k(f's_add_u32 s34, s4, {WOP}')
    k('s_lshl_b32 s5, s38, 10'); k('s_add_u32 s35, s34, s5')
    k('s_lshl_b32 s5, s38, 12'); k('s_add_u32 s36, s34, s5')
    k(f's_mul_i32 s4, {S_INST}, 20'); k('s_lshl_b32 s5, s39, 2'); k('s_add_u32 s4, s4, s5'); k('s_lshl_b32 s4, s4, 7'); k(f's_add_u32 s58, s4, {F_WOP}')
    k('s_lshl_b32 s5, s38, 7'); k('s_add_u32 s59, s58, s5')
    k(f'v_and_b32 {t0}, 15, {vL}'); k(f'v_mul_u32_u24 {t0}, 2560, {t0}'); k(f'v_lshrrev_b32 {t1}, 4, {vL}'); k(f'v_lshl_add_u32 {vOut}, {t1}, 3, {t0}')
    k(f's_mul_i32 s37, {S_INST}, 1280'); k('s_lshl_b32 s4, s39, 8'); k('s_add_u32 s37, s37, s4'); k(f's_lshl_b32 s4, {S_WAVE}, 6'); k('s_add_u32 s37, s37, s4')
    k('s_lshr_b32 s4, s38, 1'); k('s_lshl_b32 s4, s4, 5'); k('s_add_u32 s37, s37, s4')
    k('s_and_b32 s4, s38, 1'); k(f's_mul_i32 s4, s4, {16 * 2560}'); k('s_add_u32 s37, s37, s4')
    k('s_mov_b32 s32, 0')
    if TIMING:
        k('s_memtime s[84:85]'); k('s_memrealtime s[86:87]'); k('s_waitcnt lgkmcnt(0)')
    vP = 'v10'
    k(f'v_lshlrev_b32 {vP}, 7, {vL}'); k(f'v_add_u32 {vP}, s57, {vP}')
    k(f'v_subrev_u32 {t0}, 8, {vL}'); k(f'v_lshlrev_b32 {t0}, 7, {t0}'); k(f'v_add_u32 {t0}, s58, {t0}')
    k(f'v_cmp_gt_u32 vcc, 8, {vL}'); k('s_nop 1'); k(f'v_cndmask_b32 {vP}, {t0}, {vP}, vcc')
    k('s_mov_b64 s[60:61], vcc')
    acc = [[Reg('v', 128 + 4 * (2 * nt + qt), 4) for qt in range(2)] for nt in range(2)]
    bf = [Reg('v', 144 + 4 * i, 4) for i in range(8)]
    pr = [Reg('v', 176 + 4 * i, 4) for i in range(4)]
    vN = 'v11'
    def poll(need_o, need_p, base):
        L, LX = k.newlabel(base), k.newlabel(base + 'X')
        k(f'v_mov_b32 {vN}, {need_p}'); k(f'v_mov_b32 v16, {need_o}'); k(f'v_cndmask_b32 {vN}, {vN}, v16, s[60:61]')
        k('s_mov_b32 s7, 0'); k('s_mov_b64 exec, 0xfff')
        k.label(L)
        k(f'buffer_load_dword v15, {vP}, {SRD_WS}, 0 offen sc1')
        k('s_add_u32 s7, s7, 1'); k(f's_cmp_gt_u32 s7, {hex(SPIN)}'); k(f's_cbranch_scc1 {LX}')
        k('s_waitcnt vmcnt(0)')
        k(f'v_cmp_gt_u32 vcc, {vN}, v15')
        k(f's_cbranch_vccz {LX}')
        k('s_sleep 1'); k(f's_branch {L}')
        k.label(LX)
        k('s_waitcnt vmcnt(0)'); k('s_mov_b64 exec, -1')
    def part_loads():
        for i in range(4): k(f'buffer_load_dwordx4 {pr[i]}, {v16}, {SRD_WS}, s36 offen offset:{i * 1024} sc1')
    def finalize(mask=None):
        for r in range(4):
            k(f'v_add_f32 {pr[0][r]}, {pr[0][r]}, {pr[1][r]}'); k(f'v_add_f32 {pr[2][r]}, {pr[2][r]}, {pr[3][r]}')
        for r in range(4): k(f'v_add_f32 {pr[0][r]}, {pr[0][r]}, {pr[2][r]}')
        k(f'v_cvt_pk_bf16_f32 {pr[1][0]}, {pr[0][0]}, {pr[0][1]}'); k(f'v_cvt_pk_bf16_f32 {pr[1][1]}, {pr[0][2]}, {pr[0][3]}')
        if mask: k(f's_mov_b64 exec, {mask}')
        k(f'buffer_store_dwordx2 {pr[1][0:2]}, {vOut}, {SRD_O}, s37 offen')
        if mask:
            k('s_mov_b64 exec, -1')
            k(f's_cmp_ge_u32 s32, 3'); k(f's_cselect_b32 s4, {5 * 4 * 16384}, 0'); k('s_add_u32 s36, s36, s4')
            k('s_cmp_ge_u32 s32, 3'); k(f's_cselect_b32 s4, {32 * 2560}, 0'); k('s_add_u32 s37, s37, s4')
        else:
            k(f's_add_u32 s36, s36, {5 * 4 * 16384}'); k(f's_add_u32 s37, s37, {32 * 2560}')
    def own_flag(val):
        LNF = k.newlabel('WO_NF')
        k(f's_cmp_lg_u32 {S_WAVE}, 0'); k(f's_cbranch_scc1 {LNF}')
        k(f'v_mov_b32 v16, {val}'); k('v_mov_b32 v17, 0'); k('s_mov_b64 exec, 1')
        k(f'buffer_store_dword v16, v17, {SRD_WS}, s59 offen sc1'); k('s_mov_b64 exec, -1')
        k.label(LNF)
    vB = 'v18'
    k(f'v_mov_b32 {vB}, {v16}')
    k('s_mov_b32 s62, 0')
    k('s_mov_b32 s63, 0')
    k('s_mov_b32 s64, 0')
    def dma1(src, ldsoff, m):
        k(f's_add_u32 m0, {ldsoff}, {m * 4096}'); k(f's_add_u32 s5, {src}, {m * 4096}')
        k(f'buffer_load_dwordx4 {v16}, {SRD_WS}, s5 offen sc1 lds')
    def stage(st, dmas=()):
        dmas = list(dmas)
        seq = [(hh, v) for hh in (2 * st, 2 * st + 1) for v in range(4)]
        def rd(i):
            hh, v = seq[i]
            for qt in range(2): k(f'ds_read_b128 {bf[(2 * i + qt) % 8]}, {vB} offset:{hh * 8192 + qt * 4096 + v * 1024}')
        for i in range(3): rd(i)
        for i, (hh, v) in enumerate(seq):
            if i + 3 < 8: rd(i + 3)
            k(f's_waitcnt lgkmcnt({2 * min(3, 7 - i)})')
            for qt in range(2):
                for nt in range(2):
                    c = '0' if (st == 0 and i == 0) else str(acc[nt][qt])
                    k(f'v_mfma_f32_16x16x32_bf16 {acc[nt][qt]}, {wf(hh, v, nt)}, {bf[(2 * i + qt) % 8]}, {c}')
            if dmas: dmas.pop(0)()
    LOOP = k.newlabel('WO_LOOP')
    k.label(LOOP)
    LP2, LFAST, LMID = k.newlabel('WO_P2OK'), k.newlabel('WO_FAST'), k.newlabel('WO_MID')
    k('s_add_u32 s55, s32, 1'); k('s_cmp_eq_u32 s62, 1'); k('s_cselect_b32 s55, 0, s55')
    if use_flags is not True: k('s_mov_b32 s55, 0')
    k('s_sub_u32 s56, s32, 2'); k('s_cmp_lt_u32 s32, 3'); k('s_cselect_b32 s56, 0, s56'); k('s_cmp_eq_u32 s63, 1'); k('s_cselect_b32 s56, 0, s56')
    k('s_or_b32 s4, s55, s56'); k('s_cmp_eq_u32 s4, 0')
    k(f's_cbranch_scc1 {LP2}')
    poll('s55', 's56', 'WO_P0')
    k.label(LP2)
    if TIMING:
        k('s_cmp_eq_u32 s32, 63'); k('s_cbranch_scc0 WO_RT0'); k('s_memrealtime s[70:71]'); k('s_waitcnt lgkmcnt(0)'); k.label('WO_RT0')
    def sample():
        k('s_mov_b64 exec, 0xfff')
        k(f'buffer_load_dword v15, {vP}, {SRD_WS}, 0 offen sc1')
        k('s_mov_b64 exec, -1')
    k('s_cmp_eq_u32 s62, 1'); k(f's_cbranch_scc1 {LFAST}')
    k('s_add_u32 s65, s41, s64')
    for m in range(8): dma1('s33', 's65', m)
    k('s_waitcnt vmcnt(4)'); k('s_barrier')
    stage(0, [(lambda m=m: dma1('s33', 's65', m)) for m in range(8, 16)])
    part_loads(); sample()
    k('s_waitcnt vmcnt(13)'); k('s_barrier')
    stage(1)
    k(f's_branch {LMID}')
    k.label(LFAST)
    part_loads(); sample()
    k('s_waitcnt vmcnt(22)'); k('s_barrier')
    stage(0)
    k('s_waitcnt vmcnt(18)'); k('s_barrier')
    stage(1)
    k.label(LMID)
    k('s_waitcnt vmcnt(0)')
    LNO, LEPI, LDEC = k.newlabel('WO_NOPRE'), k.newlabel('WO_EPI'), k.newlabel('WO_DEC')
    k(f's_cmp_lg_u32 {S_WAVE}, 0'); k(f's_cbranch_scc1 {LDEC}')
    k('s_add_u32 s55, s32, 2'); k('s_sub_u32 s56, s32, 1'); k('s_max_i32 s56, s56, 0')
    k(f'v_mov_b32 {vN}, s56'); k('v_mov_b32 v16, s55'); k(f'v_cndmask_b32 {vN}, {vN}, v16, s[60:61]')
    k('s_mov_b64 exec, 0xfff'); k(f'v_cmp_gt_u32 vcc, {vN}, v15'); k('s_mov_b64 exec, -1')
    k('s_nop 1')
    k('v_mov_b32 v16, vcc_lo'); k('v_mov_b32 v17, 131072'); k('ds_write_b32 v17, v16')
    k.label(LDEC)
    k('s_waitcnt lgkmcnt(0)'); k('s_barrier')
    k('v_mov_b32 v20, 131072'); k('ds_read_b32 v19, v20')
    own_flag('s32')
    k('s_waitcnt lgkmcnt(0)')
    k('v_readfirstlane_b32 s6, v19')
    k('s_and_b32 s4, s6, 0xf00'); k('s_cmp_eq_u32 s4, 0'); k('s_cselect_b32 s63, 1, 0')
    k('s_and_b32 s4, s6, 0xff'); k('s_cmp_eq_u32 s4, 0'); k('s_cselect_b32 s62, 1, 0')
    if use_flags is not True: k('s_mov_b32 s62, 1')
    k('s_cmp_ge_u32 s32, 63'); k('s_cselect_b32 s62, 0, s62')
    k('s_cmp_eq_u32 s62, 0'); k(f's_cbranch_scc1 {LNO}')
    k('s_xor_b32 s65, s64, 65536'); k('s_add_u32 s65, s65, s41'); k(f's_add_u32 s66, s33, {32 * 8192}')
    stage(2, [(lambda m=m: dma1('s66', 's65', m)) for m in range(0, 8)])
    stage(3, [(lambda m=m: dma1('s66', 's65', m)) for m in range(8, 16)])
    k(f's_branch {LEPI}')
    k.label(LNO)
    stage(2); stage(3)
    k.label(LEPI)
    if TIMING:
        k('s_cmp_eq_u32 s32, 63'); k('s_cbranch_scc0 WO_RT1'); k('s_memrealtime s[72:73]'); k('s_waitcnt lgkmcnt(0)'); k.label('WO_RT1')
    k('s_cmp_ge_u32 s32, 3'); k('s_cselect_b64 s[68:69], -1, 0')
    finalize('s[68:69]')
    k('s_nop 7')
    for nt in range(2):
        for qt in range(2):
            T = 2 * nt + qt
            k(f's_add_u32 s5, s35, {T * 4096}')
            k(f'buffer_store_dwordx4 {acc[nt][qt]}, {v16}, {SRD_WS}, s5 offen sc1')
    k('s_add_u32 s32, s32, 1')
    k(f's_add_u32 s33, s33, {32 * 8192}'); k(f's_add_u32 s35, s35, {5 * 4 * 16384}')
    k('s_xor_b32 s64, s64, 65536'); k(f'v_xor_b32 {vB}, 65536, {vB}')
    k('s_cmp_lt_u32 s32, 64'); k(f's_cbranch_scc1 {LOOP}')
    pr_a = pr; pr_b = [Reg('v', 192 + 4 * i, 4) for i in range(4)]
    k('s_mov_b32 s55, 0'); k('s_mov_b32 s56, 63')
    poll('s55', 's56', 'WO_P1')
    k('s_barrier')
    if TIMING:
        k('s_cmp_eq_u32 s32, 64'); k('s_cbranch_scc0 WO_RT2'); k('s_memrealtime s[74:75]'); k('s_waitcnt lgkmcnt(0)'); k.label('WO_RT2')
    own_flag('64')
    part_loads()
    k(f's_add_u32 s67, s36, {5 * 4 * 16384}')
    for i in range(4): k(f'buffer_load_dwordx4 {pr_b[i]}, {v16}, {SRD_WS}, s67 offen offset:{i * 1024} sc1')
    k('s_mov_b32 s56, 64')
    poll('s55', 's56', 'WO_P2')
    if TIMING:
        k('s_cmp_eq_u32 s32, 64'); k('s_cbranch_scc0 WO_RT3'); k('s_memrealtime s[76:77]'); k('s_waitcnt lgkmcnt(0)'); k.label('WO_RT3')
    finalize()
    pr[:] = pr_b
    finalize()
    pr[:] = [Reg('v', 176 + 4 * i, 4) for i in range(4)]
    part_loads(); k('s_waitcnt vmcnt(0)'); finalize()
    if TIMING:
        k('s_memtime s[88:89]'); k('s_memrealtime s[90:91]'); k('s_waitcnt lgkmcnt(0)')
        k('s_sub_u32 s88, s88, s84'); k('s_sub_u32 s90, s90, s86')
        k('s_load_dwordx2 s[92:93], s[0:1], 120'); k('s_waitcnt lgkmcnt(0)')
        k(f's_lshl_b32 s94, {S_INST}, 5'); k(f's_add_u32 s94, s94, {S_IDX}'); k('s_lshl_b32 s94, s94, 4')
        k('v_mov_b32 v15, s94'); k('v_add_u32 v15, 36864, v15'); k('v_mov_b32 v20, s88'); k('v_mov_b32 v21, s90'); k('v_mov_b32 v22, s86'); k('v_mov_b32 v23, s100')
        k('global_store_dwordx4 v15, v[20:23], s[92:93]')
        k('v_mov_b32 v24, s70'); k('v_mov_b32 v25, s72'); k('v_mov_b32 v26, s74'); k('v_mov_b32 v27, s76'); k('global_store_dwordx4 v15, v[24:27], s[92:93] offset:2048')
    k('s_waitcnt vmcnt(0)')
    k.manual(False); k.drained()
```

```python
from common import *
from role_qatt import poll_flag
import math
TIMING = False
KV_FIRST = False
NOSAMPLE = False
USE_PK = True
EAGER = 61
DBG_STEPS = 0
NOPOISON = False
SPIN = 0x40000
SAFE_FLAG = 's25'

XQK = 0; OX = 0; TC = 4096; MEM = 6144; WL = 16384

def ops_list():
    ops = []
    for M in 'QKV':
        for c in range(10):
            for t in range(2): ops.append((M, t, c))
    for i in range(10):
        for c2 in range(2): ops.append(('O', i, c2))
    return ops
G_UNITS = [('K', 9), ('Q', 9), ('O', 0, 1), ('O', 4, 1)]
L_UNITS = [('V', 1), ('V', 2), ('V', 3), ('V', 4), ('V', 5), ('O', 1, 0), ('O', 2, 1), ('O', 3, 0), ('O', 4, 0)]
G23 = 48
G01 = 64
def unit_of(op):
    if op[0] == 'O': return ('O', op[1] >> 1, op[2]), op[1] & 1
    return (op[0], op[2]), op[1]
def all_units():
    u = []
    for M in 'QKV':
        for c in range(10): u.append((M, c))
    for ip in range(5):
        for c2 in range(2): u.append(('O', ip, c2))
    return u
def classify():
    src = {}; nR = 0
    for op in ops_list():
        u, o = unit_of(op)
        if u in G_UNITS: src[op] = ('G', G_UNITS.index(u) * 2 + o)
        elif u in L_UNITS: src[op] = ('L', L_UNITS.index(u), o)
        else:
            reg = Reg('a', 8 * nR, 8) if nR < 32 else Reg('v', 80 + 8 * (nR - 32), 8)
            src[op] = ('R', reg); nR += 1
    assert nR == 54
    return src
SRC = classify()
def unit_ops(u):
    if u[0] == 'O': return [('O', 2 * u[1], u[2]), ('O', 2 * u[1] + 1, u[2])]
    return [(u[0], 0, u[1]), (u[0], 1, u[1])]

v16l, vBL, vIDX, vXW, vXR, vOW, vPS, vLN = 'v0', 'v1', 'v2', 'v3', 'v4', 'v5', 'v6', 'v7'
S_SEG, S_KX, S_KVM, S_PCUR, S_POTH, S_MNEXT, S_MPOI, S_WSTR = 's32', 's33', 's34', 's35', 's36', 's37', 's38', 's39'
M_N2, M_N8, M_N4 = 's[44:45]', 's[46:47]', 's[48:49]'
S_C = 's50'
S_RED = 's51'
S_RLD, S_RPUB = 's52', 's53'
S_PST = 's54'
S_PST2 = 's55'
S_PB, S_MB = 's56', 's57'
S_FKVM, S_FKVD = 's58', 's59'

def startup_weights(k, pool):
    units = [u for u in all_units() if u not in L_UNITS]
    if KV_FIRST:
        kv = sorted([u for u in units if u[0] in 'KV'], key=lambda u: (u[1], u[0]))
        units = kv + [u for u in units if u[0] not in 'KV']
    assert len(units) == 31
    for n in range(31, 40): units.append(L_UNITS[n % 9])
    load_srd(k, 12, S_KA, 16, W_BYTES); load_srd(k, 16, S_KA, 24, W_BYTES)
    load_srd(k, 20, S_KA, 32, W_BYTES); load_srd(k, 60, S_KA, 40, W_BYTES)
    SR = {'Q': 's[12:15]', 'K': 's[16:19]', 'V': 's[20:23]', 'O': 's[60:63]'}
    t = pool.alloc(8, name='st')
    vWq, vWo, vTq0, vTq1, vTo0, vTo1 = [t[i] for i in range(6)]
    a, b = t[6], t[7]
    k(f's_and_b32 s4, {S_WAVE}, 1'); k('s_lshl_b32 s4, s4, 1')
    k(f's_lshr_b32 s5, {S_WAVE}, 1'); k('s_lshl_b32 s5, s5, 2'); k('s_or_b32 s4, s4, s5')
    k(f'v_bfe_u32 {a}, {vLN}, 4, 1'); k(f'v_or_b32 {a}, s4, {a}'); k(f'v_lshlrev_b32 {a}, 1, {a}')
    k(f'v_and_b32 {b}, 15, {vLN}'); k(f'v_xor_b32 {a}, {a}, {b}'); k(f'v_lshlrev_b32 {a}, 4, {a}')
    k(f's_lshl_b32 s4, {S_WAVE}, 2')
    k(f'v_lshrrev_b32 {b}, 4, {vLN}'); k(f'v_add_u32 {b}, s4, {b}')
    k(f'v_lshl_add_u32 {vWq}, {b}, 13, {a}')
    k(f'v_mul_u32_u24 {b}, 1280, {b}'); k(f'v_add_u32 {vWo}, {b}, {a}')
    x = pool.alloc(4, name='st2')
    k(f'v_bfe_u32 {x[0]}, {vLN}, 2, 1')
    k(f'v_bfe_u32 {x[1]}, {vLN}, 3, 1')
    k(f'v_bfe_u32 {x[2]}, {vLN}, 4, 1')
    k(f'v_lshrrev_b32 {x[3]}, 5, {vLN}')
    k(f'v_lshl_or_b32 {a}, {x[2]}, 1, {x[0]}'); k(f'v_lshl_or_b32 {a}, {x[1]}, 2, {a}')
    k(f'v_lshl_or_b32 {b}, {x[1]}, 3, {x[0]}'); k(f'v_lshl_or_b32 {b}, {x[2]}, 2, {b}'); k(f'v_lshl_or_b32 {b}, {x[3]}, 4, {b}')
    k(f'v_lshlrev_b32 {b}, 8, {b}')
    k(f'v_and_b32 {x[0]}, 3, {vLN}'); k(f'v_lshl_add_u32 {b}, {x[0]}, 3, {b}')
    k(f's_lshl_b32 s4, {S_WAVE}, 1')
    k(f'v_xor_b32 {x[0]}, s4, {a}'); k(f'v_lshl_add_u32 {vTq0}, {x[0]}, 5, {b}')
    k(f'v_xor_b32 {vTq1}, 32, {vTq0}')
    k(f'v_xor_b32 {x[0]}, {S_WAVE}, {a}'); k(f'v_lshl_add_u32 {vTo0}, {x[0]}, 5, {b}')
    k(f'v_xor_b32 {vTo1}, 128, {vTo0}')
    x.free()
    k(f's_lshl_b32 s40, {S_IDX}, 8'); k(f's_mul_i32 s41, {S_IDX}, {128*1280}'); k(f's_lshl_b32 s42, {S_WAVE}, 10')
    def dma(n):
        u = units[n]; slot = n % 9
        for mm in range(4):
            k(f's_add_u32 m0, s42, {WL + slot * 16384 + mm * 4096}')
            if u[0] == 'O':
                k(f's_add_u32 s5, s41, {(64 * u[2] + 16 * mm) * 1280 + u[1] * 256}')
                k(f'buffer_load_dwordx4 {vWo}, {SR["O"]}, s5 offen' + WFL['chain'] + ' lds')
            else:
                k(f's_add_u32 s5, s40, {(64 * u[1] + 16 * mm) * 8192}')
                k(f'buffer_load_dwordx4 {vWq}, {SR[u[0]]}, s5 offen' + (WFL['chain'] if u[0] == 'Q' else WFL['chainkv']) + ' lds')
    tmp = pool.alloc(16, align=2, name='wtmp')
    ad = pool.alloc(2, name='wad')
    k.manual(True)
    DEPTH = 8
    q = []
    def issue(n):
        dma(n); q.extend([n] * 4)
    for n in range(DEPTH): issue(n)
    for n in range(40):
        u = units[n]; slot = n % 9
        last = max(i for i, e in enumerate(q) if e == n)
        k(f's_waitcnt vmcnt({min(63, len(q) - 1 - last)}) lgkmcnt(0)'); del q[:last + 1]
        k('s_barrier')
        if n + DEPTH < 40 and n >= 0:
            issue(n + DEPTH)
        a0, a1 = (vTo0, vTo1) if u[0] == 'O' else (vTq0, vTq1)
        k(f'v_add_u32 {ad[0]}, {WL + slot * 16384}, {a0}')
        k(f'v_add_u32 {ad[1]}, {WL + slot * 16384}, {a1}')
        dsts = []
        for o, op in enumerate(unit_ops(u)):
            s = SRC[op]
            dst = s[1] if s[0] == 'R' else tmp[8 * o:8 * o + 8]
            dsts.append((s, dst))
            for p in range(4):
                off = (32 * (p >> 1) + 2 * (p & 1)) * 256
                k(f'ds_read_b64_tr_b16 {dst[2*p:2*p+2]}, {ad[o]} offset:{off}')
        kind = dsts[0][0][0]
        if kind == 'G':
            k('s_waitcnt lgkmcnt(0)')
            for s, dst in dsts:
                for hh in range(2):
                    k(f's_add_u32 s5, {S_WSTR}, {s[1] * 2048 + hh * 1024}')
                    k(f'buffer_store_dwordx4 {dst[4*hh:4*hh+4]}, {v16l}, {SRD_WS}, s5 offen'); q.append('st')
            k('s_waitcnt vmcnt(%d)' % 0 if False else 's_nop 1')
        if kind == 'L':
            k('s_waitcnt lgkmcnt(0)')
            k('s_barrier')
            k(f's_lshl_b32 s4, {S_WAVE}, 12')
            k(f'v_add_u32 {ad[0]}, s4, {v16l}')
            k(f'v_add_u32 {ad[0]}, {WL + slot * 16384}, {ad[0]}')
            for o, (s, dst) in enumerate(dsts):
                for hh in range(2):
                    k(f'ds_write_b128 {ad[0]}, {dst[4*hh:4*hh+4]} offset:{o*2048 + hh*1024}')
    k('s_waitcnt vmcnt(0) lgkmcnt(0)')
    k('s_barrier')
    k.manual(False); k.drained()
    t.free(); tmp.free(); ad.free()

def smf(k, acc, A, B): k(f'v_smfmac_f32_16x16x64_bf16 {acc}, {A}, {B}, {vIDX}')

INTEGRATED = False
SAFE = [False]
def stf(): return ' sc1' if SAFE[0] else ''

def role_chain(k):
    pool = Pool('chain', 'v', range(8, 80))
    k(f'v_mov_b32 {vLN}, v2')
    inst_kernarg(k)
    k(f'v_lshlrev_b32 {v16l}, 4, {vLN}')
    k(f's_lshl_b32 s4, {S_INST}, 5'); k(f's_add_u32 s4, s4, {S_IDX}'); k('s_lshl_b32 s4, s4, 2'); k(f's_add_u32 s4, s4, {S_WAVE}')
    k(f's_lshl_b32 s4, s4, 14'); k(f's_add_u32 {S_WSTR}, s4, {WSTR}')
    startup_weights(k, pool)
    if TIMING:
        k('s_memrealtime s[98:99]'); k('s_waitcnt lgkmcnt(0)')
    t = pool.alloc(6, name='init')
    a, b, c_, d = t[0], t[1], t[2], t[3]
    k(f'v_and_b32 {a}, 15, {vLN}'); k(f'v_lshrrev_b32 {b}, 4, {vLN}')
    k(f'v_and_b32 {c_}, 2, {vLN}'); k(f'v_cmp_ne_u32 {M_N2}, 0, {c_}')
    k(f'v_cmp_gt_u32 {M_N8}, 8, {a}'); k(f'v_cmp_gt_u32 {M_N4}, 4, {a}')
    k(f'v_and_b32 {c_}, 1, {vLN}'); k(f'v_cmp_ne_u32 vcc, 0, {c_}')
    k(f'v_mov_b32 {d}, 0x44444444'); k(f'v_mov_b32 {vIDX}, 0xeeeeeeee'); k(f'v_cndmask_b32 {vIDX}, {d}, {vIDX}, vcc')
    k(f's_lshl_b32 s4, {S_WAVE}, 12'); k(f's_add_u32 s4, s4, {WL}'); k(f'v_add_u32 {vBL}, s4, {v16l}')
    k(f's_lshl_b32 s4, {S_WAVE}, 10'); k(f'v_lshlrev_b32 {c_}, 5, {a}'); k(f'v_lshl_add_u32 {c_}, {b}, 3, {c_}'); k(f'v_add_u32 {vXW}, s4, {c_}')
    k(f'v_bfe_u32 {c_}, {vLN}, 2, 2'); k(f'v_lshl_add_u32 {c_}, {b}, 3, {c_}'); k(f'v_lshlrev_b32 {c_}, 5, {c_}')
    k(f'v_and_b32 {d}, 3, {vLN}'); k(f'v_lshl_add_u32 {c_}, {d}, 3, {c_}'); k(f'v_add_u32 {vXR}, s4, {c_}')
    k(f'v_lshrrev_b32 {c_}, 2, {a}'); k(f'v_lshlrev_b32 {c_}, 1, {c_}'); k(f'v_and_b32 {d}, 1, {a}'); k(f'v_or_b32 {c_}, {c_}, {d}')
    k(f'v_lshlrev_b32 {c_}, 1, {c_}'); k(f'v_lshrrev_b32 {d}, 1, {b}'); k(f'v_or_b32 {c_}, {c_}, {d}')
    k(f'v_lshlrev_b32 {c_}, 4, {c_}'); k(f'v_and_b32 {d}, 1, {b}'); k(f'v_lshl_add_u32 {c_}, {d}, 3, {c_}')
    k(f's_lshr_b32 s4, {S_WAVE}, 1'); k('s_lshl_b32 s4, s4, 10'); k(f's_and_b32 s5, {S_WAVE}, 1'); k('s_lshl_b32 s5, s5, 9'); k('s_add_u32 s4, s4, s5')
    k(f'v_add_u32 {vOW}, s4, {c_}')
    k(f'v_lshrrev_b32 {c_}, 2, {a}'); k(f'v_lshlrev_b32 {c_}, 13, {c_}'); k(f'v_and_b32 {d}, 3, {a}'); k(f'v_lshl_add_u32 {d}, {b}, 2, {d}')
    k(f'v_lshl_add_u32 {vPS}, {d}, 4, {c_}')
    k(f's_mov_b32 {S_C}, {hex(f32bits(128 ** -0.5 * math.log2(math.e)))}')
    k(f's_mul_i32 {S_PB}, {S_INST}, {2*PART_BUF}'); k(f's_add_u32 {S_PB}, {S_PB}, {PART}')
    k(f's_mul_i32 {S_MB}, {S_INST}, {3*16384}'); k(f's_add_u32 {S_MB}, {S_MB}, {MEMR}')
    k(f's_lshl_b32 s4, {S_WAVE}, 15'); k(f's_lshl_b32 s5, {S_IDX}, 8'); k(f's_add_u32 {S_PST}, s4, s5')
    k(f's_lshl_b32 s4, {S_WAVE}, 14'); k(f's_lshl_b32 s5, {S_IDX}, 7'); k(f's_add_u32 {S_PST2}, s4, s5'); k(f's_add_u32 {S_PST2}, {S_PST2}, 262144')
    k(f's_mov_b32 {S_RED}, 0')
    k(f's_cmp_eq_u32 {S_WAVE}, 0'); k(f's_cselect_b32 {S_RED}, 1, 0')
    k(f's_cmp_lt_u32 {S_IDX}, 16'); k('s_cselect_b32 s4, 2, 0'); k(f's_cmp_eq_u32 {S_WAVE}, 1'); k(f's_cselect_b32 {S_RED}, s4, {S_RED}')
    k(f's_bfe_u32 s4, {S_IDX}, 0x20002'); k('s_lshl_b32 s4, s4, 8')
    k(f's_bfe_u32 s5, {S_IDX}, 0x10001'); k('s_lshl_b32 s5, s5, 4'); k('s_add_u32 s4, s4, s5')
    k(f's_and_b32 s5, {S_IDX}, 1'); k('s_lshl_b32 s5, s5, 3'); k('s_add_u32 s4, s4, s5')
    k(f's_lshr_b32 s5, {S_IDX}, 4'); k('s_lshl_b32 s5, s5, 12'); k('s_add_u32 s5, s5, s4')
    k('s_add_u32 s4, s4, 8192')
    k(f's_cmp_eq_u32 {S_RED}, 2'); k(f's_cselect_b32 {S_RPUB}, s4, s5')
    k(f's_lshl_b32 s4, {S_IDX}, 12'); k('s_add_u32 s4, s4, 262144'); k(f's_lshl_b32 s5, {S_IDX}, 13')
    k(f's_cmp_eq_u32 {S_RED}, 2'); k(f's_cselect_b32 {S_RLD}, s4, s5')
    k(f's_cmp_eq_u32 {S_RED}, 2'); k(f's_cselect_b64 {M_PUB}, {M_N4}, {M_N8}')
    k(f's_cmp_eq_u32 {S_RED}, 0'); k(f's_cselect_b64 {M_PUB}, 0, {M_PUB}')
    k(f's_cmp_lt_u32 {S_IDX}, 16'); k(f's_cselect_b64 {M_HALFCU}, -1, 0')
    k(f's_cmp_eq_u32 {S_WAVE}, 3'); k(f's_cselect_b64 {M_W3}, 1, 0')
    k(f's_mov_b32 {S_TAG}, 0')
    sl = pool.alloc(1, name='sl'); k(f'v_bfe_u32 {sl}, {vLN}, 1, 3')
    for dd in range(4): k(f'v_cmp_eq_u32 {M_SEL[dd]}, {dd}, {sl}')
    sl.free()
    k(f's_lshl_b32 s4, {S_IDX}, 13'); k(f's_lshl_b32 s5, {S_WAVE}, 11'); k(f's_add_u32 {S_POIF}, s4, s5')
    k(f's_lshl_b32 s4, {S_IDX}, 12'); k(f's_lshl_b32 s5, {S_WAVE}, 10'); k('s_add_u32 s4, s4, s5'); k(f's_add_u32 {S_POIH}, s4, 262144')
    k(f's_lshl_b32 s4, {S_WAVE}, 11'); k(f's_add_u32 {S_TOFF}, s4, {32 * 16384}')
    k('s_mov_b32 s18, -1'); k('s_mov_b32 s19, 0')
    k(f's_lshl_b32 s4, {S_INST}, 11'); k(f's_add_u32 s4, s4, {S_IDX}')
    k(f's_lshl_b32 {S_KX}, s4, 14'); k(f's_lshl_b32 s5, {S_WAVE}, 11'); k(f's_add_u32 {S_KX}, {S_KX}, s5')
    if KVX: k(f's_add_u32 {S_KX}, {S_KX}, {KVX}')
    k(f's_lshl_b32 {S_KVM}, s4, 12'); k(f's_lshl_b32 s5, {S_WAVE}, 10'); k(f's_add_u32 {S_KVM}, {S_KVM}, s5'); k(f's_add_u32 {S_KVM}, {S_KVM}, {KVM}')
    k(f's_lshl_b32 s4, {S_INST}, 5'); k(f's_add_u32 s4, s4, {S_IDX}'); k('s_lshl_b32 s4, s4, 7')
    k(f's_add_u32 {S_FKVM}, s4, {F_KVM}'); k(f's_add_u32 {S_FKVD}, s4, {F_KVD}')
    k(f's_mov_b32 {S_SEG}, 0'); k(f's_mov_b32 {S_KVSEEN}, 0')
    k(f's_lshl_b32 s4, {S_WAVE}, 10'); k(f's_add_u32 {S_TCW}, s4, {MEM + 6144}')
    k(f's_mov_b32 {S_PCUR}, {S_PB}'); k(f's_add_u32 {S_POTH}, {S_PB}, {PART_BUF}')
    k(f's_add_u32 {S_MNEXT}, {S_MB}, 16384'); k(f's_mov_b32 {S_MPOI}, {S_MB}'); k(f's_mov_b32 {S_MPP}, {S_MB}')
    if INTEGRATED:
        chain_init(k, pool)
    load_srd(k, 12, S_KA, 8, MEM0_BYTES)
    k(f'v_bfe_u32 {c_}, {vLN}, 1, 3'); k(f'v_mul_u32_u24 {c_}, 1280, {c_}')
    k(f'v_lshl_add_u32 {c_}, {b}, 5, {c_}'); k(f'v_and_b32 {d}, 1, {vLN}'); k(f'v_lshl_add_u32 {c_}, {d}, 4, {c_}')
    m0r = pool.alloc(12, align=2, name='m0')
    k(f's_lshl_b32 s4, {S_WAVE}, 7')
    for j in range(3):
        k(f's_add_u32 s5, s4, {j * 512}')
        k(f'buffer_load_dwordx4 {m0r[4*j:4*j+4]}, {c_}, s[12:15], s5 offen')
    k(f's_lshl_b32 s4, {S_WAVE}, 10'); k(f'v_add_u32 {d}, s4, {v16l}')
    k(f'ds_write_b128 {d}, {m0r[0:4]} offset:{MEM}')
    k(f'ds_write_b128 {d}, {m0r[4:8]} offset:{MEM + 4096}')
    L1 = k.newlabel('CH_M0')
    k(f's_cmp_ge_u32 {S_WAVE}, 2'); k(f's_cbranch_scc1 {L1}')
    k(f'ds_write_b128 {d}, {m0r[8:12]} offset:{MEM + 8192}')
    k.label(L1)
    z = m0r
    k('s_waitcnt vmcnt(0) lgkmcnt(0)')
    for i in range(4): k(f'v_mov_b32 {z[i]}, 0')
    k(f'ds_write_b128 {v16l}, {z[0:4]} offset:{TC}')
    k('s_waitcnt lgkmcnt(0)')
    k('s_barrier')
    k.drained()
    m0r.free(); t.free()
    for i in range(1, 4): k(f's_add_u32 {S_WS4[i]}, {S_WSTR}, {4096 * i}')
    k(f's_add_u32 {S_VX}, {S_KX}, 8192')
    gload(k, Reg('v', G23, 8), 0)
    k('s_waitcnt vmcnt(0)'); k.drained()
    if TIMING:
        k('s_memtime s[64:65]'); k('s_memrealtime s[66:67]'); k('s_waitcnt lgkmcnt(0)')
        for i in range(8): k(f's_mov_b32 s{80+i}, 0')
    LEND = k.newlabel('CH_END')
    if INTEGRATED:
        vt = pool.alloc(2, name='iw')
        init_wait(k, vt)
        k(f's_lshl_b32 s4, {S_INST}, 2'); k(f'v_mov_b32 {vt[1]}, s4')
        k(f'global_load_dword {vt[0]}, {vt[1]}, {DBG_PTR} sc1'); k('s_waitcnt vmcnt(0)')
        k(f'v_readfirstlane_b32 s6, {vt[0]}')
        k('s_mov_b32 s60, s6')
        k('s_mov_b32 s61, 1'); poll_flag(k, S_FKVD, 's61', vt, 'CH_KV0'); k(f's_mov_b32 {S_KVSEEN}, s6')
        vt.free()
        k.drained()
        LSAFE = k.newlabel('CH_SAFE')
        k('s_cmp_lt_u32 s60, 32'); k(f's_cbranch_scc1 {LSAFE}')
        for safe in (False, True):
            SAFE[0] = safe
            if safe: k.label(LSAFE); k.drained()
            LOOP = k.newlabel('CH_LOOP'); k.label(LOOP)
            step(k, pool, LOOP, LEND)
        SAFE[0] = False
    else:
        LOOP = k.newlabel('CH_LOOP')
        k.label(LOOP)
        step(k, pool, LOOP, LEND)
    k.label(LEND)
    if TIMING:
        k('s_memtime s[68:69]'); k('s_memrealtime s[70:71]'); k('s_waitcnt lgkmcnt(0)')
        k('s_sub_u32 s68, s68, s64'); k('s_sub_u32 s70, s70, s66')
        k('s_load_dwordx2 s[72:73], s[0:1], 120'); k('s_waitcnt lgkmcnt(0)')
        k(f's_lshl_b32 s74, {S_INST}, 5'); k(f's_add_u32 s74, s74, {S_IDX}'); k('s_lshl_b32 s74, s74, 2'); k(f's_add_u32 s74, s74, {S_WAVE}'); k('s_lshl_b32 s74, s74, 6')
        k('v_mov_b32 v8, s74'); k('v_add_u32 v8, 1024, v8')
        k('v_mov_b32 v12, s68'); k('v_mov_b32 v13, s70'); k('v_mov_b32 v14, s66'); k('v_mov_b32 v15, s100')
        k('global_store_dwordx4 v8, v[12:15], s[72:73]')
        for j in range(2):
            for i in range(4): k(f'v_mov_b32 v{16+4*j+i}, ' + ('s98' if (j == 0 and i == 0 and not STAMPS_ON and not TRACE) else f's{80+4*j+i}'))
            k(f'global_store_dwordx4 v8, v[{16+4*j}:{19+4*j}], s[72:73] offset:{16+16*j}')
        k('s_waitcnt vmcnt(0)')

def chain_init(k, pool):
    p = pool.alloc(4, name='ip'); a = pool.alloc(2, name='ia')
    zero_flag(k, S_FKVM, a)
    L = k.newlabel('CI')
    k(f's_cmp_eq_u32 {S_RED}, 0'); k(f's_cbranch_scc1 {L}')
    for i in range(4): k(f'v_mov_b32 {p[i]}, -1')
    for b in range(1):
        k(f's_add_u32 s5, {S_PB}, {S_RLD}')
        if b: k(f's_add_u32 s5, s5, {PART_BUF}')
        for m in range(4): k(f'buffer_store_dwordx4 {p}, {v16l}, {SRD_WS}, s5 offen offset:{m * 1024} sc1')
        L2 = k.newlabel('CI2')
        k(f's_cmp_eq_u32 {S_RED}, 2'); k(f's_cbranch_scc1 {L2}')
        k('s_add_u32 s5, s5, 4096')
        for m in range(4): k(f'buffer_store_dwordx4 {p}, {v16l}, {SRD_WS}, s5 offen offset:{m * 1024} sc1')
        k.label(L2)
    pub_addr(k, a[0], a[1])
    k(f's_cmp_eq_u32 {S_RED}, 2'); k(f's_cselect_b64 exec, {M_N4}, {M_N8}')
    for b in range(3):
        k(f's_add_u32 s5, {S_MB}, {S_RPUB}')
        if b: k(f's_add_u32 s5, s5, {b * 16384}')
        k(f'buffer_store_dwordx2 {p[0:2]}, {a[0]}, {SRD_WS}, s5 offen sc1')
    k('s_mov_b64 exec, -1')
    k.label(L)
    init_arrive(k, a)
    k.drained()
    p.free(); a.free()

def f32bits(x):
    import struct
    return struct.unpack('<I', struct.pack('<f', x))[0]

STAMP = [0]
def stamp(k, i):
    if not TIMING: return
    k('s_memtime s[76:77]'); k('s_waitcnt lgkmcnt(0)')
    k('s_sub_u32 s78, s76, s79'); k(f's_add_u32 s{80+i}, s{80+i}, s78'); k('s_mov_b32 s79, s76')

def gload(k, dst, gi):
    k(f's_add_u32 s5, {S_WSTR}, {gi * 2048}')
    k(f'buffer_load_dwordx4 {dst[0:4]}, {v16l}, {SRD_WS}, s5 offen')
    k(f'buffer_load_dwordx4 {dst[4:8]}, {v16l}, {SRD_WS}, s5 offen offset:1024')

def zero(k, r):
    for i in range(0, r.n, 2): k(f'v_mov_b64 {r[i:i+2]}, 0')

KVF = ' nt'
S_KVSEEN = 's62'
S_TCW = 's63'
S_MPP = 's88'
S_POIF, S_POIH = 's89', 's96'
M_PUB, M_HALFCU, M_W3 = 's[90:91]', 's[92:93]', 's[94:95]'
NLS_O = 2
NPRE = 4
RED_SLEEP = 1
RED_SLEEP_G1 = 3
RED_SLEEP_H = 5
PIPE_POLL = True
POLL_GAP = 2
PRE_SLEEP = 0
TOUCH_ON = True
STAMPS_ON = True
COUNT_POLLS = False
FAILHIST = None
ONLY = None
P1_AT = -1
MARK = None
def mark(k, name):
    if TIMING and MARK == name: stamp(k, 0)
    if TIMING and TRACE == name:
        k('s_memrealtime s[76:77]'); k('s_waitcnt lgkmcnt(0)')
        for j in range(8):
            k(f's_cmp_eq_u32 {S_SEG}, {20 + j}'); k(f's_cselect_b32 s{80+j}, s76, s{80+j}')
TRACE = None

def bstamp(k, i):
    if TIMING and STAMPS_ON and (ONLY is None or ONLY == i): stamp(k, i)

S_WS4 = [S_WSTR, 's12', 's13', 's14']
def gload1(k, dst, gi, half):
    off = (gi & 1) * 2048 + half * 1024
    k(f'buffer_load_dwordx4 {dst[4*half:4*half+4]}, {v16l}, {SRD_WS}, {S_WS4[gi >> 1]} offen offset:{off}')

class VStream:
    def __init__(self, k, pool, slot, accv, G):
        self.k, self.pool, self.accv, self.G = k, pool, accv, G
        self.order = [9, 8, 7, 6, 0, 1, 2, 3, 4, 5]
        self.slot = {9: slot[9], 8: slot[8], 7: slot[7]}
        self.slot[6] = slot[9]; self.slot[0] = slot[8]; self.slot[1] = slot[7]
        self.slot[2] = slot[9]; self.slot[3] = slot[7]; self.slot[4] = slot[9]; self.slot[5] = slot[7]
        self.after = {}
        for j, p in {3: 0, 4: 1, 5: 2, 6: 3, 7: 5, 8: 6, 9: 7}.items(): self.after.setdefault(p, []).append(j)
        self.ops = [('V', t, c) for c in self.order for t in range(2)]
        self.lops = [op for op in self.ops if SRC[op][0] == 'L']
        self.li = {op: i for i, op in enumerate(self.lops)}
        self.i = 0; self.LS = None; self.bl = None
    def start_l(self):
        self.LS = [self.pool.alloc_at(8, 8, 'L0'), self.pool.alloc_at(16, 8, 'L1')]
        self.lload(0); self.lload(1)
    def lload(self, n):
        op = self.lops[n]; off = SRC[op][1] * 16384 + SRC[op][2] * 2048
        d = self.LS[n % 2]; ad = vBL
        if off >= 65536:
            if self.bl is None:
                self.bl = self.pool.alloc(1, name='blv'); self.k(f'v_add_u32 {self.bl}, 65536, {vBL}')
            ad = str(self.bl); off -= 65536
        self.k(f'ds_read_b128 {d[0:4]}, {ad} offset:{off}'); self.k(f'ds_read_b128 {d[4:8]}, {ad} offset:{off + 1024}')
    def emit(self, n=1):
        k = self.k
        for _ in range(n):
            if self.i >= len(self.ops): return
            op = self.ops[self.i]; s = SRC[op]; c = op[2]
            Bv = s[1] if s[0] == 'R' else (self.G[op[1]] if s[0] == 'G' else self.LS[self.li[op] % 2])
            smf(k, self.accv[op[1]], self.slot[c], Bv)
            if s[0] == 'L' and self.li[op] + 2 < len(self.lops): self.lload(self.li[op] + 2)
            j = self.i // 2
            if op[1] == 1:
                for jn in self.after.get(j, []):
                    cn = self.order[jn]
                    k(f'ds_read_b128 {self.slot[cn]}, {v16l} offset:{MEM + cn * 1024}')
            self.i += 1
    def finish(self):
        self.emit(100)
        for l_ in self.LS: l_.free()
        if self.bl is not None: self.bl.free()

def poison_ops(k, pz, tag=None):
    def p0():
        k(f'v_mov_b32 {pz[0]}, -1'); k(f'v_mov_b32 {pz[1]}, -1')
        pub_addr(k, pz[2], pz[3])
        k(f's_add_u32 s6, {S_MPP}, {S_RPUB}'); k(f's_mov_b64 exec, {M_PUB}')
        k(f'buffer_store_dwordx2 {pz[0:2]}, {pz[2]}, {SRD_WS}, s6 offen' + stf(), tag=tag)
        k('s_mov_b64 exec, -1')
    def p1():
        k(f's_add_u32 s6, {S_POTH}, {S_POIF}')
        k(f'buffer_store_dwordx4 {pz}, {v16l}, {SRD_WS}, s6 offen' + stf(), tag=tag)
    def p2():
        k(f's_add_u32 s6, {S_POTH}, {S_POIF}')
        k(f'buffer_store_dwordx4 {pz}, {v16l}, {SRD_WS}, s6 offen offset:1024' + stf(), tag=tag)
    def p3():
        k(f's_add_u32 s6, {S_POTH}, {S_POIH}'); k(f's_mov_b64 exec, {M_HALFCU}')
        k(f'buffer_store_dwordx4 {pz}, {v16l}, {SRD_WS}, s6 offen' + stf(), tag=tag)
        k('s_mov_b64 exec, -1')
    return [p0]

def step(k, pool, LOOP, LEND):
    if TIMING and STAMPS_ON:
        k('s_memtime s[76:77]'); k('s_waitcnt lgkmcnt(0)'); k('s_mov_b32 s79, s76')
    G0, G1 = pool.alloc_at(G01, 8, 'G0'), pool.alloc_at(G01 + 8, 8, 'G1')
    G2, G3 = pool.alloc_at(G23, 8, 'G2'), pool.alloc_at(G23 + 8, 8, 'G3')
    k.pending_vm([G2[0:4], G2[4:8]])
    pz = pool.alloc_at(44, 4, 'pz')
    accq = [pool.alloc_at(8, 4, 'q0'), pool.alloc_at(12, 4, 'q1')]
    acck = [pool.alloc_at(16, 4, 'k0'), pool.alloc_at(24, 4, 'k1')]
    A = [pool.alloc_at(28, 4, 'A0'), pool.alloc_at(32, 4, 'A1'), pool.alloc_at(20, 4, 'A2')]
    KX = pool.alloc_at(36, 8, 'KX')
    slot = {c: A[c % 3] for c in range(10)}
    def rdA(c): k(f'ds_read_b128 {slot[c]}, {v16l} offset:{MEM + c * 1024}')
    rdA(0); rdA(1)
    for r in accq + acck: zero(k, r)
    gmap = {('K', 0, 9): G2, ('K', 1, 9): G3, ('Q', 0, 9): G0, ('Q', 1, 9): G1}
    def B(op):
        s = SRC[op]
        return s[1] if s[0] == 'R' else gmap[op]
    def kx(h): k(f'buffer_load_dwordx4 {KX[4*h:4*h+4]}, {v16l}, {SRD_WS}, {S_KX} offen offset:{1024*h}' + KVF)
    vm = {0: lambda: gload1(k, G3, 1, 0), 1: lambda: gload1(k, G3, 1, 1), 2: lambda: gload1(k, G0, 2, 0), 3: lambda: gload1(k, G0, 2, 1),
          4: lambda: gload1(k, G1, 3, 0), 5: lambda: gload1(k, G1, 3, 1), 6: lambda: None, 7: lambda: kx(0), 8: lambda: kx(1)}
    for c in range(9):
        if c + 2 < 10: rdA(c + 2)
        if TIMING and P1_AT == c: stamp(k, 0)
        for t in range(2): smf(k, acck[t], slot[c], B(('K', t, c)))
        vm[c]()
        for t in range(2): smf(k, accq[t], slot[c], B(('Q', t, c)))
    for t in range(2): smf(k, acck[t], slot[9], B(('K', t, 9)))
    accv = [G2[0:4], G2[4:8]]
    zero(k, G2)
    VX = G3
    k(f'buffer_load_dwordx4 {VX[0:4]}, {v16l}, {SRD_WS}, {S_VX} offen' + KVF)
    for t in range(2): smf(k, accq[t], slot[9], B(('Q', t, 9)))
    G0.free(); G1.free()
    bstamp(k, 0)
    V = VStream(k, pool, slot, accv, None)
    V.emit(2)
    W = pool.alloc_at(64, 4, 'W')
    KV4 = pool.alloc_at(68, 4, 'KV4')
    TCH = pool.alloc_at(76, 2, 'touch')
    for t in range(2):
        a = acck[t]
        k(f'v_add_f32 {a[0]}, {a[0]}, {a[1]}'); k(f'v_add_f32 {a[2]}, {a[2]}, {a[3]}')
        k(f'v_cvt_pk_bf16_f32 {W[2*t]}, {a[0]}, {a[2]}')
    k(f'buffer_load_dwordx4 {VX[4:8]}, {v16l}, {SRD_WS}, {S_VX} offen offset:1024' + KVF)
    V.emit(2)
    for t in range(2):
        a = accq[t]
        k(f'v_add_f32 {a[0]}, {a[0]}, {a[1]}'); k(f'v_add_f32 {a[2]}, {a[2]}, {a[3]}')
        k(f'v_cvt_pk_bf16_f32 {W[2*t+1]}, {a[0]}, {a[2]}')
        k(f'ds_write_b64 {vXW}, {W[2*t:2*t+2]} offset:{XQK + t * 512}')
    for r in accq + acck: r.free()
    if TOUCH_ON:
        k(f'v_lshlrev_b32 {TCH[1]}, 3, {v16l}')
        k(f's_add_u32 s5, {S_KX}, {S_TOFF}')
        if INTEGRATED and not NOSAMPLE:
            k(f's_add_u32 s6, {S_SEG}, 2'); k(f's_cmp_ge_u32 {S_KVSEEN}, s6'); k('s_cselect_b64 exec, s[18:19], 0')
        else:
            k('s_mov_b64 exec, 0xffffffff')
        k(f'buffer_load_dword {TCH[0]}, {TCH[1]}, {SRD_WS}, s5 offen')
        k('s_mov_b64 exec, -1')
    V.emit(2)
    for t in range(2): k(f'v_mov_b32 {KV4[2*t]}, {W[2*t]}')
    if INTEGRATED and not NOSAMPLE:
        k(f'buffer_load_dword {TCH[1]}, off, {SRD_WS}, {S_FKVD} sc1')
    k('s_waitcnt lgkmcnt(0)'); k('s_barrier'); k.drained(vm=False)
    bstamp(k, 1)
    X0 = pool.alloc_at(8, 4, 'X0'); XR = [pool.alloc_at(12, 4, 'Xa'), pool.alloc_at(16, 4, 'Xb')]
    xa = KV4[1]
    def rdX(dst, m):
        ad = vXR
        if m:
            k(f'v_xor_b32 {xa}, {m * 1024}, {vXR}'); ad = str(xa)
        k(f'ds_read_b64_tr_b16 {dst[0:2]}, {ad} offset:{XQK}')
        k(f'ds_read_b64_tr_b16 {dst[2:4]}, {ad} offset:{XQK + 128}')
    rdX(X0, 0); rdX(XR[0], 1); rdX(XR[1], 2)
    k(f's_sub_u32 s5, {S_KVM}, {32 * 4096}')
    k(f's_cmp_lg_u32 {S_SEG}, 0'); k('s_cselect_b64 exec, -1, 0')
    k(f'buffer_store_dwordx4 {pz}, {v16l}, {SRD_WS}, s5 offen sc1')
    k('s_mov_b64 exec, -1')
    X3 = W
    rdX(X3, 3)
    V.emit(2)
    k(f's_sub_u32 s6, {S_SEG}, 1'); k(f's_max_i32 s6, s6, 0')
    k(f'v_mov_b32 {xa}, s6')
    k(f's_cmp_le_u32 {S_SEG}, {EAGER}'); k(f's_cselect_b64 exec, {M_W3}, 0')
    k(f'buffer_store_dword {xa}, {v16l}, {SRD_WS}, {S_FKVM} offen sc1')
    k('s_mov_b64 exec, -1')
    TX = [pool.alloc_at(24, 4, 'TX0'), pz]
    TM = pool.alloc_at(72, 4, 'TM')
    for t in range(2): k(f'v_mfma_f32_16x16x32_bf16 {TX[t]}, {KX[4*t:4*t+4]}, {X0}, 0')
    k(f'v_mfma_f32_16x16x32_bf16 {TM}, {X0}, {X0}, 0')
    k(f'v_mfma_f32_16x16x32_bf16 {TM}, {XR[0]}, {XR[0]}, {TM}')
    k(f'v_mfma_f32_16x16x32_bf16 {TM}, {XR[1]}, {XR[1]}, {TM}')
    k(f'v_mfma_f32_16x16x32_bf16 {TM}, {X3}, {X3}, {TM}')
    V.emit(2)
    for x_ in XR + [X0, KX, X3]: x_.free()
    A[2].free()
    V.start_l()
    k(f's_mov_b64 vcc, {M_N2}')
    k(f'v_add_u32 {xa}, {S_TCW}, {v16l}')
    for r in range(4):
        k(f'v_cndmask_b32_dpp {TX[0][r]}, {TX[1][r]}, {TX[0][r]}, vcc quad_perm:[2,3,2,3] row_mask:0xf bank_mask:0xf')
    k(f'ds_write_b128 {xa}, {TX[0]}')
    V.emit(2)
    k('s_waitcnt lgkmcnt(0)'); k('s_barrier'); k.drained(vm=False)
    bstamp(k, 2)
    S = TX[0]; S1 = TX[1]; S2 = pool.alloc_at(36, 4, 'S2'); S3 = pool.alloc_at(40, 4, 'S3')
    for m, dst in ((1, S1), (2, S2), (3, S3)):
        k(f'v_xor_b32 {dst[0]}, {m * 1024}, {xa}')
        k(f'ds_read_b128 {dst}, {dst[0]}')
    mx, t1 = TM[2], TM[3]
    k(f'v_mov_b32 {t1}, 0xff800000')
    k(f'v_cndmask_b32 {TM[0]}, {t1}, {TM[0]}, vcc')
    k(f'v_cndmask_b32 {TM[1]}, {t1}, {TM[1]}, vcc')
    k(f'v_max_f32 {mx}, {TM[0]}, {TM[1]}')
    V.emit(2)
    if USE_PK:
        for h_ in range(2): k(f'v_pk_add_f32 {S[2*h_:2*h_+2]}, {S[2*h_:2*h_+2]}, {S1[2*h_:2*h_+2]}')
        for h_ in range(2): k(f'v_pk_add_f32 {S2[2*h_:2*h_+2]}, {S2[2*h_:2*h_+2]}, {S3[2*h_:2*h_+2]}')
        for h_ in range(2): k(f'v_pk_add_f32 {S[2*h_:2*h_+2]}, {S[2*h_:2*h_+2]}, {S2[2*h_:2*h_+2]}')
    else:
        for r in range(4): k(f'v_add_f32 {S[r]}, {S[r]}, {S1[r]}')
        for r in range(4): k(f'v_add_f32 {S2[r]}, {S2[r]}, {S3[r]}')
        for r in range(4): k(f'v_add_f32 {S[r]}, {S[r]}, {S2[r]}')
    for r_ in (S1, S2, S3): r_.free()
    mark(k, 'adds')
    k(f'v_max3_f32 {mx}, {mx}, {S[0]}, {S[1]}'); k(f'v_max3_f32 {mx}, {mx}, {S[2]}, {S[3]}')
    V.emit(2)
    k(f'v_max_f32_dpp {mx}, {mx}, {mx} quad_perm:[2,3,0,1] row_mask:0xf bank_mask:0xf')
    k(f'v_mov_b32 {t1}, {mx}')
    k(f'v_permlane16_swap_b32 {mx}, {t1}'); k(f'v_max_f32 {mx}, {mx}, {t1}')
    k(f'v_mov_b32 {t1}, {mx}')
    V.emit(1)
    k(f'v_permlane32_swap_b32 {mx}, {t1}'); k(f'v_max_f32 {mx}, {mx}, {t1}')
    k(f'v_mul_f32 {mx}, {S_C}, {mx}')
    mark(k, 'max')
    V.emit(1)
    for r in range(4): k(f'v_fma_f32 {S[r]}, {S[r]}, {S_C}, -{mx}')
    for r in range(2): k(f'v_fma_f32 {TM[r]}, {TM[r]}, {S_C}, -{mx}')
    for r in range(4): k(f'v_exp_f32 {S[r]}, {S[r]}')
    for r in range(2): k(f'v_exp_f32 {TM[r]}, {TM[r]}')
    mark(k, 'exp')
    V.finish()
    mark(k, 'vfin')
    A[0].free(); A[1].free()
    GOa = [pool.alloc_at(8, 8, 'GOa0'), pool.alloc_at(16, 8, 'GOa1')]
    gload1(k, GOa[0], 4, 0)
    P = pool.alloc_at(28, 4, 'P'); BM = pool.alloc_at(64, 2, 'BM')
    ONE = pool.alloc_at(40, 4, 'one'); L4 = pool.alloc_at(44, 4, 'L4')
    k(f'v_cvt_pk_bf16_f32 {P[0]}, {S[0]}, {S[1]}'); k(f'v_cvt_pk_bf16_f32 {P[1]}, {S[2]}, {S[3]}')
    k(f'v_mov_b32 {BM[0]}, 0'); k(f'v_cvt_pk_bf16_f32 {BM[1]}, {TM[0]}, {TM[1]}')
    k(f'v_mov_b32_dpp {P[2]}, {P[0]} quad_perm:[0,1,0,1] row_mask:0xf bank_mask:0xf')
    k(f'v_mov_b32_dpp {P[3]}, {P[1]} quad_perm:[0,1,0,1] row_mask:0xf bank_mask:0xf')
    O = [pool.alloc_at(32, 4, 'O0'), pool.alloc_at(36, 4, 'O1')]
    for i in range(4): k(f'v_mov_b32 {ONE[i]}, 0x3f803f80')
    gload1(k, GOa[0], 4, 1)
    for t in range(2): k(f'v_mfma_f32_16x16x32_bf16 {O[t]}, {VX[4*t:4*t+4]}, {P}, 0')
    k(f'v_mfma_f32_16x16x32_bf16 {L4}, {ONE}, {P}, 0')
    for t in range(2):
        k(f'v_add_f32 {accv[t][0]}, {accv[t][0]}, {accv[t][1]}'); k(f'v_add_f32 {accv[t][2]}, {accv[t][2]}, {accv[t][3]}')
        k(f'v_cvt_pk_bf16_f32 {KV4[2*t+1]}, {accv[t][0]}, {accv[t][2]}')
    k(f'v_mfma_f32_16x16x16_bf16 {L4}, {ONE[0:2]}, {BM}, {L4}')
    mark(k, 'pvx')
    gload1(k, GOa[1], 5, 0)
    for t in range(2): k(f'v_mfma_f32_16x16x16_bf16 {O[t]}, {KV4[2*t:2*t+2]}, {BM}, {O[t]}')
    ONE.free()
    ls = L4[0]
    G2.free()
    LCONT = k.newlabel('CH_CONT')
    k(f's_cmp_lt_u32 {S_SEG}, {EAGER}'); k(f's_cbranch_scc1 {LCONT}')
    k.save()
    k(f'buffer_store_dwordx4 {KV4}, {v16l}, {SRD_WS}, {S_KVM} offen sc1')
    k('s_waitcnt vmcnt(0)'); k('s_barrier')
    k(f's_add_u32 s6, {S_SEG}, 1')
    flag_store(k, pool, S_FKVM, 's6')
    k(f's_cmp_lt_u32 {S_SEG}, 63'); k(f's_cbranch_scc1 {LCONT}')
    k('s_waitcnt vmcnt(0)')
    k(f's_branch {LEND}')
    k.restore()
    k.label(LCONT)
    gload1(k, GOa[1], 5, 1)
    k(f'v_rcp_f32 {ls}, {ls}')
    mark(k, 'rcp')
    G3.free()
    GOb = [pool.alloc_at(56, 8, 'GOb0'), None]
    gload1(k, GOb[0], 6, 0)
    for t in range(2):
        if USE_PK:
            for h_ in range(2): k(f'v_pk_mul_f32 {O[t][2*h_:2*h_+2]}, {O[t][2*h_:2*h_+2]}, {L4[0:2]} op_sel_hi:[1,0]')
        else:
            for r in range(4): k(f'v_mul_f32 {O[t][r]}, {O[t][r]}, {L4[0]}')
        k(f'v_cvt_pk_bf16_f32 {P[2*t]}, {O[t][0]}, {O[t][1]}'); k(f'v_cvt_pk_bf16_f32 {P[2*t+1]}, {O[t][2]}, {O[t][3]}')
    k(f's_mov_b64 exec, {M_N2}')
    for t in range(2): k(f'ds_write_b64 {vOW}, {P[2*t:2*t+2]} offset:{OX + t * 256}')
    k('s_mov_b64 exec, -1')
    mark(k, 'oxw')
    gload1(k, GOb[0], 6, 1)
    for r in (S, TM, BM, O[0], O[1], L4): r.free()
    LS = [pool.alloc_at(32, 8, 'L0'), pool.alloc_at(48, 8, 'L1')]
    bl = pool.alloc_at(78, 1, 'blo')
    k(f'v_add_u32 {bl}, 81920, {vBL}')
    oops = [('O', i, c2) for i in range(10) for c2 in range(2)]
    lops = [op for op in oops if SRC[op][0] == 'L']
    li = {op: i for i, op in enumerate(lops)}
    def lload(n):
        op = lops[n]; base = (SRC[op][1] - 5) * 16384 + SRC[op][2] * 2048
        k(f'ds_read_b128 {LS[n % NLS_O][0:4]}, {bl} offset:{base}'); k(f'ds_read_b128 {LS[n % NLS_O][4:8]}, {bl} offset:{base + 1024}')
    for n in range(NLS_O): lload(n)
    P.free()
    GOb[1] = pool.alloc_at(24, 8, 'GOb1')
    AO = [pool.alloc_at(40, 4, 'AO0'), pool.alloc_at(44, 4, 'AO1')]
    acc = {0: pool.alloc_at(64, 4, 'o0'), 1: pool.alloc_at(72, 4, 'o1')}
    for i in range(2): zero(k, acc[i])
    mark(k, 'preb3')
    k('s_waitcnt lgkmcnt(0)'); k('s_barrier'); k.drained(vm=False)
    for c2 in range(2): k(f'ds_read_b128 {AO[c2]}, {v16l} offset:{OX + c2 * 1024}')
    bstamp(k, 3)
    mark(k, 'b3')
    if INTEGRATED and not NOSAMPLE:
        k(f'v_readfirstlane_b32 s6, {TCH[1]}'); k(f's_max_u32 {S_KVSEEN}, {S_KVSEEN}, s6')
    TCH.free()
    def epi(i):
        a = acc[i]; q = acc[i & ~3]
        k(f'v_add_f32 {a[0]}, {a[0]}, {a[1]}'); k(f'v_add_f32 {a[2]}, {a[2]}, {a[3]}')
        k(f'v_cvt_pk_bf16_f32 {q[i & 3]}, {a[0]}, {a[2]}')
        k(f'v_bfi_b32 {q[i & 3]}, 1, {S_TAG}, {q[i & 3]}')
        if i & 3: a.free()
        if i in (3, 7):
            k(f's_add_u32 s5, {S_PCUR}, {S_PST}')
            if i == 7: k(f's_add_u32 s5, s5, {16 * 8192}')
            k(f'buffer_store_dwordx4 {q}, {vPS}, {SRD_WS}, s5 offen' + stf()); q.free()
        if i == 9:
            h2 = pool.alloc(1, name='ps2'); k(f'v_lshrrev_b32 {h2}, 1, {vPS}')
            k(f's_add_u32 s5, {S_PCUR}, {S_PST2}')
            k(f'buffer_store_dwordx2 {q[0:2]}, {h2}, {SRD_WS}, s5 offen' + stf()); h2.free(); q.free()
    gmap = {('O', 0, 1): GOa[0], ('O', 1, 1): GOa[1], ('O', 8, 1): GOb[0], ('O', 9, 1): GOb[1]}
    def grab(nx):
        if nx < 10 and nx not in acc:
            try: acc[nx] = pool.alloc(4, name=f'o{nx}')
            except RuntimeError: return False
            zero(k, acc[nx])
        return True
    for i in range(10):
        assert grab(i), (i, sorted(pool.free), {r: pool.names.get(r) for r in sorted(pool.all - set(pool.free))})
        for c2 in range(2):
            op = ('O', i, c2); s = SRC[op]
            Bv = s[1] if s[0] == 'R' else (gmap[op] if s[0] == 'G' else LS[li[op] % NLS_O])
            smf(k, acc[i], AO[c2], Bv)
            if s[0] == 'L' and li[op] + NLS_O < len(lops): lload(li[op] + NLS_O)
        mark(k, 'r%d' % i)
        if i == 0: gload1(k, GOb[1], 7, 0)
        if i == 1: gload1(k, GOb[1], 7, 1)
        if i < 2: GOa[i].free()
        if i >= 2: epi(i - 2)
        for nx in (i + 1, i + 2, i + 3): grab(nx)
    epi(8); epi(9)
    for r in AO + LS + GOb + [bl]: r.free()
    KVP = pool.alloc_at(44, 4, 'KVprev')
    for i in range(4): k(f'v_mov_b32 {KVP[i]}, {KV4[i]}')
    KV4.free()
    bstamp(k, 4)
    mark(k, 'oend')
    hops(k, pool)
    KVP.free()
    mark(k, 'b0')
    bstamp(k, 5)
    if DBG_STEPS:
        k(f's_cmp_ge_u32 {S_SEG}, {DBG_STEPS}'); k(f's_cbranch_scc1 {LEND}')
    k(f's_branch {LOOP}')

KVM_EARLY = False
S_TOFF = 's97'
S_VX = 's15'
S_TCH = 's16'
def hops(k, pool):
    LPOLL, LNR = k.newlabel('HP_POLL'), k.newlabel('HP_NR')
    G2 = pool.alloc_at(G23, 8, 'G2')
    k.manual(True)
    k(f's_cmp_eq_u32 {S_RED}, 0'); k(f's_cbranch_scc1 {LNR}')
    G2.free()
    hop1(k, pool)
    G2 = pool.alloc_at(G23, 8, 'G2')
    k(f's_branch {LPOLL}')
    k.label(LNR)
    if INTEGRATED:
        LSEEN = k.newlabel('HP_SEEN')
        k(f's_cmp_lg_u32 {S_WAVE}, 3'); k(f's_cbranch_scc1 {LSEEN}')
        k(f's_add_u32 s61, {S_SEG}, 2'); k('s_min_u32 s61, s61, 64')
        k(f's_cmp_ge_u32 {S_KVSEEN}, s61'); k(f's_cbranch_scc1 {LSEEN}')
        vt = pool.alloc(2, name='kvp')
        poll_flag(k, S_FKVD, 's61', vt, 'CH_KV')
        k(f's_mov_b32 {S_KVSEEN}, s6')
        vt.free()
        k.label(LSEEN)
    k.label(LPOLL)
    k('s_barrier')
    if PRE_SLEEP: k(f's_sleep {PRE_SLEEP}')
    dS = [pool.alloc_at(56, 12, 'mlandA'), pool.alloc_at(68, 12, 'mlandB')]; t = pool.alloc(2, name='h2t')
    k(f's_lshl_b32 s4, {S_WAVE}, 1'); k(f's_cmp_eq_u32 {S_WAVE}, 3'); k('s_cselect_b32 s4, 7, s4'); k('s_lshl_b32 s4, s4, 10')
    k(f's_add_u32 s5, {S_MNEXT}, s4')
    k(f'v_add_u32 {t[1]}, s4, {v16l}')
    k('s_mov_b32 s7, 0')
    L3, L2, LD = k.newlabel('H2_3'), k.newlabel('H2_2'), k.newlabel('H2_D')
    k(f's_cmp_ge_u32 {S_WAVE}, 2'); k(f's_cbranch_scc1 {L3}')
    for n, L in ((2, L2), (3, L3)):
        k.label(L)
        def issue(d):
            for j in range(n): k(f'buffer_load_dwordx4 {d[4*j:4*j+4]}, {v16l}, {SRD_WS}, s5 offen offset:{j * 1024} sc1')
        def check(d, LOK):
            k(f'v_max3_u32 {t[0]}, {d[0]}, {d[1]}, {d[2]}')
            rest = list(range(3, 4 * n))
            while rest:
                if len(rest) >= 2: k(f'v_max3_u32 {t[0]}, {t[0]}, {d[rest[0]]}, {d[rest[1]]}'); rest = rest[2:]
                else: k(f'v_max_u32 {t[0]}, {t[0]}, {d[rest[0]]}'); rest = rest[1:]
            k(f'v_cmp_eq_u32 vcc, -1, {t[0]}')
            k(f's_cbranch_vccz {LOK}')
        LL, LA, LB = k.newlabel('H2_L'), k.newlabel('H2_A'), k.newlabel('H2_B')
        if PIPE_POLL:
            issue(dS[0])
            if POLL_GAP: k(f's_sleep {POLL_GAP}')
            k.label(LL)
            issue(dS[1])
            k(f's_waitcnt vmcnt({n})'); check(dS[0], LA)
            issue(dS[0])
            k(f's_waitcnt vmcnt({n})'); check(dS[1], LB)
            k('s_add_u32 s7, s7, 1'); k('s_cmp_gt_u32 s7, ' + hex(SPIN)); k(f's_cbranch_scc0 {LL}')
            k('s_waitcnt vmcnt(0)')
        else:
            k.label(LL)
            issue(dS[0])
            k('s_waitcnt vmcnt(0)'); check(dS[0], LA)
            k('s_add_u32 s7, s7, 1'); k('s_cmp_gt_u32 s7, ' + hex(SPIN)); k(f's_cbranch_scc0 {LL}')
        for d, LX in ((dS[0], LA), (dS[1], LB)):
            k.label(LX)
            mark(k, 'memok')
            for j in range(n): k(f'ds_write_b128 {t[1]}, {d[4*j:4*j+4]} offset:{MEM + j * 1024}')
            k(f's_branch {LD}')
    k.label(LD)
    gload1(k, G2, 0, 0); gload1(k, G2, 0, 1)
    k(f's_add_u32 {S_SEG}, {S_SEG}, 1')
    k(f's_add_u32 {S_KX}, {S_KX}, {32 * 16384}'); k(f's_add_u32 {S_KVM}, {S_KVM}, {32 * 4096}'); k(f's_add_u32 {S_VX}, {S_VX}, {32 * 16384}')
    k(f's_xor_b32 {S_TAG}, {S_TAG}, 1')
    k(f's_mov_b32 {S_MPP}, {S_MPOI}')
    k(f's_mov_b32 {S_MPOI}, {S_MNEXT}')
    k(f's_add_u32 {S_MNEXT}, {S_MNEXT}, 16384'); k(f's_sub_u32 s5, {S_MNEXT}, {S_MB}'); k('s_cmp_eq_u32 s5, 49152')
    k(f's_cselect_b32 {S_MNEXT}, {S_MB}, {S_MNEXT}')
    dS[0].free(); dS[1].free(); t.free()
    k('s_waitcnt lgkmcnt(0)'); k('s_barrier')
    k.manual(False); k.drained()
    G2.free()

def flag_store(k, pool, s_off, val):
    f = pool.alloc(2, name='flag')
    k(f'v_mov_b32 {f[0]}, {val}'); k(f'v_mov_b32 {f[1]}, 0')
    k('s_mov_b64 exec, 1')
    k(f'buffer_store_dword {f[0]}, {f[1]}, {SRD_WS}, {s_off} offen sc1')
    k('s_mov_b64 exec, -1')
    f.free()

def pub_addr(k, dst, tmp):
    k(f'v_bfe_u32 {dst}, {vLN}, 1, 3'); k(f'v_lshlrev_b32 {dst}, 10, {dst}')
    k(f'v_lshrrev_b32 {tmp}, 4, {vLN}'); k(f'v_lshl_add_u32 {dst}, {tmp}, 6, {dst}')
    k(f'v_and_b32 {tmp}, 1, {vLN}'); k(f'v_lshl_add_u32 {dst}, {tmp}, 5, {dst}')

S_TAG = 's17'
M_SEL = ['s[20:21]', 's[22:23]', 's[40:41]', 's[42:43]']
def hop1(k, pool):
    LFULL, LHALF, LPUB = k.newlabel('H1_F'), k.newlabel('H1_H'), k.newlabel('H1_P')
    dA = pool.alloc_at(8, 16, 'landA'); dB = pool.alloc_at(G23, 16, 'landB')
    class DD:
        def __getitem__(self, x):
            if isinstance(x, slice):
                a, b = x.start, x.stop
                return dA[a:b] if a < 16 else dB[a - 16:b - 16]
            return dA[x] if x < 16 else dB[x - 16]
        def free(self): dA.free(); dB.free()
    d = DD(); sel = pool.alloc(4, name='sel'); acc = pool.alloc(4, name='racc'); t = pool.alloc(3, name='h1t')
    def setup():
        k(f'v_and_b32 {t[0]}, 1, {vLN}'); k(f'v_lshlrev_b32 {t[0]}, 4, {t[0]}'); k(f'v_mov_b32 {t[1]}, 0x3f80'); k(f'v_lshlrev_b32 {t[0]}, {t[0]}, {t[1]}')
        for dd in range(4): k(f'v_cndmask_b32 {sel[dd]}, 0, {t[0]}, {M_SEL[dd]}')
        pub_addr(k, t[0], t[1])
    k(f's_add_u32 s5, {S_PCUR}, {S_RLD}'); k('s_add_u32 s6, s5, 4096')
    k('s_mov_b32 s7, 0')
    setup()
    k(f's_cmp_eq_u32 {S_RED}, 2'); k(f's_cbranch_scc1 {LHALF}')
    def poll(L, nload, width, op, mf, slp):
        L0, L1 = k.newlabel(L + '0'), k.newlabel(L + '1')
        if slp: k(f's_sleep {slp}')
        k(f's_cmp_eq_u32 {S_TAG}, 1'); k(f's_cbranch_scc1 {L1}')
        for tag, LL in ((0, L0), (1, L1)):
            k.label(LL)
            for m in range(nload):
                if width == 4:
                    k(f'buffer_load_dwordx4 {d[4*m:4*m+4]}, {v16l}, {SRD_WS}, {"s5" if m < 4 else "s6"} offen offset:{(m % 4) * 1024} sc1')
                else:
                    k(f'buffer_load_dwordx2 {d[2*m:2*m+2]}, {t[2]}, {SRD_WS}, s5 offen offset:{m * 512} sc1')
            k('s_add_u32 s7, s7, 1')
            red = 'bitop3:0x80' if tag else 'bitop3:0xfe'
            for m in range(nload):
                k(f's_waitcnt vmcnt({nload - 1 - m})')
                dm = d[width*m:width*m+width]
                k(f'{mf} {acc}, {dm}, {sel[0:width]}, ' + ('0' if m == 0 else str(acc)))
                for h_ in range(width // 2):
                    if m == 0 and h_ == 0:
                        k(f'v_and_b32 {t[1]}, {dm[0]}, {dm[1]}' if tag else f'v_or_b32 {t[1]}, {dm[0]}, {dm[1]}')
                    else:
                        k(f'v_bitop3_b32 {t[1]}, {t[1]}, {dm[2*h_]}, {dm[2*h_+1]} {red}')
            k(f'v_and_b32 {t[1]}, 1, {t[1]}')
            k(f'v_cmp_ne_u32 vcc, {tag}, {t[1]}')
            k(f's_cbranch_vccz {LPUB}')
            if TIMING and FAILHIST and width == 4:
                for m in range(nload):
                    dm = d[4*m:4*m+4]
                    opn = 'v_and_b32' if tag else 'v_or_b32'
                    k(f'{opn} {t[1]}, {dm[0]}, {dm[1]}'); k(f'{opn} {t[1]}, {t[1]}, {dm[2]}'); k(f'{opn} {t[1]}, {t[1]}, {dm[3]}')
                    k(f'v_and_b32 {t[1]}, 1, {t[1]}'); k(f'v_cmp_ne_u32 vcc, {tag}, {t[1]}'); k('s_nop 4')
                    if FAILHIST == 'm':
                        k('s_cmp_lg_u64 vcc, 0'); k('s_cselect_b32 s78, 1, 0'); k(f's_add_u32 s{80+m}, s{80+m}, s78')
                    else:
                        for G in range(4):
                            k(f's_lshr_b64 s[78:79], vcc, {16*G}'); k('s_and_b32 s78, s78, 0xffff'); k('s_cmp_lg_u32 s78, 0'); k('s_cselect_b32 s78, 1, 0'); k(f's_add_u32 s{80+G}, s{80+G}, s78')
                        k('s_bcnt1_i32_b64 s78, vcc'); k('s_add_u32 s84, s84, s78')
            k('s_cmp_gt_u32 s7, ' + hex(SPIN)); k(f's_cbranch_scc0 {LL}')
            k(f's_branch {LPUB}')
    if RED_SLEEP_G1 != RED_SLEEP:
        LG0 = k.newlabel('H1_G0')
        k(f's_cmp_lt_u32 {S_IDX}, 16'); k(f's_cbranch_scc1 {LG0}')
        k(f's_sleep {RED_SLEEP_G1 - RED_SLEEP}')
        k.label(LG0)
    poll('H1_F', 8, 4, None, 'v_mfma_f32_16x16x32_bf16', RED_SLEEP)
    k.label(LHALF)
    k(f'v_lshrrev_b32 {t[2]}, 1, {v16l}')
    poll('H1_H', 8, 2, None, 'v_mfma_f32_16x16x16_bf16', RED_SLEEP_H)
    k.label(LPUB)
    mark(k, 'lpub')
    bstamp(k, 6)
    if TIMING and COUNT_POLLS: k('s_add_u32 s86, s86, s7')
    k('s_nop 4')
    k(f'v_cvt_pk_bf16_f32 {d[0]}, {acc[0]}, {acc[1]}'); k(f'v_cvt_pk_bf16_f32 {d[1]}, {acc[2]}, {acc[3]}')
    k(f'v_min_u32 {d[0]}, 0xfffffffe, {d[0]}'); k(f'v_min_u32 {d[1]}, 0xfffffffe, {d[1]}')
    k(f's_add_u32 s5, {S_MNEXT}, {S_RPUB}')
    k(f's_mov_b64 exec, {M_PUB}')
    k(f'buffer_store_dwordx2 {d[0:2]}, {t[0]}, {SRD_WS}, s5 offen' + stf())
    k(f'v_mov_b32 {d[2]}, -1'); k(f'v_mov_b32 {d[3]}, -1')
    k(f's_add_u32 s5, {S_MPOI}, {S_RPUB}')
    k(f'buffer_store_dwordx2 {d[2:4]}, {t[0]}, {SRD_WS}, s5 offen' + stf())
    k('s_mov_b64 exec, -1')
    for r in (sel, d, acc, t): r.free()
```
